```python
import torch

def _softmax(x, axis=-1):
    return torch.softmax(x, dim=axis)
def _gelu(x):
    return torch.nn.functional.gelu(x, approximate="tanh")
def _silu(x):
    return torch.nn.functional.silu(x)
def _sigmoid(x):
    return torch.sigmoid(x)
def _layernorm(x, axis=-1, eps=1e-5):
    m = x.mean(dim=axis, keepdim=True)
    v = x.var(dim=axis, keepdim=True, unbiased=False)
    return (x - m) / torch.sqrt(v + eps)
def _scatter_add(tgt, idx, src, axis=0):
    return tgt.clone().index_add_(axis, idx, src)
def _segment_sum(src, seg, n):
    out = torch.zeros((n,) + src.shape[1:], dtype=src.dtype)
    return out.index_add_(0, seg, src)
def _pad(x, pw):
    flat = tuple(v for pair in reversed(pw) for v in pair)
    return torch.nn.functional.pad(x, flat)

kernel_name = 'sequential_preLN__sliding_local_dilated__glu_gated_glu__prompt'

def setup_inputs():

    _w = (lambda a: (lambda t: t.to(torch.bfloat16) if t.is_floating_point() else t)(torch.as_tensor(a)))
    def _A_setup():
        B, S, D = 1, 2048, 576
        return {
            "x": _w((lambda *s: torch.randn(*s, dtype=torch.bfloat16) * 0.05)(B, S, D)),
            "wqkv": _w((lambda *s: torch.randn(*s, dtype=torch.bfloat16) * 0.05)(D, 3 * D)),
            "wo": _w((lambda *s: torch.randn(*s, dtype=torch.bfloat16) * 0.05)(D, D)),
        }
    _A_in = _A_setup()

    def _B_setup():
        B, S, D, F = 1, 2048, 576, 4608
        return {
            "x": _w((lambda *s: torch.randn(*s, dtype=torch.bfloat16) * 0.05)(B, S, D)),
            "w_gate": _w((lambda *s: torch.randn(*s, dtype=torch.bfloat16) * 0.05)(D, F)),
            "w_up": _w((lambda *s: torch.randn(*s, dtype=torch.bfloat16) * 0.05)(D, F)),
            "w_down": _w((lambda *s: torch.randn(*s, dtype=torch.bfloat16) * 0.05)(F, D)),
        }
    _B_in = _B_setup()

    return {
        "A_x": _A_in["x"],
        "A_wqkv": _A_in["wqkv"],
        "A_wo": _A_in["wo"],
        "B_x": _B_in["x"],
        "B_w_gate": _B_in["w_gate"],
        "B_w_up": _B_in["w_up"],
        "B_w_down": _B_in["w_down"],
    }

def reference(A_x, A_wqkv, A_wo, B_x, B_w_gate, B_w_up, B_w_down):
    def _A_ref(x, wqkv, wo):
        B, S, D = x.shape
        H = 32; Dh = D // H
        W, dil = 8, 2
        qkv = (lambda x, *d: x.permute(*d))((x @ wqkv).reshape(B, S, 3, H, Dh), 2, 0, 3, 1, 4)
        q, k, v = qkv[0], qkv[1], qkv[2]
        scale = Dh ** -0.5
        pos = torch.arange(S)
        off = torch.arange(W) * dil
        idx = pos[:, None] - off[None, :]
        mask = idx >= 0
        idx_c = torch.where(mask, idx, 0).reshape(-1)
        kg = k[:, :, idx_c, :].reshape(B, H, S, W, Dh)
        vg = v[:, :, idx_c, :].reshape(B, H, S, W, Dh)
        logits = torch.einsum("bhsd,bhswd->bhsw", q, kg) * scale
        logits = torch.where(mask[None, None, :, :], logits, -1e9)
        attn = _softmax(logits, axis=-1)
        o = torch.einsum("bhsw,bhswd->bhsd", attn, vg)
        return (lambda x, *d: x.permute(*d))(o, 0, 2, 1, 3).reshape(B, S, D) @ wo

    def _B_ref(x, w_gate, w_up, w_down):
        g = torch.einsum("bsd,df->bsf", x, w_gate)
        u = torch.einsum("bsd,df->bsf", x, w_up)
        h = _sigmoid(g) * u
        return torch.einsum("bsf,fd->bsd", h, w_down)

    x = A_x
    h = x + _A_ref(_layernorm(x, axis=-1), A_wqkv, A_wo)
    h2 = h + _B_ref(_layernorm(h, axis=-1), B_w_gate, B_w_up, B_w_down)
    return h2
```

```python
import re

_REG = re.compile(r"^(-|\|)?(abs\()?([vas])(\d+|\[(\d+):(\d+)\])\)?\|?$")


def regs_of(op):
    if not isinstance(op, str):
        return []
    op = op.strip()
    if op in ("vcc", "exec"):
        return [(op, 0), (op, 1)]
    if op in ("vcc_lo", "exec_lo"):
        return [(op[:-3], 0)]
    if op in ("vcc_hi", "exec_hi"):
        return [(op[:-3], 1)]
    if op == "m0":
        return [("m0", 0)]
    m = _REG.match(op)
    if not m:
        return []
    f = m.group(3)
    if m.group(5) is not None:
        return [(f, i) for i in range(int(m.group(5)), int(m.group(6)) + 1)]
    return [(f, int(m.group(4)))]


def R(f, i, n=1):
    return f"{f}{i}" if n == 1 else f"{f}[{i}:{i + n - 1}]"


def v(i, n=1):
    return R("v", i, n)


def a(i, n=1):
    return R("a", i, n)


def s(i, n=1):
    return R("s", i, n)


TRANS = ("v_exp_f32", "v_log_f32", "v_rcp_f32", "v_rsq_f32", "v_sqrt_f32", "v_sin_f32", "v_cos_f32")


class Ins:
    __slots__ = ("mn", "ops", "mods", "dst", "src", "kind", "comment", "passes", "srcC", "text")

    def __init__(self, mn, ops, mods="", comment=None):
        self.mn, self.ops, self.mods, self.comment = mn, list(ops), mods, comment
        self.passes = 0
        self.srcC = []
        self.text = None
        o = [str(x) for x in ops]
        dst, src = [], []
        lds = " lds" in (" " + mods)
        if mn.startswith("v_mfma"):
            self.kind = "mfma"
            self.passes = 8 if "32x32x16" in mn else 4
            dst = regs_of(o[0])
            src = regs_of(o[1]) + regs_of(o[2]) + regs_of(o[3])
            self.srcC = regs_of(o[3])
        elif mn.startswith("buffer_load") or mn.startswith("global_load"):
            self.kind = "vmem"
            if lds or "lds" in mn:
                src = sum((regs_of(x) for x in o), []) + [("m0", 0)]
            else:
                dst = regs_of(o[0])
                src = sum((regs_of(x) for x in o[1:]), [])
        elif mn.startswith("buffer_store") or mn.startswith("global_store"):
            self.kind = "vmem"
            src = sum((regs_of(x) for x in o), [])
        elif mn.startswith("buffer_atomic") or mn.startswith("global_atomic"):
            self.kind = "vmem"
            src = sum((regs_of(x) for x in o), [])
            if "sc0" in mods:
                dst = regs_of(o[0])
        elif mn in ("buffer_inv", "buffer_wbl2"):
            self.kind = "vmem"
        elif mn.startswith("ds_read") or mn.startswith("ds_bpermute") or mn.startswith("ds_swizzle") or mn.startswith("ds_permute"):
            self.kind = "ds"
            dst = regs_of(o[0])
            src = sum((regs_of(x) for x in o[1:]), [])
        elif mn.startswith("ds_"):
            self.kind = "ds"
            src = sum((regs_of(x) for x in o), [])
        elif mn.startswith("s_load") or mn.startswith("s_memtime") or mn.startswith("s_memrealtime") or mn.startswith("s_buffer_load"):
            self.kind = "smem"
            dst = regs_of(o[0])
            src = sum((regs_of(x) for x in o[1:]), [])
        elif mn.startswith("s_cmp") or mn.startswith("s_cbranch") or mn in ("s_branch", "s_barrier", "s_waitcnt", "s_nop", "s_endpgm", "s_setprio", "s_sleep", "s_bitcmp1_b32", "s_bitcmp0_b32"):
            self.kind = "sctl"
            src = sum((regs_of(x) for x in o), [])
        elif mn.startswith("s_"):
            self.kind = "salu"
            dst = regs_of(o[0])
            src = sum((regs_of(x) for x in o[1:]), [])
            if "saveexec" in mn:
                dst += [("exec", 0), ("exec", 1)]
                src += [("exec", 0), ("exec", 1)]
        elif mn.startswith("v_"):
            self.kind = "valu"
            dst = regs_of(o[0])
            src = sum((regs_of(x) for x in o[1:]), [])
            if mn.startswith("v_fmac") or mn.startswith("v_dot2c") or mn.startswith("v_permlane"):
                src += regs_of(o[0])
            if mn.startswith("v_permlane"):
                dst += regs_of(o[1])
            if mn.startswith("v_add_co") or mn.startswith("v_sub_co") or mn.startswith("v_addc_co"):
                dst += regs_of(o[1])
            if "dpp" in mn or "row_" in mods or "quad_perm" in mods:
                src += regs_of(o[0])
        else:
            raise ValueError("unknown mnemonic " + mn)
        self.dst, self.src = dst, src

    def is_dpp(self):
        return "dpp" in self.mn or "row_" in self.mods or "quad_perm" in self.mods

    def render(self):
        if self.text is not None:
            return self.text
        t = self.mn
        if self.ops:
            t += " " + ", ".join(str(x) for x in self.ops)
        if self.mods:
            t += " " + self.mods
        if self.comment:
            t += "  ; " + self.comment
        return t


class Raw(Ins):
    def __init__(self, text):
        self.mn, self.ops, self.mods, self.comment = "", [], "", None
        self.dst, self.src, self.kind, self.passes, self.srcC = [], [], "raw", 0, []
        self.text = text


class Kern:
    def __init__(self, name):
        self.name = name
        self.ins = []
        self.vmq = []
        self.dsq = []
        self.smem_pending = set()
        self.nid = 0
        self.auto = True

    def _need_waits(self, ins):
        touched = set(ins.src) | set(ins.dst)
        vm = lg = None
        for i, (tid, d) in enumerate(self.vmq):
            if d & touched:
                vm = len(self.vmq) - 1 - i
        for i, (tid, d) in enumerate(self.dsq):
            if d & touched:
                lg = len(self.dsq) - 1 - i
        if self.smem_pending & touched:
            lg = 0
        if lg is not None and self.smem_pending:
            lg = 0
        return vm, lg

    def _do_wait(self, vm, lg):
        parts = []
        if vm is not None:
            assert vm <= 63
            parts.append(f"vmcnt({vm})")
            self.vmq = self.vmq[len(self.vmq) - vm:] if vm else []
        if lg is not None:
            lg = min(lg, 15)
            parts.append(f"lgkmcnt({lg})")
            self.dsq = self.dsq[len(self.dsq) - lg:] if lg else []
            if lg == 0:
                self.smem_pending = set()
        if parts:
            self.ins.append(Ins("s_waitcnt", [" ".join(parts)]))

    def I(self, mn, *ops, mods="", c=None):
        ins = Ins(mn, ops, mods, c)
        if self.auto:
            vm, lg = self._need_waits(ins)
            if vm is not None and vm > 63:
                vm = 63
            self._do_wait(vm, lg)
            if ins.kind == "vmem" and len(self.vmq) >= 63:
                self._do_wait(62, None)
        self.ins.append(ins)
        tid = None
        if ins.kind == "vmem":
            self.nid += 1
            tid = self.nid
            self.vmq.append((tid, set(ins.dst)))
        elif ins.kind == "ds":
            self.nid += 1
            tid = self.nid
            self.dsq.append((tid, set(ins.dst)))
        elif ins.kind == "smem":
            self.smem_pending |= set(ins.dst)
            self.dsq.append((-1, set()))
        return tid

    def wait_vm(self, tid):
        for i, (t, d) in enumerate(self.vmq):
            if t == tid:
                n = len(self.vmq) - 1 - i
                self._do_wait(min(n, 63) if n <= 63 else 63, None)
                return

    def wait_ds(self, tid):
        for i, (t, d) in enumerate(self.dsq):
            if t == tid:
                n = len(self.dsq) - 1 - i
                if self.smem_pending:
                    n = 0
                self._do_wait(None, n)
                return

    def wait(self, vm=None, lg=None):
        if vm is not None:
            vm = min(vm, len(self.vmq))
        if lg is not None:
            lg = min(lg, len(self.dsq))
        self._do_wait(vm, lg)

    def label(self, name):
        self.ins.append(Raw(name + ":"))

    def raw(self, text):
        self.ins.append(Raw(text))

    def pad_hazards(self):
        out = []
        hist = []
        t = 0

        def states(i):
            if i.kind == "raw":
                return 0
            if i.mn == "s_nop":
                return int(i.ops[0]) + 1
            return 1

        branches = {}
        for ins in self.ins:
            if ins.kind == "raw":
                out.append(ins)
                lab = ins.text.strip().rstrip(":")
                for tb in branches.pop(lab, []):
                    sh = t - (tb + 1)
                    hist = [((tp + sh) if tp <= tb else tp, p) for (tp, p) in hist]
                    hist.sort(key=lambda e: e[0])
                continue
            need = 0
            src, dst = set(ins.src), set(ins.dst)
            for (tp, p) in reversed(hist):
                dist = t - tp - 1
                if dist >= 20:
                    break
                pd, ps = set(p.dst), set(p.src)
                req = 0
                if p.kind == "mfma":
                    big = {4: 8, 8: 12}[p.passes]
                    if ins.kind == "mfma":
                        c = set(ins.srcC)
                        ab = src - c if not (set(regs_of(str(ins.ops[1]))) | set(regs_of(str(ins.ops[2])))) & c else src
                        ab = set(regs_of(str(ins.ops[1]))) | set(regs_of(str(ins.ops[2])))
                        if ab & pd:
                            req = max(req, big)
                        if c & pd:
                            if c == pd and ins.passes == p.passes:
                                req = max(req, 0)
                            else:
                                req = max(req, {4: 6, 8: 10}[p.passes])
                        if (dst & pd) and not (c == pd):
                            req = max(req, {4: 6, 8: 10}[p.passes])
                    elif ins.kind in ("valu", "vmem", "ds"):
                        if (src | dst) & pd:
                            req = max(req, big)
                        if ins.kind == "valu" and dst & set(p.srcC):
                            req = max(req, {4: 3, 8: 7}[p.passes])
                elif p.kind == "valu":
                    vd = {r for r in pd if r[0] in "va"}
                    sd = pd - vd
                    if ins.kind == "mfma" and src & vd:
                        req = max(req, 2)
                    if ins.kind == "valu":
                        if p.mn.startswith(TRANS) and (src & vd) and not ins.mn.startswith(TRANS):
                            req = max(req, 1)
                        if p.mn.startswith(TRANS) and (src & vd):
                            req = max(req, 1)
                        if ins.is_dpp() and src & vd:
                            req = max(req, 2)
                        if ins.mn.startswith("v_permlane") and src & vd:
                            req = max(req, 2)
                        if (ins.mn.startswith("v_readfirstlane") or ins.mn.startswith("v_readlane")) and src & vd:
                            req = max(req, 1)
                        if src & sd:
                            req = max(req, 4 if ins.mn.startswith(("v_readlane", "v_writelane")) else 2)
                        if p.mn.startswith("v_dot") and (src | dst) & vd:
                            same = ins.mn == p.mn
                            if same and ins.mn.startswith("v_dot2c"):
                                ab = set(regs_of(str(ins.ops[1]))) | set(regs_of(str(ins.ops[2])))
                                if ab & vd:
                                    req = max(req, 3)
                            elif same:
                                ab = set(regs_of(str(ins.ops[1]))) | set(regs_of(str(ins.ops[2])))
                                if ab & vd:
                                    req = max(req, 3)
                            else:
                                req = max(req, 3)
                    if p.mn.startswith("v_dot") and ins.kind in ("mfma", "vmem", "ds") and (src | dst) & vd:
                        req = max(req, 3)
                    if ins.kind == "vmem" and src & sd:
                        req = max(req, 5)
                    if ins.kind in ("salu", "sctl") and src & sd:
                        req = max(req, 1)
                    if any(r[0] == "exec" for r in pd):
                        if ins.kind == "mfma":
                            req = max(req, 4)
                        elif ins.kind == "valu":
                            req = max(req, 5)
                elif p.kind == "salu":
                    if ("m0", 0) in pd and ins.kind in ("vmem", "ds") and ("m0", 0) in src:
                        req = max(req, 1)
                elif p.kind == "vmem":
                    if ("store" in p.mn or "atomic" in p.mn) and ("x4" in p.mn or "x3" in p.mn):
                        data = set(regs_of(str(p.ops[0]))) if p.mn.startswith("buffer") else set(regs_of(str(p.ops[1])))
                        if dst & data:
                            req = max(req, 2)
                if req - dist > need:
                    need = req - dist
            while need > 0:
                n = min(need, 16)
                nop = Ins("s_nop", [n - 1])
                out.append(nop)
                t += n
                need -= n
            out.append(ins)
            hist.append((t, ins))
            if ins.mn.startswith("s_cbranch") or ins.mn == "s_branch":
                branches.setdefault(str(ins.ops[0]), []).append(t)
            t += states(ins)
            if len(hist) > 400 and not branches:
                hist = hist[-48:]
        self.ins = out

    def text(self):
        lines = []
        for i in self.ins:
            if i.kind == "raw":
                lines.append(i.render())
            else:
                lines.append("    " + i.render())
        return "\n".join(lines)

    def max_regs(self):
        mv = ma = ms = -1
        for i in self.ins:
            for (f, n) in list(i.dst) + list(i.src):
                if f == "v":
                    mv = max(mv, n)
                elif f == "a":
                    ma = max(ma, n)
                elif f == "s":
                    ms = max(ms, n)
        return mv + 1, ma + 1, ms + 1
```

```python
from asm import *

S, D, F = 2048, 576, 4608
NAME = "sequential_preLN__sliding_local_dilated__glu_gated_glu__prompt"

WS_O = 0x0000000
WS_H = 0x0240000
WS_HH = 0x0480000
WS_WO = 0x1680000
WS_WD = 0x1800000
WS_WGU = 0x1E00000
WS_CS = 0x2900000
WS_ST = 0x2A00000
WS_STAMP = 0x2B00000
WS_SIZE = 0x2C00000

KA_X, KA_WQKV, KA_WO, KA_BX, KA_WG, KA_WU, KA_WD, KA_OUT, KA_DBG, KA_WS = [8 * i for i in range(10)]


def srd(k, d, base, nbytes):
    if d != base:
        k.I("s_mov_b32", s(d), s(base))
    k.I("s_and_b32", s(d + 1), s(base + 1), "0xffff")
    k.I("s_mov_b32", s(d + 2), hex(nbytes))
    k.I("s_mov_b32", s(d + 3), "0x00020000")


def kernel_text(k, lds_unused=0):
    k.pad_hazards()
    nv, na, ns = k.max_regs()
    acc_off = max(4, (nv + 3) // 4 * 4)
    nfv = acc_off + na if na else nv
    assert nv <= 256 and na <= 256 and ns <= 102, (nv, na, ns)
    code = f""".globl {k.name}
.p2align 8
.type {k.name},@function
{k.name}:
{k.text()}
"""
    desc = f""".p2align 6
.amdhsa_kernel {k.name}
  .amdhsa_next_free_vgpr {nfv}
  .amdhsa_next_free_sgpr {max(ns, 16)}
  .amdhsa_accum_offset {acc_off}
  .amdhsa_group_segment_fixed_size 0
  .amdhsa_kernarg_size 80
  .amdhsa_user_sgpr_count 2
  .amdhsa_user_sgpr_kernarg_segment_ptr 1
  .amdhsa_system_sgpr_workgroup_id_x 1
.end_amdhsa_kernel
"""
    return code, desc


class Stamps:
    def __init__(self, k, sb, enable):
        self.k, self.sb, self.n, self.on = k, sb, 0, enable

    def stamp(self):
        if not self.on:
            return
        k = self.k
        k.I("s_memtime", s(self.sb + 4 * self.n, 2))
        k.I("s_memrealtime", s(self.sb + 4 * self.n + 2, 2))
        self.n += 1

    def dump(self, srd_ws, vt, slot):
        if not self.on:
            return
        k = self.k
        k.wait(lg=0)
        k.I("v_lshrrev_b32", v(vt), 6, v(0))
        k.I("s_lshl_b32", s(self.sb + 4 * self.n), s(2), 9)
        k.I("v_lshlrev_b32", v(vt), 7, v(vt))
        k.I("v_add_u32", v(vt), s(self.sb + 4 * self.n), v(vt))
        k.I("v_add_u32", v(vt), hex(WS_STAMP + slot * 0x40000), v(vt))
        for i in range(self.n):
            k.I("v_mov_b32", v(vt + 2), s(self.sb + 4 * i))
            k.I("v_mov_b32", v(vt + 3), s(self.sb + 4 * i + 2))
            k.I("buffer_store_dwordx2", v(vt + 2, 2), v(vt), s(srd_ws, 4), 0, mods=f"offen offset:{8 * i}")
```

```python
import sys, os
sys.path.insert(0, os.path.dirname(__file__))
from common import *

HEADER = """; Kernarg layout (80 bytes, ptrs only, base s[0:1]):
"""

def build(kernels, path):
    launches, codes, descs = [], [], []
    for k, geo in kernels:
        c, d = kernel_text(k)
        launches.append(f"; @launch kernel={k.name} {geo}")
        codes.append(c); descs.append(d)
    txt = HEADER + "\n".join(launches) + "\n"
    txt += '.amdgcn_target "amdgcn-amd-amdhsa--gfx950"\n.text\n'
    txt += "\n".join(codes)
    txt += '.section .rodata,"a"\n' + "\n".join(descs)
    open(path, "w").write(txt)
    return txt

if __name__ == "__main__":
    import k_prep, k_frag
    ks = [k_prep.build_k0()]
    try:
        import k_attn
        ks.append(k_attn.build_k1())
    except ImportError:
        pass
    ks.append(k_frag.build_frag("B"))
    try:
        import k_glu
        ks.append(k_glu.build_k3(dbg="onewait"))
    except ImportError:
        pass
    ks.append(k_frag.build_frag("D"))
    out = sys.argv[1] if len(sys.argv) > 1 else f"cdna_kernels/{NAME}.s"
    build(ks, out)
    print("wrote", out)
```

```python
from common import *
from k_frag import f32bits

MF = "v_mfma_f32_16x16x32_bf16"
XB = 10240
WBYTES = 27648
STG = XB + WBYTES
NSLOT = 3
LDS_TOTAL = NSLOT * STG + 1024
L_QK = 0
L_V = 23552
L_ST = 47360
L_O = 48128
LOG2E = 1.4426950408889634


def build_k1(dbg=""):
    k = Kern("k1_kernel")
    ST = Stamps(k, 60, "stamp" in dbg)
    k.I("s_cmp_ge_u32", s(2), 256)
    k.I("s_cbranch_scc1", "K1_END")
    ST.stamp()
    k.I("s_load_dwordx4", s(4, 4), s(0, 2), KA_X)
    k.I("s_load_dwordx2", s(16, 2), s(0, 2), KA_WS)
    k.I("v_lshrrev_b32", v(1), 6, v(0))
    k.I("v_and_b32", v(2), 63, v(0))
    k.I("v_readfirstlane_b32", s(3), v(1))
    k.I("s_bfe_u32", s(20), s(2), hex((2 << 16) | 1))
    k.I("s_lshl_b32", s(20), s(20), 3)
    k.I("s_bfe_u32", s(21), s(2), hex((3 << 16) | 3))
    k.I("s_add_u32", s(20), s(20), s(21))
    k.I("s_and_b32", s(21), s(2), 1)
    k.I("s_lshl_b32", s(21), s(21), 2)
    k.I("s_lshr_b32", s(22), s(2), 6)
    k.I("s_add_u32", s(21), s(21), s(22))
    k.wait(lg=0)
    srd(k, 8, 4, S * D * 2)
    srd(k, 12, 6, D * 3 * D * 2)
    srd(k, 16, 16, WS_SIZE)
    VX, VW = 4, 7
    k.I("s_lshl_b32", s(22), s(20), 6)
    k.I("s_sub_u32", s(22), s(22), 16)
    k.I("s_mov_b32", s(23), 1152)
    for n in range(3):
        k.I("v_lshrrev_b32", v(14), 3, v(0))
        k.I("v_add_u32", v(14), 32 * n, v(14))
        k.I("v_bfe_u32", v(15), v(14), 1, 3)
        k.I("v_and_b32", v(16), 7, v(0))
        k.I("v_xor_b32", v(15), v(15), v(16))
        k.I("v_add_u32", v(14), s(22), v(14))
        k.I("v_mul_lo_u32", v(14), v(14), s(23))
        k.I("v_lshl_add_u32", v(VX + n), v(15), 4, v(14))
    for n in range(7):
        k.I("v_add_u32", v(14), 256 * n, v(0))
        k.I("v_mul_u32_u24", v(15), 2428, v(14))
        k.I("v_lshrrev_b32", v(15), 16, v(15))
        k.I("v_mul_u32_u24", v(16), 27, v(15))
        k.I("v_sub_u32", v(14), v(14), v(16))
        k.I("v_mul_u32_u24", v(16), 57, v(14))
        k.I("v_lshrrev_b32", v(16), 9, v(16))
        k.I("v_mul_u32_u24", v(15), 3456, v(15))
        k.I("v_lshl_add_u32", v(15), v(14), 4, v(15))
        k.I("v_mul_u32_u24", v(16), 1152 - 144, v(16))
        k.I("v_add_u32", v(VW + n), v(15), v(16))
    k.I("s_lshl_b32", s(24), s(3), 10)
    k.I("s_mul_i32", s(25), s(21), 144)
    k.I("s_mov_b32", s(26), 0)

    tok = {}
    xtok = {}
    nlab = [0]

    def dma_stage(st):
        slot = st % NSLOT
        base = slot * STG
        nlab[0] += 1
        lab = f"K1_C{nlab[0]}"
        k.I("s_cmp_ge_u32", s(3), 2)
        k.I("s_cbranch_scc1", lab + "a")
        k.I("s_add_u32", "m0", s(24), base + 8192)
        k.I("buffer_load_dwordx4", v(VX + 2), s(8, 4), s(26), mods="offen lds")
        k.vmq.pop()
        k.label(lab + "a")
        k.I("s_cmp_ge_u32", s(3), 3)
        k.I("s_cbranch_scc1", lab + "b")
        k.I("s_add_u32", "m0", s(24), base + XB + 6 * 4096)
        k.I("buffer_load_dwordx4", v(VW + 6), s(12, 4), s(25), mods="offen lds")
        k.vmq.pop()
        k.label(lab + "b")
        for n in range(2):
            k.I("s_add_u32", "m0", s(24), base + n * 4096)
            k.I("buffer_load_dwordx4", v(VX + n), s(8, 4), s(26), mods="offen lds")
        for n in range(6):
            k.I("s_add_u32", "m0", s(24), base + XB + n * 4096)
            tok[st] = k.I("buffer_load_dwordx4", v(VW + n), s(12, 4), s(25), mods="offen lds")
        k.I("s_add_u32", s(25), s(25), 64 * 3456)
        k.I("s_add_u32", s(26), s(26), 128)

    for st in range(NSLOT):
        dma_stage(st)

    k.I("v_and_b32", v(14), 15, v(2))
    k.I("v_lshrrev_b32", v(15), 1, v(14))
    k.I("v_lshrrev_b32", v(16), 4, v(2))
    k.I("v_xor_b32", v(15), v(15), v(16))
    k.I("v_lshlrev_b32", v(14), 7, v(14))
    AX = 20
    k.I("v_lshl_add_u32", v(AX), v(15), 4, v(14))
    k.I("v_xor_b32", v(AX + 1), 64, v(AX))
    for sl in range(1, 3):
        k.I("v_add_u32", v(AX + 2 * sl), sl * STG, v(AX))
        k.I("v_add_u32", v(AX + 2 * sl + 1), sl * STG, v(AX + 1))
    AW = 26
    k.I("v_lshrrev_b32", v(14), 4, v(2))
    k.I("v_lshlrev_b32", v(14), 3, v(14))
    k.I("v_bfe_u32", v(15), v(2), 2, 2)
    k.I("v_add_u32", v(14), v(14), v(15))
    k.I("v_mul_u32_u24", v(14), 432, v(14))
    k.I("v_and_b32", v(15), 3, v(2))
    k.I("v_lshl_add_u32", v(14), v(15), 3, v(14))
    k.I("v_lshl_add_u32", v(14), v(1), 5, v(14))
    k.I("v_add_u32", v(AW), XB, v(14))
    for sl in range(1, 3):
        k.I("v_add_u32", v(AW + sl), sl * STG, v(AW))
    k.I("v_and_b32", v(14), 15, v(2))
    k.I("v_cmp_eq_u32", s(30, 2), 0, v(14))
    k.I("v_mov_b32", v(29), "0x3f803f80")
    for i in range(4):
        k.I("v_mov_b32", v(30 + i), 0)

    ACC = 64
    XF = 144
    WF = 184

    def reads(kbg):
        st, ks = divmod(kbg, 2)
        sl = st % NSLOT
        p = kbg % 2
        for T in range(5):
            xtok[kbg] = k.I("ds_read_b128", v(XF + 20 * p + 4 * T, 4), v(AX + 2 * sl + ks), mods=f"offset:{T * 2048}")
        for i in range(4):
            for h in range(2):
                k.I("ds_read_b64_tr_b16", v(WF + 16 * p + 4 * i + 2 * h, 2), v(AW + sl),
                    mods=f"offset:{(ks * 32 + h * 4) * 432 + i * 128}")

    def sync(st):
        k.wait_vm(tok[st])
        k.I("s_barrier")

    sync(0)
    ST.stamp()
    reads(0)
    for kbg in range(18):
        p = kbg % 2
        nxt = kbg + 1
        if nxt < 18:
            if nxt % 2 == 0:
                k.wait(lg=0)
                sync(nxt // 2)
                if nxt // 2 + 2 < 9:
                    dma_stage(nxt // 2 + 2)
            reads(nxt)
        xf = XF + 20 * p
        k.wait_ds(xtok[kbg])
        for T in range(4):
            lab = f"K1_S{kbg}_{T}"
            k.I("s_cmp_lg_u32", s(3), T)
            k.I("s_cbranch_scc1", lab)
            for j in range(4):
                k.I("v_dot2c_f32_bf16", v(30), v(xf + 4 * T + j), v(29))
                k.I("v_dot2c_f32_bf16", v(31), v(xf + 4 * T + j), v(xf + 4 * T + j))
            if T == 3:
                for j in range(4):
                    k.I("v_dot2c_f32_bf16", v(32), v(xf + 16 + j), v(29))
                    k.I("v_dot2c_f32_bf16", v(33), v(xf + 16 + j), v(xf + 16 + j))
            k.label(lab)
        for j in range(4):
            k.I("v_cndmask_b32", v(xf + j), v(xf + j), v(29), s(30, 2))
        for i in range(4):
            for T in range(5):
                ac = v(ACC + 4 * (5 * i + T), 4)
                k.I(MF, ac, v(WF + 16 * p + 4 * i, 4), v(xf + 4 * T, 4), ac if kbg else 0)
    ST.stamp()
    for i in range(4):
        k.I("v_mov_b32", v(34 + i), v(30 + i))
    for i in range(4):
        k.I("v_permlane32_swap_b32", v(30 + i), v(34 + i))
    for i in range(4):
        k.I("v_add_f32", v(30 + i), v(30 + i), v(34 + i))
    for i in range(4):
        k.I("v_mov_b32", v(34 + i), v(30 + i))
    for i in range(4):
        k.I("v_permlane16_swap_b32", v(30 + i), v(34 + i))
    for i in range(4):
        k.I("v_add_f32", v(30 + i), v(30 + i), v(34 + i))
    for b in (30, 32):
        k.I("v_mul_f32", v(b), hex(f32bits(1.0 / 576)), v(b))
        k.I("v_mul_f32", v(b + 1), hex(f32bits(1.0 / 576)), v(b + 1))
        k.I("v_fma_f32", v(b + 1), f"-{v(b)}", v(b), v(b + 1))
        k.I("v_max_f32", v(b + 1), 0, v(b + 1))
        k.I("v_add_f32", v(b + 1), hex(f32bits(1e-5)), v(b + 1))
        k.I("v_rsq_f32", v(b + 1), v(b + 1))
        k.I("v_mul_f32", v(b), v(b), v(b + 1))
        k.I("v_sub_f32", v(b), 0, v(b))
    k.wait(lg=0)
    k.I("s_barrier")
    k.I("v_and_b32", v(14), 15, v(2))
    k.I("v_lshlrev_b32", v(15), 3, v(14))
    k.I("v_lshl_add_u32", v(16), v(1), 7, v(15))
    k.I("ds_write_b64", v(16), v(30, 2), mods=f"offset:{L_ST}")
    k.I("s_cmp_lg_u32", s(3), 3)
    k.I("s_cbranch_scc1", "K1_ST4")
    k.I("ds_write_b64", v(15), v(32, 2), mods=f"offset:{L_ST + 512}")
    k.label("K1_ST4")
    k.wait(lg=0)
    k.I("s_barrier")
    for T in range(5):
        k.I("ds_read_b64", v(34 + 2 * T, 2), v(15), mods=f"offset:{L_ST + 128 * T}")
    k.I("v_lshrrev_b32", v(16), 4, v(2))
    k.I("v_lshl_add_u32", v(16), v(1), 2, v(16))
    k.I("v_mul_u32_u24", v(17), 292, v(14))
    k.I("v_lshl_add_u32", v(17), v(16), 3, v(17))
    k.I("v_mul_u32_u24", v(18), 296, v(14))
    k.I("v_lshl_add_u32", v(18), v(16), 4, v(18))
    k.I("v_add_u32", v(18), L_V - 36 * 16, v(18))

    def norm(i):
        for r in range(4):
            k.I("v_mov_b32_dpp", v(44 + r), v(ACC + 20 * i + r), mods="row_newbcast:0 row_mask:0xf bank_mask:0xf")
        for T in range(5):
            for r in range(4):
                x = ACC + 4 * (5 * i + T) + r
                k.I("v_mul_f32", v(x), v(35 + 2 * T), v(x))
                k.I("v_fmac_f32", v(x), v(34 + 2 * T), v(44 + r))

    def put_qk(i):
        for T in range(5):
            x = ACC + 4 * (5 * i + T)
            k.I("v_cvt_pk_bf16_f32", v(x), v(x), v(x + 1))
            k.I("v_cvt_pk_bf16_f32", v(x + 1), v(x + 2), v(x + 3))
            k.I("v_add_u32", v(19), T * 16 * 292 + i * 128, v(17))
            k.I("ds_write2_b32", v(19), v(x), v(x + 1), mods="offset0:0 offset1:1")

    def put_v(i):
        for T in range(5):
            x = ACC + 4 * (5 * i + T)
            k.I("v_add_u32", v(19), T * 16 * 296 + i * 256, v(18))
            k.I("ds_write2_b64", v(19), v(x, 2), v(x + 2, 2), mods="offset0:0 offset1:1")

    for i in range(3):
        norm(i)
    put_qk(0)
    put_qk(1)
    k.I("s_cmp_lg_u32", s(3), 0)
    k.I("s_cbranch_scc1", "K1_P2V")
    put_qk(2)
    k.I("s_branch", "K1_P2E")
    k.label("K1_P2V")
    put_v(2)
    k.label("K1_P2E")
    k.I("s_cmp_ge_u32", s(3), 2)
    k.I("s_cbranch_scc1", "K1_P3E")
    norm(3)
    k.I("v_cmp_gt_u32", "vcc", 6, v(16))
    k.I("s_and_saveexec_b64", s(32, 2), "vcc")
    put_v(3)
    k.I("s_mov_b64", "exec", s(32, 2))
    k.label("K1_P3E")
    k.dsq.append((-2, set()))
    k.wait(lg=0)
    k.I("s_barrier")
    ST.stamp()
    k.I("v_mul_u32_u24", v(14), 292, v(2))
    k.I("v_mul_u32_u24", v(15), 36, v(1))
    k.I("v_add_u32", v(14), v(14), v(15))
    k.I("v_mul_u32_u24", v(16), 296, v(2))
    k.I("v_lshl_add_u32", v(16), v(15), 1, v(16))
    Q = 20
    KK = 64
    VV = 144
    LG = 32
    O = 40

    def rd9(dst, addr):
        for i in range(4):
            k.I("ds_read2_b32", v(dst + 2 * i, 2), v(addr), mods=f"offset0:{2 * i} offset1:{2 * i + 1}")
        k.I("ds_read_b32", v(dst + 8), v(addr), mods="offset:32")

    k.I("v_add_u32", v(17), 16 * 292, v(14))
    rd9(Q, 17)
    for w in range(8):
        k.I("v_add_u32", v(18 + w % 2), (16 - 2 * w) * 292 + 144, v(14))
        rd9(KK + 10 * w, 18 + w % 2)

    def rdv(w):
        d = VV + 18 * (w % 4)
        k.I("v_add_u32", v(58 + w % 2), L_V + (16 - 2 * w) * 296, v(16))
        for i in range(4):
            k.I("ds_read2_b64", v(d + 4 * i, 4), v(58 + w % 2), mods=f"offset0:{2 * i} offset1:{2 * i + 1}")
        k.I("ds_read_b64", v(d + 16, 2), v(58 + w % 2), mods="offset:64")

    for w in range(8):
        k.I("v_mov_b32", v(LG + w), 0)
    for j in range(9):
        for w in range(8):
            k.I("v_dot2c_f32_bf16", v(LG + w), v(Q + j), v(KK + 10 * w + j))
    for w in range(3):
        rdv(w)
    k.I("s_lshl_b32", s(22), s(20), 6)
    k.I("v_add_u32", v(17), s(22), v(2))
    k.I("v_mov_b32", v(19), hex(f32bits(-1e30)))
    for w in range(1, 8):
        k.I("v_cmp_le_u32", "vcc", 2 * w, v(17))
        k.I("v_cndmask_b32", v(LG + w), v(19), v(LG + w), "vcc")
    k.I("v_max3_f32", v(18), v(LG), v(LG + 1), v(LG + 2))
    k.I("v_max3_f32", v(18), v(18), v(LG + 3), v(LG + 4))
    k.I("v_max3_f32", v(18), v(18), v(LG + 5), v(LG + 6))
    k.I("v_max_f32", v(18), v(18), v(LG + 7))
    c = LOG2E * 18 ** -0.5
    k.I("s_mov_b32", s(23), hex(f32bits(c)))
    for w in range(8):
        k.I("v_sub_f32", v(LG + w), v(LG + w), v(18))
    for w in range(8):
        k.I("v_mul_f32", v(LG + w), s(23), v(LG + w))
    for w in range(8):
        k.I("v_exp_f32", v(LG + w), v(LG + w))
    k.I("v_add_f32", v(18), v(LG), v(LG + 1))
    k.I("v_add_f32", v(19), v(LG + 2), v(LG + 3))
    k.I("v_add_f32", v(17), v(LG + 4), v(LG + 5))
    k.I("v_add_f32", v(18), v(18), v(19))
    k.I("v_add_f32", v(19), v(LG + 6), v(LG + 7))
    k.I("v_add_f32", v(17), v(17), v(19))
    k.I("v_add_f32", v(18), v(18), v(17))
    k.I("v_rcp_f32", v(18), v(18))
    for w in range(8):
        if w + 3 < 8:
            rdv(w + 3)
        d = VV + 18 * (w % 4)
        for e in range(18):
            if w == 0:
                k.I("v_mul_f32", v(O + e), v(LG), v(d + e))
            else:
                k.I("v_fmac_f32", v(O + e), v(LG + w), v(d + e))
    for e in range(18):
        k.I("v_mul_f32", v(O + e), v(18), v(O + e))
    for i in range(9):
        k.I("v_cvt_pk_bf16_f32", v(O + i), v(O + 2 * i), v(O + 2 * i + 1))
    k.I("v_mul_u32_u24", v(14), 148, v(2))
    k.I("v_add_u32", v(14), v(14), v(15))
    k.I("v_add_u32", v(14), L_O, v(14))
    for i in range(4):
        k.I("ds_write2_b32", v(14), v(O + 2 * i), v(O + 2 * i + 1), mods=f"offset0:{2 * i} offset1:{2 * i + 1}")
    k.I("ds_write_b32", v(14), v(O + 8), mods="offset:32")
    k.wait(lg=0)
    k.I("s_barrier")
    k.I("s_mul_i32", s(22), s(20), 4 * 72 * 256)
    k.I("s_mul_i32", s(23), s(21), 9 * 256)
    k.I("s_add_u32", s(22), s(22), s(23))
    k.I("s_add_u32", s(22), s(22), hex(WS_O))
    k.I("v_lshrrev_b32", v(16), 4, v(2))
    k.I("v_mul_u32_u24", v(16), 72 * 256, v(16))
    k.I("v_and_b32", v(17), 15, v(2))
    k.I("v_lshl_add_u32", v(16), v(17), 4, v(16))
    k.I("v_lshl_add_u32", v(16), v(1), 8, v(16))
    k.I("v_mul_u32_u24", v(14), 148, v(2))
    k.I("v_lshl_add_u32", v(14), v(1), 4, v(14))
    k.I("v_add_u32", v(14), L_O, v(14))
    for r in range(3):
        if r == 2:
            k.I("s_cmp_lg_u32", s(3), 0)
            k.I("s_cbranch_scc1", "K1_DONE")
        k.I("ds_read2_b32", v(20 + 4 * r, 2), v(14), mods=f"offset0:{16 * r} offset1:{16 * r + 1}")
        k.I("ds_read2_b32", v(22 + 4 * r, 2), v(14), mods=f"offset0:{16 * r + 2} offset1:{16 * r + 3}")
        k.I("buffer_store_dwordx4", v(20 + 4 * r, 4), v(16), s(16, 4), s(22), mods=f"offen offset:{1024 * r}")
    k.label("K1_DONE")
    ST.stamp()
    ST.dump(16, 100, 3)
    k.label("K1_END")
    k.I("s_endpgm")
    return k, "grid=(256,1,1) block=(256,1,1) lds=%d" % LDS_TOTAL
```

```python
from common import *

PITCH = 304
WSZ = 64 * PITCH
LDS_RED = 4 * WSZ
LDS_ST = LDS_RED
LDS_TOTAL = LDS_RED + 576 * 8


def build_frag(mode, depth=11, dbg=""):
    name = "k2_kernel" if mode == "B" else "k4_kernel"
    U = name[:2].upper()
    k = Kern(name)
    nks = 36 if mode == "B" else 288
    noct = 2 * nks
    per = nks // 4
    depth = min(depth, per)
    regA = WS_WO if mode == "B" else WS_WD
    regB = WS_O if mode == "B" else WS_HH

    k.I("s_cmp_ge_u32", s(2), 256)
    k.I("s_cbranch_scc1", f"{U}_END")
    ST = Stamps(k, 60, "stamp" in dbg)
    ST.stamp()
    k.I("s_load_dwordx2", s(4, 2), s(0, 2), KA_WS)
    k.I("s_load_dwordx2", s(6, 2), s(0, 2), KA_X if mode == "B" else KA_OUT)
    k.I("v_lshrrev_b32", v(1), 6, v(0))
    k.I("v_and_b32", v(2), 63, v(0))
    k.I("s_and_b32", s(20), s(2), 7)
    k.I("s_lshr_b32", s(21), s(2), 3)
    k.I("s_and_b32", s(22), s(21), 3)
    k.I("s_lshl_b32", s(20), s(20), 2)
    k.I("s_add_u32", s(20), s(20), s(22))
    k.I("s_lshr_b32", s(21), s(21), 2)
    if "same" in dbg:
        k.I("s_mov_b32", s(20), 0)
        k.I("s_mov_b32", s(21), 0)
    if "half" in dbg:
        k.I("s_and_b32", s(20), s(20), 1)
        k.I("s_and_b32", s(21), s(21), 1)
    if "map2" in dbg:
        k.I("s_and_b32", s(20), s(2), 3)
        k.I("s_lshl_b32", s(20), s(20), 3)
        k.I("s_bfe_u32", s(22), s(2), hex((3 << 16) | 3))
        k.I("s_add_u32", s(20), s(20), s(22))
        k.I("s_bfe_u32", s(21), s(2), hex((1 << 16) | 2))
        k.I("s_lshl_b32", s(21), s(21), 2)
        k.I("s_lshr_b32", s(22), s(2), 6)
        k.I("s_add_u32", s(21), s(21), s(22))
    k.wait(lg=0)
    srd(k, 8, 4, WS_SIZE)
    srd(k, 12, 6, S * D * 2)
    k.I("s_mul_i32", s(23), s(20), 4 * noct * 256)
    k.I("s_add_u32", s(23), s(23), hex(regB))
    k.I("v_bfe_u32", v(7), v(0), 4, 1)
    k.I("v_mul_u32_u24", v(3), noct * 256, v(7))
    k.I("v_lshrrev_b32", v(7), 5, v(0))
    k.I("v_lshl_add_u32", v(3), v(7), 8, v(3))
    k.I("v_and_b32", v(7), 15, v(0))
    k.I("v_lshl_add_u32", v(3), v(7), 4, v(3))
    k.I("v_add_u32", v(3), s(23), v(3))
    k.I("v_add_u32", v(4), 2 * noct * 256, v(3))
    k.I("s_mul_i32", s(23), s(21), noct * 1152)
    k.I("s_add_u32", s(23), s(23), hex(regA))
    k.I("v_lshrrev_b32", v(7), 5, v(0))
    k.I("v_mul_u32_u24", v(5), 1152, v(7))
    k.I("v_add_u32", v(5), s(23), v(5))
    k.I("v_and_b32", v(7), 7, v(0))
    k.I("v_lshl_add_u32", v(6), v(7), 4, v(5))
    k.I("v_add_u32", v(6), 1024, v(6))
    k.I("v_and_b32", v(7), 31, v(0))
    k.I("v_lshl_add_u32", v(5), v(7), 4, v(5))

    for r in range(3):
        k.I("v_add_u32", v(14), 256 * r, v(0))
        k.I("v_mul_u32_u24", v(8 + r), 7282, v(14))
        k.I("v_lshrrev_b32", v(8 + r), 16, v(8 + r))
        k.I("v_mul_u32_u24", v(15), 9, v(8 + r))
        k.I("v_sub_u32", v(11 + r), v(14), v(15))
    k.I("s_mul_i32", s(24), s(20), 64 * 1152)
    k.I("s_mul_i32", s(25), s(21), 144)
    k.I("s_add_u32", s(24), s(24), s(25))
    k.I("s_mul_i32", s(25), s(20), 4 * 72 * 256)
    k.I("s_mul_i32", s(26), s(21), 9 * 256)
    k.I("s_add_u32", s(25), s(25), s(26))
    k.I("s_add_u32", s(25), s(25), hex(WS_H))
    k.I("s_lshl_b32", s(26), s(20), 12)
    k.I("s_add_u32", s(26), s(26), hex(WS_ST))

    def rowmajor_off(dst, r):
        k.I("v_mul_u32_u24", v(dst), 1152, v(8 + r))
        k.I("v_lshl_add_u32", v(dst), v(11 + r), 4, v(dst))

    def act_off(dst, tmp, r):
        k.I("v_lshrrev_b32", v(tmp), 4, v(8 + r))
        k.I("v_mul_u32_u24", v(dst), 72 * 256, v(tmp))
        k.I("v_lshl_add_u32", v(dst), v(11 + r), 8, v(dst))
        k.I("v_and_b32", v(tmp), 15, v(8 + r))
        k.I("v_lshl_add_u32", v(dst), v(tmp), 4, v(dst))

    k.I("v_min_u32", v(10), 63, v(10))
    for r in range(3):
        if mode == "B":
            rowmajor_off(14, r)
            k.I("buffer_load_dwordx4", a(96 + 4 * r, 4), v(14), s(12, 4), s(24), mods="offen")
        else:
            act_off(14, 15, r)
            k.I("buffer_load_dwordx4", a(96 + 4 * r, 4), v(14), s(8, 4), s(25), mods="offen")
            k.I("v_lshlrev_b32", v(15), 6, v(8 + r))
            for i in range(4):
                k.I("buffer_load_dwordx4", a(108 + 16 * r + 4 * i, 4), v(15), s(8, 4), s(26), mods=f"offen offset:{16 * i}")

    VB = 16

    nbuf = depth + 1 if per > depth else depth

    def bufs(i):
        b = VB + 20 * (i % nbuf)
        return [b, b + 4, b + 8], [b + 12, b + 16]

    def issue_list(i):
        A, B = bufs(i)
        L = []
        L.append(lambda: (k.I("s_mov_b32", s(30), i * 9216), k.I("s_mov_b32", s(31), i * 2048),
                          k.I("buffer_load_dwordx4", v(B[0], 4), v(3), s(8, 4), s(31), mods="offen")))
        L.append(lambda: k.I("buffer_load_dwordx4", v(A[0], 4), v(5), s(8, 4), s(30), mods="offen"))
        L.append(lambda: k.I("buffer_load_dwordx4", v(A[1], 4), v(5), s(8, 4), s(30), mods="offen offset:512"))
        L.append(lambda: k.I("buffer_load_dwordx4", v(B[1], 4), v(4), s(8, 4), s(31), mods="offen"))

        def last():
            if "no5" in dbg:
                return
            if "mask" in dbg:
                k.I("s_mov_b64", "exec", s(34, 2))
            k.I("buffer_load_dwordx4", v(A[2], 4), v(6), s(8, 4), s(30), mods="offen")
            if "mask" in dbg:
                k.I("s_mov_b64", "exec", -1)
        L.append(last)
        return L

    k.I("s_mov_b32", s(34), "0xff")
    k.I("s_mov_b32", s(35), "0xff")
    for i in range(depth):
        for f in issue_list(i):
            f()
    ST.stamp()
    for i in range(per):
        if i == 1:
            ST.stamp()
        A, B = bufs(i)
        L = issue_list(i + depth) if i + depth < per else []
        n = 0
        for tt in range(2):
            for R_ in range(3):
                acc = a(16 * (3 * tt + R_), 16)
                if "nomfma" in dbg and i > 0:
                    k.I("v_add_u32", v(15), v(A[R_]), v(B[tt]))
                else:
                    k.I("v_mfma_f32_32x32x16_bf16", acc, v(A[R_], 4), v(B[tt], 4), acc if i else 0)
                if n < len(L):
                    L[n]()
                n += 1

    ST.stamp()
    k.I("v_and_b32", v(16), 31, v(0))
    k.I("v_mul_u32_u24", v(16), PITCH, v(16))
    k.I("v_mul_u32_u24", v(17), WSZ, v(1))
    k.I("v_add_u32", v(16), v(16), v(17))
    k.I("v_bfe_u32", v(17), v(0), 5, 1)
    k.I("v_lshl_add_u32", v(16), v(17), 4, v(16))
    for tt in range(2):
        for R_ in range(3):
            for i in range(4 if R_ < 2 else 1):
                k.I("ds_write_b128", v(16), a(16 * (3 * tt + R_) + 4 * i, 4),
                    mods=f"offset:{32 * tt * PITCH + (32 * R_ + 8 * i) * 4}")
    k.wait(lg=0)
    k.I("s_barrier")
    k.I("v_readfirstlane_b32", s(3), v(1))
    for r in range(3):
        if r == 2:
            k.I("s_cmp_lg_u32", s(3), 0)
            k.I("s_cbranch_scc1", f"{U}_SKIP")
        k.I("v_mul_u32_u24", v(17), PITCH, v(8 + r))
        k.I("v_lshl_add_u32", v(17), v(11 + r), 5, v(17))
        b = 20
        for w in range(4):
            for hlf in range(2):
                k.I("ds_read_b128", v(b + 8 * w + 4 * hlf, 4), v(17), mods=f"offset:{w * WSZ + 16 * hlf}")
        for i in range(4):
            k.I("v_accvgpr_read_b32", v(60 + i), a(96 + 4 * r + i))
        if mode == "D":
            for i in range(16):
                k.I("v_accvgpr_read_b32", v(64 + i), a(108 + 16 * r + i))
            for st in (8, 4, 2):
                for i in range(st):
                    k.I("v_add_f32", v(64 + i), v(64 + i), v(64 + st + i))
            k.I("v_mul_f32", v(64), hex(f32bits(1.0 / 576)), v(64))
            k.I("v_mul_f32", v(65), hex(f32bits(1.0 / 576)), v(65))
            k.I("v_fma_f32", v(65), f"-{v(64)}", v(64), v(65))
            k.I("v_max_f32", v(65), 0, v(65))
            k.I("v_add_f32", v(65), hex(f32bits(1e-5)), v(65))
            k.I("v_rsq_f32", v(65), v(65))
        for i in range(8):
            k.I("v_add_f32", v(b + i), v(b + i), v(b + 8 + i))
            k.I("v_add_f32", v(b + 16 + i), v(b + 16 + i), v(b + 24 + i))
        for i in range(8):
            k.I("v_add_f32", v(b + i), v(b + i), v(b + 16 + i))
        for i in range(4):
            k.I("v_lshlrev_b32", v(b + 8 + 2 * i), 16, v(60 + i))
            k.I("v_and_b32", v(b + 9 + 2 * i), "0xffff0000", v(60 + i))
        for i in range(8):
            if mode == "D":
                k.I("v_fma_f32", v(b + i), v(b + i), v(65), v(b + 8 + i))
            else:
                k.I("v_add_f32", v(b + i), v(b + i), v(b + 8 + i))
        for i in range(4):
            k.I("v_cvt_pk_bf16_f32", v(b + 16 + i), v(b + 2 * i), v(b + 2 * i + 1))
        if mode == "D":
            rowmajor_off(18, r)
            k.I("buffer_store_dwordx4", v(b + 16, 4), v(18), s(12, 4), s(24), mods="offen")
        else:
            act_off(18, 19, r)
            k.I("buffer_store_dwordx4", v(b + 16, 4), v(18), s(8, 4), s(25), mods="offen")
            k.I("v_mov_b32", v(56), 0)
            k.I("v_mov_b32", v(57), 0)
            k.I("v_mov_b32", v(58), "0x3f803f80")
            for i in range(4):
                k.I("v_dot2c_f32_bf16", v(56), v(b + 16 + i), v(58))
                k.I("v_dot2c_f32_bf16", v(57), v(b + 16 + i), v(b + 16 + i))
            k.I("v_lshlrev_b32", v(59), 3, v(0))
            k.I("v_add_u32", v(59), LDS_ST, v(59))
            k.I("ds_write_b64", v(59), v(56, 2), mods=f"offset:{r * 2048}")
    k.label(f"{U}_SKIP")
    ST.stamp()
    ST.dump(8, 100, 0 if mode == "B" else 1)
    if mode == "B":
        k.dsq.append((-2, set()))
        k.wait(lg=0)
        k.I("s_barrier")
        k.I("s_cmp_lg_u32", s(3), 0)
        k.I("s_cbranch_scc1", f"{U}_END")
        k.I("v_mul_u32_u24", v(17), 72, v(2))
        k.I("v_add_u32", v(17), LDS_ST, v(17))
        for j in range(9):
            k.I("ds_read_b64", v(20 + 2 * j, 2), v(17), mods=f"offset:{8 * j}")
        for j in range(1, 9):
            k.I("v_add_f32", v(20), v(20), v(20 + 2 * j))
            k.I("v_add_f32", v(21), v(21), v(21 + 2 * j))
        k.I("v_lshlrev_b32", v(17), 6, v(2))
        k.I("s_lshl_b32", s(27), s(21), 3)
        k.I("s_add_u32", s(26), s(26), s(27))
        k.I("buffer_store_dwordx2", v(20, 2), v(17), s(8, 4), s(26), mods="offen")
    k.label(f"{U}_END")
    k.I("s_endpgm")
    return k, "grid=(256,1,1) block=(256,1,1) lds=%d" % LDS_TOTAL


import struct


def f32bits(x):
    return struct.unpack("<I", struct.pack("<f", x))[0]
```

```python
from common import *
from k_frag import f32bits

RING = 6
STAGE = 24576
LDS_CS = RING * STAGE
LDS_TOTAL = LDS_CS + 2304
MF = "v_mfma_f32_16x16x32_bf16"
LOG2E = 1.4426950408889634


def build_k3(dbg=""):
    k = Kern("k3_kernel")
    ST = Stamps(k, 60, "stamp" in dbg)
    k.I("s_cmp_ge_u32", s(2), 256)
    k.I("s_cbranch_scc1", "K3_END")
    ST.stamp()
    k.I("s_load_dwordx2", s(4, 2), s(0, 2), KA_WS)
    k.I("v_lshrrev_b32", v(1), 6, v(0))
    k.I("v_and_b32", v(2), 63, v(0))
    k.I("v_readfirstlane_b32", s(3), v(1))
    k.I("s_and_b32", s(20), s(2), 7)
    k.I("s_lshl_b32", s(20), s(20), 1)
    k.I("s_bfe_u32", s(21), s(2), hex((1 << 16) | 3))
    k.I("s_add_u32", s(20), s(20), s(21))
    k.I("s_lshr_b32", s(21), s(2), 4)
    k.wait(lg=0)
    srd(k, 8, 4, WS_SIZE)
    k.I("v_lshlrev_b32", v(3), 4, v(2))
    k.I("v_add_u32", v(4), 2 * STAGE, v(3))
    k.I("v_add_u32", v(5), 4 * STAGE, v(3))
    k.I("s_lshl_b32", s(22), s(21), 3)
    k.I("s_lshl_b32", s(23), s(3), 1)
    k.I("s_add_u32", s(22), s(22), s(23))
    k.I("v_and_b32", v(6), 15, v(2))
    k.I("v_lshlrev_b32", v(6), 6, v(6))
    k.I("s_lshl_b32", s(23), s(22), 10)
    k.I("s_add_u32", s(23), s(23), hex(WS_ST))
    for tt in range(2):
        for i in range(4):
            k.I("buffer_load_dwordx4", v(32 + 16 * tt + 4 * i, 4), v(6), s(8, 4), s(23), mods=f"offen offset:{tt * 1024 + 16 * i}")
    k.I("v_min_u32", v(7), 143, v(0))
    k.I("v_lshlrev_b32", v(7), 4, v(7))
    k.I("s_mul_i32", s(23), s(20), 2304)
    k.I("s_add_u32", s(23), s(23), hex(WS_CS))
    for p in range(9):
        k.I("buffer_load_dwordx4", v(64 + 4 * p, 4), v(7), s(8, 4), s(23), mods="offen")
        if p < 8:
            k.I("s_add_u32", s(23), s(23), 36864)
    k.I("s_mul_i32", s(24), s(20), 9 * 18 * 4096)
    k.I("s_mul_i32", s(25), s(3), 6144)
    k.I("s_add_u32", s(24), s(24), s(25))
    k.I("s_add_u32", s(24), s(24), hex(WS_WGU))
    k.I("s_mul_i32", s(26), s(22), 18 * 1024)
    k.I("s_add_u32", s(26), s(26), hex(WS_H))
    k.I("s_add_u32", s(27), s(26), 18 * 1024)
    k.I("s_mul_i32", s(28), s(22), 144 * 1024)
    k.I("s_mul_i32", s(29), s(20), 9 * 1024)
    k.I("s_add_u32", s(28), s(28), s(29))
    k.I("s_add_u32", s(28), s(28), hex(WS_HH))
    k.I("s_add_u32", s(29), s(28), 144 * 1024)

    dma_tok = {}
    wtok = {}

    def dma_items(st):
        slot = st % RING
        L = []

        def one(i):
            def f():
                if i == 0:
                    k.I("s_add_u32", "m0", s(25), slot * STAGE)
                if i == 4:
                    k.I("s_add_u32", "m0", s(25), slot * STAGE + 4096)
                    k.I("s_add_u32", s(30), s(24), 4096)
                t = k.I("buffer_load_dwordx4", v(3), s(8, 4), s(24) if i < 4 else s(30), mods=f"offen offset:{(i % 4) * 1024} lds")
                if i == 5:
                    dma_tok[st] = t
                    k.I("s_add_u32", s(24), s(24), STAGE)
            return f
        return [one(i) for i in range(6)]

    def xreg(tt, kb):
        return a(4 * (2 * kb + tt), 4)

    def x_loads(kb0, kb1):
        for kb in range(kb0, kb1):
            for tt in range(2):
                if kb % 4 == 0 and kb:
                    k.I("s_add_u32", s(26 + tt), s(26 + tt), 4096)
                k.I("buffer_load_dwordx4", xreg(tt, kb), v(3), s(8, 4), s(26 + tt), mods=f"offen offset:{(kb % 4) * 1024}")

    for f in dma_items(0):
        f()
    x_loads(0, 6)
    for f in dma_items(1):
        f()
    x_loads(6, 12)
    for tt in range(2):
        b = 32 + 16 * tt
        for stp in (8, 4, 2):
            for i in range(stp):
                k.I("v_add_f32", v(b + i), v(b + i), v(b + stp + i))
        k.I("v_mul_f32", v(8 + tt), hex(f32bits(-1.0 / 576)), v(b))
        k.I("v_mul_f32", v(b + 1), hex(f32bits(1.0 / 576)), v(b + 1))
        k.I("v_fma_f32", v(b + 1), f"-{v(8 + tt)}", v(8 + tt), v(b + 1))
        k.I("v_max_f32", v(b + 1), 0, v(b + 1))
        k.I("v_add_f32", v(b + 1), hex(f32bits(1e-5)), v(b + 1))
        k.I("v_rsq_f32", v(b + 1), v(b + 1))
        k.I("v_mul_f32", v(10 + tt), hex(f32bits(-LOG2E)), v(b + 1))
    for p in range(1, 9):
        for i in range(4):
            k.I("v_add_f32", v(64 + i), v(64 + i), v(64 + 4 * p + i))
    k.I("v_add_u32", v(7), LDS_CS, v(7))
    k.I("ds_write_b128", v(7), v(64, 4))
    k.I("v_lshrrev_b32", v(6), 4, v(2))
    k.I("v_lshlrev_b32", v(6), 4, v(6))
    k.I("v_add_u32", v(6), LDS_CS, v(6))
    for f in dma_items(2):
        f()
    x_loads(12, 18)
    for f in dma_items(3):
        f()

    ACC = [32, 64]
    WB = 96

    def acc(c, tile, tt):
        return ACC[c % 2] + 4 * (2 * tile + tt)

    def wreg(u, tile):
        return WB + 16 * (u % 3) + 4 * tile

    def w_read(u, tile):
        st, r = divmod(u, 6)
        slot = st % RING
        if "nolds" in dbg and u > 2:
            wtok[(u, tile)] = None
            return
        wtok[(u, tile)] = k.I("ds_read_b128", v(wreg(u, tile), 4), v(3 + slot // 2),
                              mods=f"offset:{(slot % 2) * STAGE + r * 4096 + tile * 1024}")

    def init_items(c):
        L = []
        for tile in range(4):
            L.append(lambda tile=tile: k.I("ds_read_b128", v(acc(c, tile, 0), 4), v(6), mods=f"offset:{c * 256 + tile * 64}"))
        for tile in range(4):
            for r in range(4):
                L.append(lambda tile=tile, r=r: k.I("v_mul_f32", v(acc(c, tile, 1) + r), v(9), v(acc(c, tile, 0) + r)))
            for r in range(4):
                L.append(lambda tile=tile, r=r: k.I("v_mul_f32", v(acc(c, tile, 0) + r), v(8), v(acc(c, tile, 0) + r)))
        return L

    def epi_items(c):
        L = []
        for tt in range(2):
            g = [acc(c, e // 4, tt) + e % 4 for e in range(8)]
            u = [acc(c, 2 + e // 4, tt) + e % 4 for e in range(8)]
            for e in range(8):
                L.append(lambda e=e, g=g, tt=tt: k.I("v_mul_f32", v(g[e]), v(10 + tt), v(g[e])))
            for e in range(8):
                L.append(lambda e=e, g=g: k.I("v_exp_f32", v(g[e]), v(g[e])))
            for e in range(8):
                L.append(lambda e=e, g=g: k.I("v_add_f32", v(g[e]), 1.0, v(g[e])))
            for e in range(8):
                L.append(lambda e=e, g=g: k.I("v_rcp_f32", v(g[e]), v(g[e])))
            for e in range(8):
                L.append(lambda e=e, g=g, u=u: k.I("v_mul_f32", v(u[e]), v(g[e]), v(u[e])))
            for i in range(4):
                L.append(lambda i=i, u=u, tt=tt: k.I("v_cvt_pk_bf16_f32", v(16 + 4 * tt + i), v(u[2 * i]), v(u[2 * i + 1])))

            def st(tt=tt):
                if c % 4 == 0 and c:
                    k.I("s_add_u32", s(28 + tt), s(28 + tt), 4096)
                k.I("buffer_store_dwordx4", v(16 + 4 * tt, 4), v(3), s(8, 4), s(28 + tt), mods=f"offen offset:{(c % 4) * 1024}")
            L.append(st)
        return L

    def sync(st):
        k.wait_vm(dma_tok[st])
        k.I("s_barrier")

    k.wait(lg=0)
    sync(0)
    ST.stamp()
    for f in init_items(0):
        f()
    for u in range(2):
        for tile in range(4):
            w_read(u, tile)
    NU = 162
    side = []
    dmaq = dma_items(RING - 2)
    for u in range(NU):
        c, kb = divmod(u, 18)
        if kb == 0:
            side = []
            if c > 0 and "noepi" not in dbg:
                side += epi_items(c - 1)
            if c + 1 < 9 and "noinit" not in dbg:
                side += init_items(c + 1)
            nside = len(side)
            done = 0
        un = u + 2
        for m in range(8):
            tile, tt = divmod(m, 2)
            if m == 0 and "onewait" in dbg:
                k.wait_ds(wtok[(u, 3)])
            k.I(MF, v(acc(c, tile, tt), 4), v(wreg(u, tile), 4), xreg(tt, kb), v(acc(c, tile, tt), 4))
            nf = 0
            if un < NU and m % 2 == 0:
                if m == 0 and un % 6 == 0:
                    stn = un // 6
                    if "nodma" in dbg:
                        k.I("s_barrier")
                    else:
                        sync(stn)
                    if stn + RING - 2 < 27 and "nodma" not in dbg:
                        dmaq += dma_items(stn + RING - 2)
                w_read(un, m // 2)
                nf += 1
            elif dmaq:
                dmaq.pop(0)()
                nf += 1
            gi = kb * 8 + m
            target = 0 if gi < 3 else min(nside, (gi - 2) * nside // 130 + 1)
            while done < target and nf < 2:
                side[done]()
                done += 1
                nf += 1
        if kb == 17:
            while done < nside:
                side[done]()
                done += 1
    ST.stamp()
    for f in epi_items(8):
        f()
    ST.stamp()
    ST.dump(8, 24, 2)
    k.label("K3_END")
    k.I("s_endpgm")
    return k, "grid=(256,1,1) block=(256,1,1) lds=%d" % LDS_TOTAL
```

```python
from common import *

PREP_LDS_PER_WAVE = 9216


class PrepRegs:
    def __init__(self, sb, vb, srd_ws, srd_g=None, srd_u=None, srd_w=None, lane=None):
        self.sb, self.vb = sb, vb
        self.srd_ws, self.srd_g, self.srd_u, self.srd_w = srd_ws, srd_g, srd_u, srd_w
        self.lane = lane


def g_setup(k, P, sLB):
    vb, L = P.vb, P.lane
    k.I("v_lshrrev_b32", v(vb + 1), 3, v(L))
    k.I("v_mul_u32_u24", v(vb), 9216, v(vb + 1))
    k.I("v_and_b32", v(vb + 1), 7, v(L))
    k.I("v_lshl_add_u32", v(vb), v(vb + 1), 4, v(vb))
    t = vb + 2
    k.I("v_lshrrev_b32", v(t), 4, v(L))
    k.I("v_lshlrev_b32", v(vb + 1), 10, v(t))
    k.I("v_bfe_u32", v(t), v(L), 2, 2)
    k.I("v_lshl_add_u32", v(vb + 1), v(t), 7, v(vb + 1))
    k.I("v_and_b32", v(t), 3, v(L))
    k.I("v_lshl_add_u32", v(vb + 1), v(t), 4, v(vb + 1))
    k.I("v_add_u32", v(vb + 1), s(sLB), v(vb + 1))
    k.I("v_lshlrev_b32", v(vb + 2), 4, v(L))
    k.I("v_lshlrev_b32", v(vb + 3), 2, v(L))
    k.I("v_mov_b32", v(vb + 4), "0x3f803f80")
    for i in range(8):
        k.I("v_mov_b32", v(vb + 24 + i), 0)


def g_load(k, P, sLB, sG, sKB, half):
    sb, vb = P.sb, P.vb
    k.I("s_mul_i32", s(sb), s(sKB), 64 * 9216)
    k.I("s_lshl_b32", s(sb + 1), s(sG), 7)
    k.I("s_add_u32", s(sb), s(sb), s(sb + 1))
    if half:
        k.I("s_add_u32", s(sb), s(sb), 32 * 9216)
    tok = None
    for i in range(4):
        for m, sr in enumerate((P.srd_g, P.srd_u)):
            k.I("s_add_u32", "m0", s(sLB), m * 4096 + i * 1024)
            tok = k.I("buffer_load_dwordx4", v(vb), s(sr, 4), s(sb), mods="offen lds")
        if i < 3:
            k.I("s_add_u32", s(sb), s(sb), 8 * 9216)
    return tok


def g_process(k, P, sG, sKB, half, tok):
    sb, vb = P.sb, P.vb
    k.I("s_mul_i32", s(sb), s(sG), 2 * 18 * 4096)
    k.I("s_lshl_b32", s(sb + 1), s(sKB), 13)
    k.I("s_add_u32", s(sb), s(sb), s(sb + 1))
    k.I("s_add_u32", s(sb), s(sb), hex(WS_WGU + half * 4096))
    k.I("s_add_u32", s(sb + 1), s(sb), 18 * 4096)
    k.wait_vm(tok)
    d0 = vb + 8
    for cc in range(2):
        for tile in range(4):
            m, b = tile // 2, tile % 2
            d = d0 + 4 * tile
            for h in range(2):
                k.I("ds_read_b64_tr_b16", v(d + 2 * h, 2), v(vb + 1),
                    mods=f"offset:{m * 4096 + 4 * h * 128 + cc * 64 + b * 8}")
        for tile in range(4):
            d = d0 + 4 * tile
            k.I("buffer_store_dwordx4", v(d, 4), v(vb + 2), s(P.srd_ws, 4), s(sb + cc), mods=f"offen offset:{tile * 1024}")
            for j in range(4):
                k.I("v_dot2c_f32_bf16", v(vb + 24 + 4 * cc + tile), v(d + j), v(vb + 4))


def g_finish(k, P, sG, sKB):
    sb, vb, L = P.sb, P.vb, P.lane
    for i in range(8):
        x, t = vb + 24 + i, vb + 8 + i
        k.I("v_mov_b32", v(t), v(x))
    for i in range(8):
        x, t = vb + 24 + i, vb + 8 + i
        k.I("v_permlane32_swap_b32", v(x), v(t))
    for i in range(8):
        x, t = vb + 24 + i, vb + 8 + i
        k.I("v_add_f32", v(x), v(x), v(t))
    for i in range(8):
        x, t = vb + 24 + i, vb + 8 + i
        k.I("v_mov_b32", v(t), v(x))
    for i in range(8):
        x, t = vb + 24 + i, vb + 8 + i
        k.I("v_permlane16_swap_b32", v(x), v(t))
    for i in range(8):
        x, t = vb + 24 + i, vb + 8 + i
        k.I("v_add_f32", v(x), v(x), v(t))
    k.I("v_lshrrev_b32", v(vb + 8), 4, v(L))
    for tile in range(1, 4):
        k.I("v_cmp_eq_u32", "vcc", tile, v(vb + 8))
        for cc in range(2):
            k.I("v_cndmask_b32", v(vb + 24 + 4 * cc), v(vb + 24 + 4 * cc), v(vb + 24 + 4 * cc + tile), "vcc")
    k.I("s_mul_i32", s(sb), s(sKB), 144 * 256)
    k.I("s_lshl_b32", s(sb + 1), s(sG), 9)
    k.I("s_add_u32", s(sb), s(sb), s(sb + 1))
    k.I("s_add_u32", s(sb), s(sb), hex(WS_CS))
    for cc in range(2):
        k.I("buffer_store_dword", v(vb + 24 + 4 * cc), v(vb + 3), s(P.srd_ws, 4), s(sb), mods=f"offen offset:{cc * 256}")


def w_setup(k, P, sLB):
    vb, L = P.vb, P.lane
    k.I("v_lshlrev_b32", v(vb), 4, v(L))
    t = vb + 2
    k.I("v_bfe_u32", v(t), v(L), 2, 2)
    k.I("v_mul_u32_u24", v(vb + 1), 1152, v(t))
    k.I("v_lshrrev_b32", v(t), 4, v(L))
    k.I("v_lshl_add_u32", v(vb + 1), v(t), 5, v(vb + 1))
    k.I("v_and_b32", v(t), 3, v(L))
    k.I("v_lshl_add_u32", v(vb + 1), v(t), 3, v(vb + 1))
    k.I("v_add_u32", v(vb + 1), s(sLB), v(vb + 1))


def w_load(k, P, sLB, sO, srd_w):
    sb, vb = P.sb, P.vb
    k.I("s_mul_i32", s(sb), s(sO), 9216)
    tok = None
    for i in range(9):
        if i % 4 == 0:
            k.I("s_add_u32", "m0", s(sLB), i * 1024)
            if i:
                k.I("s_add_u32", s(sb), s(sb), 4096)
        tok = k.I("buffer_load_dwordx4", v(vb), s(srd_w, 4), s(sb), mods=f"offen offset:{(i % 4) * 1024} lds")
    return tok


def w_process(k, P, sO, noct, region, tok):
    sb, vb, L = P.sb, P.vb, P.lane
    k.I("s_mul_i32", s(sb), s(sO), 1152)
    k.I("s_add_u32", s(sb), s(sb), hex(region))
    k.I("s_mov_b32", s(sb + 1), noct * 1152 - 72 * 16)
    k.wait_vm(tok)
    d0 = vb + 8
    for q in range(9):
        d = d0 + 4 * (q % 4)
        for h in range(2):
            k.I("ds_read_b64_tr_b16", v(d + 2 * h, 2), v(vb + 1), mods=f"offset:{h * 4608 + q * 128}")
        ta = vb + 2 + (q % 2) * 2
        k.I("v_add_u32", v(ta), 64 * q, v(L))
        k.I("v_mul_u32_u24", v(ta + 1), 911, v(ta))
        k.I("v_lshrrev_b32", v(ta + 1), 16, v(ta + 1))
        k.I("v_mul_lo_u32", v(ta + 1), v(ta + 1), s(sb + 1))
        k.I("v_lshl_add_u32", v(ta), v(ta), 4, v(ta + 1))
        k.I("buffer_store_dwordx4", v(d, 4), v(ta), s(P.srd_ws, 4), s(sb), mods="offen")


def build_k0():
    k = Kern("k0_kernel")
    k.I("s_cmp_ge_u32", s(2), 324)
    k.I("s_cbranch_scc1", "K0_END")
    k.I("s_load_dwordx2", s(4, 2), s(0, 2), KA_WO)
    k.I("s_load_dwordx4", s(8, 4), s(0, 2), KA_WG)
    k.I("s_load_dwordx2", s(6, 2), s(0, 2), KA_WD)
    k.I("s_load_dwordx2", s(12, 2), s(0, 2), KA_WS)
    k.I("v_lshrrev_b32", v(1), 6, v(0))
    k.I("v_and_b32", v(2), 63, v(0))
    k.I("v_readfirstlane_b32", s(3), v(1))
    k.wait(lg=0)
    srd(k, 16, 12, WS_SIZE)
    srd(k, 20, 8, D * F * 2)
    srd(k, 24, 10, D * F * 2)
    srd(k, 28, 6, D * F * 2)
    srd(k, 32, 4, D * D * 2)
    k.I("s_mul_i32", s(40), s(3), PREP_LDS_PER_WAVE)
    k.I("s_lshl_b32", s(41), s(2), 2)
    k.I("s_add_u32", s(41), s(41), s(3))
    P = PrepRegs(sb=50, vb=8, srd_ws=16, srd_g=20, srd_u=24, lane=2)
    k.I("s_cmp_ge_u32", s(41), 648)
    k.I("s_cbranch_scc1", "K0_W")
    k.I("s_mul_i32", s(42), s(41), 911)
    k.I("s_lshr_b32", s(42), s(42), 16)
    k.I("s_mul_i32", s(43), s(42), 72)
    k.I("s_sub_u32", s(43), s(41), s(43))
    g_setup(k, P, 40)
    for half in range(2):
        tok = g_load(k, P, 40, 43, 42, half)
        g_process(k, P, 43, 42, half, tok)
        k.wait(lg=0)
    g_finish(k, P, 43, 42)
    k.I("s_endpgm")
    k.label("K0_W")
    k.vmq, k.dsq = [], []
    w_setup(k, P, 40)
    k.I("s_cmp_ge_u32", s(41), 648 + 576)
    k.I("s_cbranch_scc1", "K0_WO")
    k.I("s_sub_u32", s(42), s(41), 648)
    tok = w_load(k, P, 40, 42, 28)
    w_process(k, P, 42, 576, WS_WD, tok)
    k.I("s_endpgm")
    k.label("K0_WO")
    k.vmq, k.dsq = [], []
    k.I("s_sub_u32", s(42), s(41), 648 + 576)
    tok = w_load(k, P, 40, 42, 32)
    w_process(k, P, 42, 72, WS_WO, tok)
    k.label("K0_END")
    k.I("s_endpgm")
    return k, "grid=(324,1,1) block=(256,1,1) lds=%d" % (4 * PREP_LDS_PER_WAVE)
```

```python
import sys, os
sys.path.insert(0, os.path.dirname(__file__))
from gen import *
import k_prep, k_frag, k_misc, k_glu, k_attn
ks = [k_prep.build_k0(), k_attn.build_k1(), k_frag.build_frag("B"), k_glu.build_k3(dbg="onewait"), k_frag.build_frag("D")]
ks += [k_misc.build_empty(f"ke{i}_kernel") for i in range(4)]
build(ks, sys.argv[1])
```

```python
from asm import *

S, D, F = 2048, 576, 4608
NAME = "sequential_preLN__sliding_local_dilated__glu_gated_glu__prompt"

WS_O = 0x0000000
WS_H = 0x0240000
WS_HH = 0x0480000
WS_WO = 0x1680000
WS_WD = 0x1800000
WS_WGU = 0x1E00000
WS_CS = 0x2900000
WS_ST = 0x2A00000
WS_STAMP = 0x2B00000
WS_F1 = 0x2C00000
WS_F2 = 0x2C10000
WS_PART = 0x2D00000
WS_SIZE = 0x4000000

KA_X, KA_WQKV, KA_WO, KA_BX, KA_WG, KA_WU, KA_WD, KA_OUT, KA_DBG, KA_WS = [8 * i for i in range(10)]


def srd(k, d, base, nbytes):
    if d != base:
        k.I("s_mov_b32", s(d), s(base))
    k.I("s_and_b32", s(d + 1), s(base + 1), "0xffff")
    k.I("s_mov_b32", s(d + 2), hex(nbytes))
    k.I("s_mov_b32", s(d + 3), "0x00020000")


def kernel_text(k, lds_unused=0):
    k.pad_hazards()
    nv, na, ns = k.max_regs()
    acc_off = max(4, (nv + 3) // 4 * 4)
    nfv = acc_off + na if na else nv
    assert nv <= 256 and na <= 256 and ns <= 102, (nv, na, ns)
    code = f""".globl {k.name}
.p2align 8
.type {k.name},@function
{k.name}:
{k.text()}
"""
    desc = f""".p2align 6
.amdhsa_kernel {k.name}
  .amdhsa_next_free_vgpr {nfv}
  .amdhsa_next_free_sgpr {max(ns, 16)}
  .amdhsa_accum_offset {acc_off}
  .amdhsa_group_segment_fixed_size 0
  .amdhsa_kernarg_size 80
  .amdhsa_user_sgpr_count 2
  .amdhsa_user_sgpr_kernarg_segment_ptr 1
  .amdhsa_system_sgpr_workgroup_id_x 1
.end_amdhsa_kernel
"""
    return code, desc


class Stamps:
    def __init__(self, k, sb, enable):
        self.k, self.sb, self.n, self.on = k, sb, 0, enable

    def stamp(self):
        if not self.on:
            return
        k = self.k
        k.I("s_memtime", s(self.sb + 4 * self.n, 2))
        k.I("s_memrealtime", s(self.sb + 4 * self.n + 2, 2))
        self.n += 1

    def dump(self, srd_ws, vt, slot):
        if not self.on:
            return
        k = self.k
        k.wait(lg=0)
        k.I("v_lshrrev_b32", v(vt), 6, v(0))
        k.I("s_lshl_b32", s(self.sb + 4 * self.n), s(2), 9)
        k.I("v_lshlrev_b32", v(vt), 7, v(vt))
        k.I("v_add_u32", v(vt), s(self.sb + 4 * self.n), v(vt))
        k.I("v_add_u32", v(vt), hex(WS_STAMP + slot * 0x40000), v(vt))
        for i in range(self.n):
            k.I("v_mov_b32", v(vt + 2), s(self.sb + 4 * i))
            k.I("v_mov_b32", v(vt + 3), s(self.sb + 4 * i + 2))
            k.I("buffer_store_dwordx2", v(vt + 2, 2), v(vt), s(srd_ws, 4), 0, mods=f"offen offset:{8 * i}")
```

```python
from common import *
from k_frag import f32bits
from collections import deque

RING = 6
STAGE = 24576
LDS_CS = RING * STAGE
LDS_TOTAL = LDS_CS + 2304
BUF = 73728
MF = "v_mfma_f32_16x16x32_bf16"
LOG2E = 1.4426950408889634
NSTAT = 8


class Pool:
    def __init__(self, vlo, vhi, alo, ahi):
        self.v = deque(range(vlo, vhi, 4))
        self.a = deque(range(alo, ahi, 4))

    def get(self, kind="any"):
        if kind == "v" or (kind == "any" and not self.a):
            return ("v", self.v.popleft())
        return ("a", self.a.popleft())

    def put(self, r):
        (self.v if r[0] == "v" else self.a).append(r[1])

    def n(self):
        return len(self.v) + len(self.a)


def r4(r):
    return R(r[0], r[1], 4)


def build_cd(dbg="", NA=7):
    k = Kern("kcd_kernel")
    ST = Stamps(k, 64, "stamp" in dbg)
    if "stC" in dbg or "stD" in dbg:
        ST2 = Stamps(k, 64, True)
    else:
        ST2 = Stamps(k, 64, False)
    SC = "sc1" if "nosc" not in dbg else ""
    k.I("s_cmp_ge_u32", s(2), 256)
    k.I("s_cbranch_scc1", "KCD_END")
    ST.stamp()
    k.I("s_load_dwordx2", s(4, 2), s(0, 2), KA_WS)
    k.I("s_load_dwordx2", s(6, 2), s(0, 2), KA_OUT)
    k.I("v_lshrrev_b32", v(1), 6, v(0))
    k.I("v_and_b32", v(2), 63, v(0))
    k.I("v_readfirstlane_b32", s(3), v(1))
    k.I("s_and_b32", s(20), s(2), 7)
    k.I("s_lshl_b32", s(20), s(20), 1)
    k.I("s_bfe_u32", s(21), s(2), hex((1 << 16) | 3))
    k.I("s_add_u32", s(20), s(20), s(21))
    k.I("s_lshr_b32", s(21), s(2), 4)
    k.I("s_lshr_b32", s(16), s(20), 2)
    k.I("s_and_b32", s(17), s(20), 3)
    k.I("v_lshlrev_b32", v(3), 4, v(2))
    k.I("s_lshl_b32", s(22), s(21), 3)
    k.I("s_lshl_b32", s(23), s(3), 1)
    k.I("s_add_u32", s(22), s(22), s(23))
    k.I("s_mul_i32", s(24), s(20), 9 * 18 * 4096)
    k.I("s_mul_i32", s(25), s(3), 6144)
    k.I("s_add_u32", s(24), s(24), s(25))
    k.I("s_add_u32", s(24), s(24), hex(WS_WGU))
    k.I("s_mul_i32", s(26), s(22), 18 * 1024)
    k.I("s_add_u32", s(26), s(26), hex(WS_H))
    k.I("s_add_u32", s(27), s(26), 18 * 1024)
    k.wait(lg=0)
    srd(k, 8, 4, WS_SIZE)
    srd(k, 12, 6, S * D * 2)

    P = Pool(28, 256, 0, 256)
    X = {(tt, kb): P.get("a") for kb in range(18) for tt in range(2)}
    ACC = {(st, tile, tt): P.get("v") for st in range(2) for tile in range(4) for tt in range(2)}
    CS = [P.get("v") for _ in range(4)]
    WF = {(b, tile): P.get("a") for b in range(3) for tile in range(4)}

    dma_tok = {}
    wtok = {}

    def dma_items(st):
        slot = st % RING

        def one(i):
            def f():
                if i == 0:
                    k.I("s_add_u32", "m0", s(25), slot * STAGE)
                if i == 4:
                    k.I("s_add_u32", "m0", s(25), slot * STAGE + 4096)
                    k.I("s_add_u32", s(30), s(24), 4096)
                t = k.I("buffer_load_dwordx4", v(3), s(8, 4), s(24) if i < 4 else s(30), mods=f"offen offset:{(i % 4) * 1024} lds")
                if i == 5:
                    dma_tok[st] = t
                    k.I("s_add_u32", s(24), s(24), STAGE)
            return f
        return [one(i) for i in range(6)]

    def x_items(kb0, kb1):
        L = []
        for kb in range(kb0, kb1):
            for tt in range(2):
                def f(kb=kb, tt=tt):
                    if kb % 4 == 0 and kb:
                        k.I("s_add_u32", s(26 + tt), s(26 + tt), 4096)
                    k.I("buffer_load_dwordx4", r4(X[(tt, kb)]), v(3), s(8, 4), s(26 + tt), mods=f"offen offset:{(kb % 4) * 1024}")
                L.append(f)
        return L

    for f in dma_items(0):
        f()
    for f in x_items(0, 6):
        f()
    k.I("v_add_u32", v(4), 2 * STAGE, v(3))
    k.I("v_add_u32", v(5), 4 * STAGE, v(3))
    k.I("v_add_u32", v(14), 144 * 1024, v(3))
    k.I("v_mov_b32", v(15), 0)
    k.I("s_mul_i32", s(28), s(22), 144 * 1024)
    k.I("s_mul_i32", s(29), s(20), 9 * 1024)
    k.I("s_add_u32", s(28), s(28), s(29))
    k.I("s_add_u32", s(28), s(28), hex(WS_HH))
    k.I("s_mul_i32", s(53), s(16), 36)
    k.I("s_mul_i32", s(54), s(3), 9)
    k.I("s_add_u32", s(53), s(53), s(54))
    k.I("s_mul_i32", s(32), s(53), 36864)
    k.I("s_mul_i32", s(54), s(17), 9216)
    k.I("s_add_u32", s(32), s(32), s(54))
    k.I("s_add_u32", s(32), s(32), hex(WS_WD))
    k.I("s_lshl_b32", s(54), s(21), 2)
    k.I("s_add_u32", s(55), s(54), s(16))
    k.I("s_lshl_b32", s(55), s(55), 2)
    k.I("s_add_u32", s(40), s(55), s(3))
    k.I("s_lshl_b32", s(40), s(40), 7)
    k.I("s_add_u32", s(40), s(40), hex(WS_F1))
    k.I("s_add_u32", s(44), s(55), s(17))
    k.I("s_lshl_b32", s(44), s(44), 7)
    k.I("s_lshl_b32", s(56), s(3), 2)
    k.I("s_add_u32", s(44), s(44), s(56))
    k.I("s_add_u32", s(44), s(44), hex(WS_F1))
    k.I("s_add_u32", s(55), s(54), s(17))
    k.I("s_lshl_b32", s(55), s(55), 2)
    for p in range(4):
        k.I("s_add_u32", s(56), s(16), p + 1)
        k.I("s_and_b32", s(56), s(56), 3)
        k.I("s_lshl_b32", s(57), s(21), 2)
        k.I("s_add_u32", s(57), s(57), s(56))
        k.I("s_mul_i32", s(57), s(57), 288)
        k.I("s_add_u32", s(57), s(57), s(53))
        k.I("s_lshl_b32", s(57), s(57), 10)
        k.I("s_add_u32", s(36 + p), s(57), hex(WS_HH))
        k.I("s_add_u32", s(57), s(55), s(56))
        if p < 3:
            k.I("s_lshl_b32", s(58), s(57), 2)
            k.I("s_add_u32", s(58), s(58), s(16))
            k.I("s_mul_i32", s(58), s(58), 18432)
            k.I("s_add_u32", s(45 + p), s(58), hex(WS_PART))
            k.I("s_lshl_b32", s(58), s(57), 5)
            k.I("s_lshl_b32", s(59), s(3), 2)
            k.I("s_add_u32", s(58), s(58), s(59))
            k.I("s_add_u32", s(58), s(58), s(16))
            k.I("s_lshl_b32", s(58), s(58), 2)
            k.I("s_add_u32", s(48 + p), s(58), hex(WS_F2))
        else:
            k.I("s_mul_i32", s(51), s(57), 4 * 18432)
            k.I("s_add_u32", s(51), s(51), hex(WS_PART))
            k.I("s_lshl_b32", s(52), s(57), 7)
            k.I("s_lshl_b32", s(59), s(3), 4)
            k.I("s_add_u32", s(52), s(52), s(59))
            k.I("s_add_u32", s(52), s(52), hex(WS_F2))

    tS = [P.get("v") for _ in range(8)]
    tC = [P.get("v") for _ in range(9)]

    def stat_loads(tS, sbase_reg, ntt=2):
        L = []
        for tt in range(ntt):
            for i in range(4):
                L.append(lambda tt=tt, i=i: k.I("buffer_load_dwordx4", r4(tS[4 * tt + i]), v(7), s(8, 4), s(sbase_reg),
                                                mods=f"offen offset:{tt * 1024 + 16 * i}"))
        return L

    def stat_math(t4, dmean, drstd):
        b = [g[1] for g in t4]
        L = []
        for (x, y) in ((0, 1), (2, 3), (0, 2)):
            for i in range(4):
                L.append(lambda x=x, y=y, i=i: k.I("v_add_f32", v(b[x] + i), v(b[x] + i), v(b[y] + i)))
        L.append(lambda: k.I("v_add_f32", v(b[0]), v(b[0]), v(b[0] + 2)))
        L.append(lambda: k.I("v_add_f32", v(b[0] + 1), v(b[0] + 1), v(b[0] + 3)))
        L.append(lambda: k.I("v_mul_f32", v(b[0]), hex(f32bits(-1.0 / 576)), v(b[0])))
        L.append(lambda: k.I("v_mul_f32", v(b[0] + 1), hex(f32bits(1.0 / 576)), v(b[0] + 1)))
        L.append(lambda: k.I("v_fma_f32", v(b[0] + 1), f"-{v(b[0])}", v(b[0]), v(b[0] + 1)))
        L.append(lambda: k.I("v_max_f32", v(b[0] + 1), 0, v(b[0] + 1)))
        L.append(lambda: k.I("v_add_f32", v(b[0] + 1), hex(f32bits(1e-5)), v(b[0] + 1)))
        L.append(lambda: k.I("v_rsq_f32", v(drstd), v(b[0] + 1)))
        if dmean is not None:
            L.append(lambda: k.I("v_mov_b32", v(dmean), v(b[0])))
        return L

    k.I("v_and_b32", v(7), 15, v(2))
    k.I("v_lshlrev_b32", v(7), 6, v(7))
    k.I("s_lshl_b32", s(23), s(22), 10)
    k.I("s_add_u32", s(23), s(23), hex(WS_ST))
    k.I("v_min_u32", v(24), 143, v(0))
    k.I("v_lshlrev_b32", v(24), 4, v(24))
    k.I("s_mul_i32", s(31), s(20), 2304)
    k.I("s_add_u32", s(31), s(31), hex(WS_CS))
    k.I("v_lshrrev_b32", v(6), 4, v(2))
    k.I("v_lshlrev_b32", v(6), 4, v(6))
    k.I("v_add_u32", v(6), LDS_CS, v(6))

    def cs_loads():
        L = []
        for p in range(9):
            def f(p=p):
                k.I("buffer_load_dwordx4", r4(tC[p]), v(24), s(8, 4), s(31), mods="offen")
                if p < 8:
                    k.I("s_add_u32", s(31), s(31), 36864)
            L.append(f)
        return L

    def startup_math():
        L = []
        for tt in range(2):
            L += stat_math(tS[4 * tt:4 * tt + 4], 8 + tt, 10 + tt)
            L.append(lambda tt=tt: k.I("v_mul_f32", v(10 + tt), hex(f32bits(-LOG2E)), v(10 + tt)))
            L.append(lambda tt=tt: k.I("v_mul_f32", v(12 + tt), v(10 + tt), v(8 + tt)))
        for p in range(1, 9):
            for i in range(4):
                L.append(lambda p=p, i=i: k.I("v_add_f32", v(tC[0][1] + i), v(tC[0][1] + i), v(tC[p][1] + i)))
        L.append(lambda: k.I("v_add_u32", v(24), LDS_CS, v(24)))
        L.append(lambda: k.I("ds_write_b128", v(24), r4(tC[0])))

        def rel():
            for g in tS + tC:
                P.put(g)
        L.append(rel)
        return L

    def w_read(u, tile):
        st, r = divmod(u, 6)
        slot = st % RING
        wtok[(u, tile)] = k.I("ds_read_b128", r4(WF[(u % 3, tile)]), v(3 + slot // 2),
                              mods=f"offset:{(slot % 2) * STAGE + r * 4096 + tile * 1024}")

    hh_store_tok = {}

    def epi_items(c):
        L = []
        st = c % 2
        for tile in range(4):
            L.append(lambda tile=tile: k.I("ds_read_b128", r4(CS[tile]), v(6), mods=f"offset:{c * 256 + tile * 64}"))
        for tt in range(2):
            g = [ACC[(st, e // 4, tt)][1] + e % 4 for e in range(8)]
            u = [ACC[(st, 2 + e // 4, tt)][1] + e % 4 for e in range(8)]
            cg = [CS[e // 4][1] + e % 4 for e in range(8)]
            cu = [CS[2 + e // 4][1] + e % 4 for e in range(8)]
            for e in range(8):
                L.append(lambda e=e, g=g, tt=tt: k.I("v_mul_f32", v(g[e]), v(10 + tt), v(g[e])))
            for e in range(8):
                L.append(lambda e=e, g=g, cg=cg, tt=tt: k.I("v_fmac_f32", v(g[e]), v(12 + tt), v(cg[e])))
            for e in range(8):
                L.append(lambda e=e, g=g: k.I("v_exp_f32", v(g[e]), v(g[e])))
                L.append(lambda e=e, u=u, cu=cu, tt=tt: k.I("v_fmac_f32", v(u[e]), v(8 + tt), v(cu[e])))
            for e in range(8):
                L.append(lambda e=e, g=g: k.I("v_add_f32", v(g[e]), 1.0, v(g[e])))
            for e in range(8):
                L.append(lambda e=e, g=g: k.I("v_rcp_f32", v(g[e]), v(g[e])))
            for e in range(8):
                L.append(lambda e=e, g=g, u=u: k.I("v_mul_f32", v(u[e]), v(g[e]), v(u[e])))
            for i in range(4):
                L.append(lambda i=i, u=u, tt=tt: k.I("v_cvt_pk_bf16_f32", v(16 + 4 * tt + i), v(u[2 * i]), v(u[2 * i + 1])))

            def stf(tt=tt):
                if c % 4 == 0 and c and tt == 0:
                    k.I("s_add_u32", s(28), s(28), 4096)
                tk = k.I("buffer_store_dwordx4", v(16 + 4 * tt, 4), v(3 if tt == 0 else 14), s(8, 4), s(28),
                         mods=f"offen offset:{(c % 4) * 1024} {SC}")
                if tt == 1:
                    hh_store_tok[c] = tk
            L.append(stf)
        return L

    def flag_store(tokfn, sreg, val):
        def f():
            k.wait_vm(tokfn())
            k.I("v_mov_b32", v(25), val)
            k.I("buffer_store_dword", v(25), v(15), s(8, 4), s(sreg), mods=f"offen {SC}")
        return f

    npoll = [0]

    def poll_issue(sreg, dst):
        return k.I("buffer_load_dwordx4", r4(dst), v(15), s(8, 4), s(sreg), mods=f"offen {SC}")

    def poll_check(sreg, dst, level, skip_reg=None):
        npoll[0] += 1
        n = npoll[0]
        b = dst[1]

        def test():
            if skip_reg is not None:
                for i in range(4):
                    k.I("s_cmp_eq_u32", s(skip_reg), i)
                    k.I("s_cselect_b32", s(59), level, 0)
                    k.I("v_max_u32", v(b + i), s(59), v(b + i))
            k.I("v_min_u32", v(b), v(b), v(b + 1))
            k.I("v_min_u32", v(b + 2), v(b + 2), v(b + 3))
            k.I("v_min_u32", v(b), v(b), v(b + 2))
            k.I("v_readfirstlane_b32", s(59), v(b))
            k.I("s_cmp_ge_u32", s(59), level)
        test()
        k.I("s_cbranch_scc1", f"KCD_PD{n}")
        k.I("s_mov_b32", s(60), 20000)
        k.label(f"KCD_PL{n}")
        save = (list(k.vmq), list(k.dsq))
        k.I("s_sub_u32", s(60), s(60), 1)
        k.I("s_cmp_eq_u32", s(60), 0)
        k.I("s_cbranch_scc1", f"KCD_PD{n}")
        k.I("s_sleep", 1)
        poll_issue(sreg, dst)
        k.wait(vm=0)
        test()
        k.I("s_cbranch_scc0", f"KCD_PL{n}")
        k.vmq, k.dsq = save
        k.label(f"KCD_PD{n}")

    WD = {}
    HH = {}

    def wd_load(i, r):
        def f():
            WD[(i, r)] = P.get()
            k.I("s_add_u32", s(59), s(32), i * 36864 + (r // 4) * 4096)
            k.I("buffer_load_dwordx4", r4(WD[(i, r)]), v(3), s(8, 4), s(59), mods=f"offen offset:{(r % 4) * 1024}")
        return f

    def hh_load(p, i, tt):
        def f():
            HH[(p, i, tt)] = P.get()
            if i >= 4:
                k.I("s_add_u32", s(59), s(36 + p), (i // 4) * 4096)
            k.I("buffer_load_dwordx4", r4(HH[(p, i, tt)]), v(3 if tt == 0 else 14), s(8, 4), s(59) if i >= 4 else s(36 + p),
                mods=f"offen offset:{(i % 4) * 1024} {SC}")
        return f

    def sync(st):
        k.wait_vm(dma_tok[st])
        k.I("s_barrier")

    vq = deque()
    vq += dma_items(1) + x_items(6, 12) + dma_items(2) + x_items(12, 18) + stat_loads(tS, 23) + cs_loads() + dma_items(3)
    sync(0)
    vq += dma_items(4)
    ST.stamp()
    for u in range(2):
        for tile in range(4):
            w_read(u, tile)
    NU = 162
    pollreg = None
    lateq = deque()
    for u in range(NU):
        c, kb = divmod(u, 18)
        if kb == 0:
            if "stC" in dbg:
                ST2.stamp()
            side = []
            if c == 1:
                side += startup_math()
            if c >= 2:
                pass
            if c > 0:
                side_epi = epi_items(c - 1)
                if c == 1:
                    side_late = side_epi
                else:
                    side += side_epi
            if c == NA:
                side.append(None)
                side.append(flag_store(lambda: hh_store_tok[NA - 1], 44, 1))
            nside = len(side)
            done = 0
            span = 100
            if 2 <= c <= 7:
                allw = [(i, r) for r in range(9) for i in range(5)]
                n0, n1 = (c - 2) * 45 // 6, (c - 1) * 45 // 6
                wdq = deque(wd_load(*x) for x in allw[n0:n1])
            else:
                wdq = deque()
        un = u + 2
        for m in range(8):
            tile, tt = divmod(m, 2)
            if m == 0:
                k.wait_ds(wtok[(u, 3)])
            ac = r4(ACC[(c % 2, tile, tt)])
            k.I(MF, ac, r4(WF[(u % 3, tile)]), r4(X[(tt, kb)]), ac if kb else 0)
            nf = 0
            if un < NU and m % 2 == 0:
                if m == 0 and un % 6 == 0:
                    stn = un // 6
                    if stn == 4:
                        while done < nside:
                            side[done]()
                            done += 1
                        k.wait(lg=0)
                    sync(stn)
                    if stn + RING - 2 < 27:
                        vq += dma_items(stn + RING - 2)
                    if stn == 4:
                        side += side_late
                        nside = len(side)
                w_read(un, m // 2)
                nf += 1
            elif vq:
                vq.popleft()()
                nf += 1
                if c == 0 and vq:
                    vq.popleft()()
            elif wdq and m == 3 and kb % 2 == 0:
                wdq.popleft()()
                nf += 1
            elif lateq and P.n() > 0:
                lateq.popleft()()
                nf += 1
            gi = kb * 8 + m
            if c == 1:
                target = nside
            else:
                target = 0 if gi < 3 else min(nside, (gi - 2) * nside // span + 1)
            while done < target and nf < 2:
                it = side[done]
                if it is None:
                    if gi < 128:
                        break
                else:
                    it()
                    nf += 1
                done += 1
        if c == 8:
            for tt in range(2):
                P.put(X[(tt, kb)])
            if kb == 0:
                pollreg = P.get("v")
                lateq += [wd_load(i, r) for r in range(3) for i in range(5, NA)]
            if kb == 8:
                poll_issue(40, pollreg)
            if kb == 10:
                poll_check(40, pollreg, 1)
                lateq.extendleft(reversed([hh_load(0, i, tt) for i in range(NA) for tt in range(2)]))
                lateq += [wd_load(i, r) for r in range(3, 9) for i in range(5, NA)]
        if kb == 17:
            while wdq:
                wdq.popleft()()
            while done < nside:
                if side[done] is not None:
                    side[done]()
                done += 1
    ST.stamp()
    for g in WF.values():
        P.put(g)
    for key, g in ACC.items():
        if key[0] == 1:
            P.put(g)

    k.I("v_mul_u32_u24", v(4), 18432, v(1))
    k.I("v_add_u32", v(4), v(4), v(3))
    k.I("v_add_u32", v(5), BUF, v(4))
    k.I("v_lshl_add_u32", v(26), v(1), 10, v(3))
    k.I("v_and_b32", v(27), 1, v(1))
    k.I("v_lshl_add_u32", v(27), v(27), 10, v(3))
    k.I("v_add_u32", v(27), 16384, v(27))
    lateq += [hh_load(1, i, tt) for i in range(NA) for tt in range(2)]
    lateq += [wd_load(i, r) for r in range(9) for i in range(NA, 9)]

    side = deque(epi_items(8))

    def rel_c():
        for key, g in ACC.items():
            if key[0] == 0:
                P.put(g)
        for g in CS:
            P.put(g)
    side.append(rel_c)

    red_tok = {}
    red_done = {}

    def reduce_items(p):
        L = []
        buf = (p % 2) * BUF
        T = [("v", 16), ("v", 20)]
        extra = []

        def start():
            extra.append(P.get("v"))
            extra.append(P.get("v"))
        L.append(start)
        for n in range(5):
            def rd(n=n):
                regs = T + extra
                k.I("v_add_u32", v(24), buf + (n * 4096 if n < 4 else 0), v(26 if n < 4 else 27))
                for w2 in range(4):
                    k.I("ds_read_b128", r4(regs[w2]), v(24), mods=f"offset:{w2 * 18432}")
            L.append(rd)
            L.append(None)
            for (x, y) in ((0, 1), (2, 3), (0, 2)):
                for i in range(4):
                    L.append(lambda x=x, y=y, i=i: k.I("v_add_f32", v((T + extra)[x][1] + i), v((T + extra)[x][1] + i), v((T + extra)[y][1] + i)))

            def stf(n=n):
                if n < 4 and n:
                    k.I("s_add_u32", s(59), s(45 + p), n * 4096)
                red_tok[p] = k.I("buffer_store_dwordx4", r4(T[0]), v(26 if n < 4 else 27), s(8, 4),
                                 s(59) if 0 < n < 4 else s(45 + p), mods=f"offen {SC}")
            L.append(stf)

        def fin():
            P.put(extra[0])
            P.put(extra[1])
            red_done[p] = red_tok[p]
        L.append(fin)
        return L

    passes = [(0, list(range(NA)), True), (1, list(range(NA)), True), (0, list(range(NA, 9)), False),
              (1, list(range(NA, 9)), False), (2, list(range(9)), True), (3, list(range(9)), True)]
    pend_w = deque()
    events = {}

    def at(pi, mi, fn):
        events.setdefault((pi, mi), []).append(fn)

    def barrier():
        k.wait(lg=0)
        k.I("s_barrier")

    at(0, 2, barrier)
    at(0, 90, flag_store(lambda: hh_store_tok[8], 44, 2))
    nA = 18 * NA
    at(1, nA - 60, lambda: poll_issue(40, pollreg))

    def lvl2():
        poll_check(40, pollreg, 2)
        P.put(pollreg)
        lateq.extend([hh_load(p, i, tt) for p in range(2) for i in range(NA, 9) for tt in range(2)])
        lateq.extend([hh_load(2, i, tt) for i in range(9) for tt in range(2)])
    at(1, nA - 36, lvl2)

    def b_red(p):
        def f():
            while side:
                it = side.popleft()
                if it is not None:
                    it()
            barrier()
            side.extend(reduce_items(p))
        return f
    at(3, 4, b_red(0))
    at(4, 4, b_red(1))
    at(4, 30, flag_store(lambda: red_done[0], 48, 1))
    at(4, 20, lambda: lateq.extend([hh_load(3, i, tt) for i in range(9) for tt in range(2)]))
    at(4, 130, flag_store(lambda: red_done[1], 49, 1))
    at(5, 4, b_red(2))
    at(5, 90, flag_store(lambda: red_done[2], 50, 1))

    fin = {}

    def fin_setup():
        k.I("s_lshl_b32", s(53), s(21), 3)
        k.I("s_lshl_b32", s(54), s(16), 1)
        k.I("s_add_u32", s(53), s(53), s(54))
        k.I("s_and_b32", s(54), s(3), 1)
        k.I("s_add_u32", s(53), s(53), s(54))
        k.I("s_lshl_b32", s(23), s(53), 10)
        k.I("s_add_u32", s(23), s(23), hex(WS_ST))
        fin["st"] = [P.get("v") for _ in range(4)]
        for f in stat_loads(fin["st"], 23, 1):
            f()
        k.I("s_mul_i32", s(54), s(53), 72 * 256)
        k.I("s_mul_i32", s(55), s(17), 18 * 256)
        k.I("s_add_u32", s(54), s(54), s(55))
        k.I("s_add_u32", s(54), s(54), hex(WS_H))
        k.I("s_lshr_b32", s(56), s(3), 1)
        k.I("s_lshl_b32", s(55), s(56), 9)
        k.I("s_add_u32", s(55), s(55), s(54))
        k.I("s_add_u32", s(54), s(54), 4096)
        k.I("v_and_b32", v(8), 15, v(2))
        k.I("v_lshlrev_b32", v(9), 4, v(8))
        k.I("v_lshrrev_b32", v(10), 5, v(2))
        k.I("v_lshl_add_u32", v(9), v(10), 8, v(9))
        k.I("v_bfe_u32", v(10), v(2), 4, 1)
        k.I("v_lshl_add_u32", v(9), v(10), 3, v(9))
        fin["res"] = [P.get("v") for _ in range(3)]
        for n in range(5):
            g = fin["res"][n // 2]
            k.I("buffer_load_dwordx2", v(g[1] + 2 * (n % 2), 2), v(9), s(8, 4), s(55) if n < 4 else s(54),
                mods=f"offen offset:{n * 1024 if n < 4 else 0}")
        k.I("v_mul_u32_u24", v(9), 1152, v(8))
        k.I("v_lshrrev_b32", v(10), 4, v(2))
        k.I("v_lshl_add_u32", v(9), v(10), 3, v(9))
        k.I("s_mul_i32", s(53), s(53), 16 * 1152)
        k.I("s_mul_i32", s(54), s(17), 288)
        k.I("s_add_u32", s(53), s(53), s(54))
        k.I("s_lshl_b32", s(54), s(56), 5)
        k.I("s_add_u32", s(54), s(54), s(53))
        fin["poll"] = P.get("v")
    at(5, 40, fin_setup)
    at(5, 100, lambda: side.extend(stat_math(fin["st"], None, 11)))
    at(5, 120, lambda: poll_issue(52, fin["poll"]))

    def fin_loads():
        poll_check(52, fin["poll"], 1, skip_reg=16)
        fin["rp"] = {}
        for d in range(1, 4):
            k.I("s_add_u32", s(57), s(16), d)
            k.I("s_and_b32", s(57), s(57), 3)
            k.I("s_mul_i32", s(57), s(57), 18432)
            k.I("s_add_u32", s(57), s(57), s(51))
            for n in range(5):
                g = P.get("v")
                fin["rp"][(d, n)] = g
                if 0 < n < 4:
                    k.I("s_add_u32", s(58), s(57), n * 4096)
                k.I("buffer_load_dwordx4", r4(g), v(26 if n < 4 else 27), s(8, 4), s(58) if 0 < n < 4 else s(57), mods=f"offen {SC}")

    for pi, (p, il, first) in enumerate(passes):
        wbase = 4 + p % 2
        accs = {}
        if "stD" in dbg:
            ST2.stamp()

        def acc_get(r):
            accs[r] = [P.get(), P.get()]
            if not first:
                for tt in range(2):
                    k.I("ds_read_b128", r4(accs[r][tt]), v(wbase), mods=f"offset:{(2 * r + tt) * 1024}")
        ahead = 1 if first else 4
        for r in range(ahead):
            acc_get(r)
        mi = 0
        for r in range(9):
            for n_i, i in enumerate(il):
                for tt in range(2):
                    while (i, r) not in WD or (p, i, tt) not in HH:
                        lateq.popleft()()
                    ac = r4(accs[r][tt])
                    k.I(MF, ac, r4(WD[(i, r)]), r4(HH[(p, i, tt)]), 0 if (first and n_i == 0) else ac)
                    nf = 0
                    for fn in events.pop((pi, mi), []):
                        fn()
                        nf += 1
                    if pend_w and pend_w[0][0] <= 0:
                        pend_w.popleft()[1]()
                        nf += 1
                    pend_w = deque((cd - 1, fn) for cd, fn in pend_w)
                    if lateq and P.n() > 6 and nf < 2 and mi % 2 == 1:
                        lateq.popleft()()
                        nf += 1
                    while side and nf < 2:
                        it = side.popleft()
                        if it is None:
                            break
                        it()
                        nf += 1
                    if r == 8:
                        P.put(HH.pop((p, i, tt)))
                    if pi == 5 and tt == 1:
                        P.put(WD.pop((i, r)))
                    mi += 1
            for tt in range(2):
                def wr(r=r, tt=tt, g=accs[r][tt], wbase=wbase):
                    k.I("ds_write_b128", v(wbase), r4(g), mods=f"offset:{(2 * r + tt) * 1024}")
                    P.put(g)
                pend_w.append((1 + tt, wr))
            if r + ahead < 9:
                acc_get(r + ahead)
        if pi == 1 or pi == 2:
            pass
    assert not events, events.keys()
    ST.stamp()
    if "stD" in dbg:
        ST2.stamp()
    while pend_w:
        pend_w.popleft()[1]()
    while side:
        it = side.popleft()
        if it is not None:
            it()
    fin_loads()
    if "stD" in dbg:
        ST2.stamp()
    barrier()
    ST.stamp()
    for n in range(5):
        regs = [P.get("v") for _ in range(4)]
        k.I("v_add_u32", v(24), BUF + (n * 4096 if n < 4 else 0), v(26 if n < 4 else 27))
        for w2 in range(4):
            k.I("ds_read_b128", r4(regs[w2]), v(24), mods=f"offset:{w2 * 18432}")
        fin[("own", n)] = regs
    for n in range(5):
        b = [g[1] for g in fin[("own", n)]]
        rp = [fin["rp"][(d, n)][1] for d in range(1, 4)]
        for i in range(4):
            k.I("v_add_f32", v(b[0] + i), v(b[0] + i), v(b[1] + i))
            k.I("v_add_f32", v(b[2] + i), v(b[2] + i), v(b[3] + i))
            k.I("v_add_f32", v(rp[0] + i), v(rp[0] + i), v(rp[1] + i))
        for i in range(4):
            k.I("v_add_f32", v(b[0] + i), v(b[0] + i), v(b[2] + i))
            k.I("v_add_f32", v(rp[0] + i), v(rp[0] + i), v(rp[2] + i))
        for i in range(4):
            k.I("v_add_f32", v(b[0] + i), v(b[0] + i), v(rp[0] + i))
        rs = fin["res"][n // 2][1] + 2 * (n % 2)
        for i in range(2):
            k.I("v_lshlrev_b32", v(b[1] + 2 * i), 16, v(rs + i))
            k.I("v_and_b32", v(b[1] + 2 * i + 1), "0xffff0000", v(rs + i))
        for i in range(4):
            k.I("v_fma_f32", v(b[0] + i), v(b[0] + i), v(11), v(b[1] + i))
        k.I("v_cvt_pk_bf16_f32", v(b[2]), v(b[0]), v(b[0] + 1))
        k.I("v_cvt_pk_bf16_f32", v(b[2] + 1), v(b[0] + 2), v(b[0] + 3))
        k.I("buffer_store_dwordx2", v(b[2], 2), v(9), s(12, 4), s(54) if n < 4 else s(53),
            mods=f"offen offset:{n * 64 if n < 4 else 256}")
    ST.stamp()
    ST.dump(8, 16, 2)
    if "stD" in dbg:
        ST2.stamp()
    ST2.dump(8, 16, 2)
    k.label("KCD_END")
    k.I("s_endpgm")
    return k, "grid=(256,1,1) block=(256,1,1) lds=%d" % LDS_TOTAL
```

```python
from common import *
def build_empty(name="ke_kernel"):
    k = Kern(name)
    k.I("s_endpgm")
    return k, "grid=(256,1,1) block=(256,1,1) lds=0"

def build_zero():
    k = Kern("kz_kernel")
    k.I("s_cmp_ge_u32", s(2), 32)
    k.I("s_cbranch_scc1", "KZ_END")
    k.I("s_load_dwordx2", s(4, 2), s(0, 2), KA_WS)
    k.wait(lg=0)
    srd(k, 8, 4, WS_SIZE)
    k.I("v_lshlrev_b32", v(3), 4, v(0))
    k.I("s_lshl_b32", s(20), s(2), 12)
    k.I("s_add_u32", s(20), s(20), hex(WS_F1))
    for i in range(4):
        k.I("v_mov_b32", v(4 + i), 0)
    k.I("buffer_store_dwordx4", v(4, 4), v(3), s(8, 4), s(20), mods="offen")
    k.label("KZ_END")
    k.I("s_endpgm")
    return k, "grid=(32,1,1) block=(256,1,1) lds=0"
```

```python
from common import *

PREP_LDS_PER_WAVE = 9216


class PrepRegs:
    def __init__(self, sb, vb, srd_ws, srd_g=None, srd_u=None, srd_w=None, lane=None):
        self.sb, self.vb = sb, vb
        self.srd_ws, self.srd_g, self.srd_u, self.srd_w = srd_ws, srd_g, srd_u, srd_w
        self.lane = lane


def g_setup(k, P, sLB):
    vb, L = P.vb, P.lane
    k.I("v_lshrrev_b32", v(vb + 1), 3, v(L))
    k.I("v_mul_u32_u24", v(vb), 9216, v(vb + 1))
    k.I("v_and_b32", v(vb + 1), 7, v(L))
    k.I("v_lshl_add_u32", v(vb), v(vb + 1), 4, v(vb))
    t = vb + 2
    k.I("v_lshrrev_b32", v(t), 4, v(L))
    k.I("v_lshlrev_b32", v(vb + 1), 10, v(t))
    k.I("v_bfe_u32", v(t), v(L), 2, 2)
    k.I("v_lshl_add_u32", v(vb + 1), v(t), 7, v(vb + 1))
    k.I("v_and_b32", v(t), 3, v(L))
    k.I("v_lshl_add_u32", v(vb + 1), v(t), 4, v(vb + 1))
    k.I("v_add_u32", v(vb + 1), s(sLB), v(vb + 1))
    k.I("v_lshlrev_b32", v(vb + 2), 4, v(L))
    k.I("v_lshlrev_b32", v(vb + 3), 2, v(L))
    k.I("v_mov_b32", v(vb + 4), "0x3f803f80")
    for i in range(8):
        k.I("v_mov_b32", v(vb + 24 + i), 0)


def g_load(k, P, sLB, sG, sKB, half):
    sb, vb = P.sb, P.vb
    k.I("s_mul_i32", s(sb), s(sKB), 64 * 9216)
    k.I("s_lshl_b32", s(sb + 1), s(sG), 7)
    k.I("s_add_u32", s(sb), s(sb), s(sb + 1))
    if half:
        k.I("s_add_u32", s(sb), s(sb), 32 * 9216)
    tok = None
    for i in range(4):
        for m, sr in enumerate((P.srd_g, P.srd_u)):
            k.I("s_add_u32", "m0", s(sLB), m * 4096 + i * 1024)
            tok = k.I("buffer_load_dwordx4", v(vb), s(sr, 4), s(sb), mods="offen lds")
        if i < 3:
            k.I("s_add_u32", s(sb), s(sb), 8 * 9216)
    return tok


def g_process(k, P, sG, sKB, half, tok):
    sb, vb = P.sb, P.vb
    k.I("s_mul_i32", s(sb), s(sG), 2 * 18 * 4096)
    k.I("s_lshl_b32", s(sb + 1), s(sKB), 13)
    k.I("s_add_u32", s(sb), s(sb), s(sb + 1))
    k.I("s_add_u32", s(sb), s(sb), hex(WS_WGU + half * 4096))
    k.I("s_add_u32", s(sb + 1), s(sb), 18 * 4096)
    k.wait_vm(tok)
    d0 = vb + 8
    for cc in range(2):
        for tile in range(4):
            m, b = tile // 2, tile % 2
            d = d0 + 4 * tile
            for h in range(2):
                k.I("ds_read_b64_tr_b16", v(d + 2 * h, 2), v(vb + 1),
                    mods=f"offset:{m * 4096 + 4 * h * 128 + cc * 64 + b * 8}")
        for tile in range(4):
            d = d0 + 4 * tile
            k.I("buffer_store_dwordx4", v(d, 4), v(vb + 2), s(P.srd_ws, 4), s(sb + cc), mods=f"offen offset:{tile * 1024}")
            for j in range(4):
                k.I("v_dot2c_f32_bf16", v(vb + 24 + 4 * cc + tile), v(d + j), v(vb + 4))


def g_finish(k, P, sG, sKB):
    sb, vb, L = P.sb, P.vb, P.lane
    for i in range(8):
        x, t = vb + 24 + i, vb + 8 + i
        k.I("v_mov_b32", v(t), v(x))
    for i in range(8):
        x, t = vb + 24 + i, vb + 8 + i
        k.I("v_permlane32_swap_b32", v(x), v(t))
    for i in range(8):
        x, t = vb + 24 + i, vb + 8 + i
        k.I("v_add_f32", v(x), v(x), v(t))
    for i in range(8):
        x, t = vb + 24 + i, vb + 8 + i
        k.I("v_mov_b32", v(t), v(x))
    for i in range(8):
        x, t = vb + 24 + i, vb + 8 + i
        k.I("v_permlane16_swap_b32", v(x), v(t))
    for i in range(8):
        x, t = vb + 24 + i, vb + 8 + i
        k.I("v_add_f32", v(x), v(x), v(t))
    k.I("v_lshrrev_b32", v(vb + 8), 4, v(L))
    for tile in range(1, 4):
        k.I("v_cmp_eq_u32", "vcc", tile, v(vb + 8))
        for cc in range(2):
            k.I("v_cndmask_b32", v(vb + 24 + 4 * cc), v(vb + 24 + 4 * cc), v(vb + 24 + 4 * cc + tile), "vcc")
    k.I("s_mul_i32", s(sb), s(sKB), 144 * 256)
    k.I("s_lshl_b32", s(sb + 1), s(sG), 9)
    k.I("s_add_u32", s(sb), s(sb), s(sb + 1))
    k.I("s_add_u32", s(sb), s(sb), hex(WS_CS))
    for cc in range(2):
        k.I("buffer_store_dword", v(vb + 24 + 4 * cc), v(vb + 3), s(P.srd_ws, 4), s(sb), mods=f"offen offset:{cc * 256}")


def w_setup(k, P, sLB):
    vb, L = P.vb, P.lane
    k.I("v_lshlrev_b32", v(vb), 4, v(L))
    t = vb + 2
    k.I("v_bfe_u32", v(t), v(L), 2, 2)
    k.I("v_mul_u32_u24", v(vb + 1), 1152, v(t))
    k.I("v_lshrrev_b32", v(t), 4, v(L))
    k.I("v_lshl_add_u32", v(vb + 1), v(t), 5, v(vb + 1))
    k.I("v_and_b32", v(t), 3, v(L))
    k.I("v_lshl_add_u32", v(vb + 1), v(t), 3, v(vb + 1))
    k.I("v_add_u32", v(vb + 1), s(sLB), v(vb + 1))


def w_load(k, P, sLB, sO, srd_w):
    sb, vb = P.sb, P.vb
    k.I("s_mul_i32", s(sb), s(sO), 9216)
    tok = None
    for i in range(9):
        if i % 4 == 0:
            k.I("s_add_u32", "m0", s(sLB), i * 1024)
            if i:
                k.I("s_add_u32", s(sb), s(sb), 4096)
        tok = k.I("buffer_load_dwordx4", v(vb), s(srd_w, 4), s(sb), mods=f"offen offset:{(i % 4) * 1024} lds")
    return tok


def w_process(k, P, sO, noct, region, tok):
    sb, vb, L = P.sb, P.vb, P.lane
    k.I("s_mul_i32", s(sb), s(sO), 1152)
    k.I("s_add_u32", s(sb), s(sb), hex(region))
    k.I("s_mov_b32", s(sb + 1), noct * 1152 - 72 * 16)
    k.wait_vm(tok)
    d0 = vb + 8
    for q in range(9):
        d = d0 + 4 * (q % 4)
        for h in range(2):
            k.I("ds_read_b64_tr_b16", v(d + 2 * h, 2), v(vb + 1), mods=f"offset:{h * 4608 + q * 128}")
        ta = vb + 2 + (q % 2) * 2
        k.I("v_add_u32", v(ta), 64 * q, v(L))
        k.I("v_mul_u32_u24", v(ta + 1), 911, v(ta))
        k.I("v_lshrrev_b32", v(ta + 1), 16, v(ta + 1))
        k.I("v_mul_lo_u32", v(ta + 1), v(ta + 1), s(sb + 1))
        k.I("v_lshl_add_u32", v(ta), v(ta), 4, v(ta + 1))
        k.I("buffer_store_dwordx4", v(d, 4), v(ta), s(P.srd_ws, 4), s(sb), mods="offen")


def w_process16(k, P, sO, region, tok):
    sb, vb, L = P.sb, P.vb, P.lane
    k.I("s_lshr_b32", s(sb), s(sO), 2)
    k.I("s_mul_i32", s(sb), s(sb), 36864)
    k.I("s_and_b32", s(sb + 1), s(sO), 3)
    k.I("s_lshl_b32", s(sb + 1), s(sb + 1), 8)
    k.I("s_add_u32", s(sb), s(sb), s(sb + 1))
    k.I("s_add_u32", s(sb), s(sb), hex(region))
    k.I("v_lshrrev_b32", v(vb + 2), 4, v(L))
    k.I("v_lshlrev_b32", v(vb + 2), 10, v(vb + 2))
    k.I("v_and_b32", v(vb + 3), 15, v(L))
    k.I("v_lshl_add_u32", v(vb + 2), v(vb + 3), 4, v(vb + 2))
    k.wait_vm(tok)
    d0 = vb + 8
    for q in range(9):
        d = d0 + 4 * (q % 4)
        for h in range(2):
            k.I("ds_read_b64_tr_b16", v(d + 2 * h, 2), v(vb + 1), mods=f"offset:{h * 4608 + q * 128}")
        k.I("buffer_store_dwordx4", v(d, 4), v(vb + 2), s(P.srd_ws, 4), s(sb), mods="offen")
        if q < 8:
            k.I("s_add_u32", s(sb), s(sb), 4096)


def build_k0(wd16=True):
    k = Kern("k0_kernel")
    k.I("s_cmp_ge_u32", s(2), 324)
    k.I("s_cbranch_scc1", "K0_END")
    k.I("s_load_dwordx2", s(4, 2), s(0, 2), KA_WO)
    k.I("s_load_dwordx4", s(8, 4), s(0, 2), KA_WG)
    k.I("s_load_dwordx2", s(6, 2), s(0, 2), KA_WD)
    k.I("s_load_dwordx2", s(12, 2), s(0, 2), KA_WS)
    k.I("v_lshrrev_b32", v(1), 6, v(0))
    k.I("v_and_b32", v(2), 63, v(0))
    k.I("v_readfirstlane_b32", s(3), v(1))
    k.wait(lg=0)
    srd(k, 16, 12, WS_SIZE)
    srd(k, 20, 8, D * F * 2)
    srd(k, 24, 10, D * F * 2)
    srd(k, 28, 6, D * F * 2)
    srd(k, 32, 4, D * D * 2)
    k.I("s_cmp_ge_u32", s(2), 32)
    k.I("s_cbranch_scc1", "K0_NZ")
    k.I("v_lshlrev_b32", v(3), 4, v(0))
    k.I("s_lshl_b32", s(40), s(2), 12)
    k.I("s_add_u32", s(40), s(40), hex(WS_F1))
    for i in range(4):
        k.I("v_mov_b32", v(4 + i), 0)
    k.I("buffer_store_dwordx4", v(4, 4), v(3), s(16, 4), s(40), mods="offen")
    k.vmq.pop()
    k.label("K0_NZ")
    k.I("s_mul_i32", s(40), s(3), PREP_LDS_PER_WAVE)
    k.I("s_lshl_b32", s(41), s(2), 2)
    k.I("s_add_u32", s(41), s(41), s(3))
    P = PrepRegs(sb=50, vb=8, srd_ws=16, srd_g=20, srd_u=24, lane=2)
    k.I("s_cmp_ge_u32", s(41), 648)
    k.I("s_cbranch_scc1", "K0_W")
    k.I("s_mul_i32", s(42), s(41), 911)
    k.I("s_lshr_b32", s(42), s(42), 16)
    k.I("s_mul_i32", s(43), s(42), 72)
    k.I("s_sub_u32", s(43), s(41), s(43))
    g_setup(k, P, 40)
    for half in range(2):
        tok = g_load(k, P, 40, 43, 42, half)
        g_process(k, P, 43, 42, half, tok)
        k.wait(lg=0)
    g_finish(k, P, 43, 42)
    k.I("s_endpgm")
    k.label("K0_W")
    k.vmq, k.dsq = [], []
    w_setup(k, P, 40)
    k.I("s_cmp_ge_u32", s(41), 648 + 576)
    k.I("s_cbranch_scc1", "K0_WO")
    k.I("s_sub_u32", s(42), s(41), 648)
    tok = w_load(k, P, 40, 42, 28)
    if wd16:
        w_process16(k, P, 42, WS_WD, tok)
    else:
        w_process(k, P, 42, 576, WS_WD, tok)
    k.I("s_endpgm")
    k.label("K0_WO")
    k.vmq, k.dsq = [], []
    k.I("s_sub_u32", s(42), s(41), 648 + 576)
    tok = w_load(k, P, 40, 42, 32)
    w_process(k, P, 42, 72, WS_WO, tok)
    k.label("K0_END")
    k.I("s_endpgm")
    return k, "grid=(324,1,1) block=(256,1,1) lds=%d" % (4 * PREP_LDS_PER_WAVE)
```

```python
import sys, os
sys.path.insert(0, os.path.dirname(__file__))
from gen import *
import k_prep, k_frag, k_misc, k_cd
def rename(k, old, new):
    k.name = new.lower()+"_kernel"
    for ins in k.ins:
        if ins.kind=="raw": ins.text=ins.text.replace(old+"_",new+"_")
        else: ins.ops=[o.replace(old+"_",new+"_") if isinstance(o,str) else o for o in ins.ops]
ks = [k_prep.build_k0(), k_misc.build_zero()]
for i,d in enumerate(sys.argv[2:]):
    k,g = k_cd.build_cd(dbg=d)
    rename(k,"KCD","KCD"+chr(97+i))
    ks.append((k,g))
build(ks, sys.argv[1])
```

```python
from asm import *

S, D, F = 2048, 576, 4608
NAME = "sequential_preLN__sliding_local_dilated__glu_gated_glu__prompt"

WS_O = 0x0000000
WS_H = 0x0240000
WS_HH = 0x0480000
WS_WO = 0x1680000
WS_WD = 0x1800000
WS_WGU = 0x1E00000
WS_CS = 0x2900000
WS_ST = 0x2A00000
WS_STAMP = 0x2B00000
WS_F1 = 0x2C00000
WS_F2 = 0x2C10000
WS_F0 = 0x2C20000
WS_FH = 0x2C30000
WS_FP = 0x2C40000
WS_PART = 0x2D00000
WS_SIZE = 0x4000000

KA_X, KA_WQKV, KA_WO, KA_BX, KA_WG, KA_WU, KA_WD, KA_OUT, KA_DBG, KA_WS = [8 * i for i in range(10)]


def srd(k, d, base, nbytes):
    if d != base:
        k.I("s_mov_b32", s(d), s(base))
    k.I("s_and_b32", s(d + 1), s(base + 1), "0xffff")
    k.I("s_mov_b32", s(d + 2), hex(nbytes))
    k.I("s_mov_b32", s(d + 3), "0x00020000")


def kernel_text(k, lds_unused=0):
    k.pad_hazards()
    nv, na, ns = k.max_regs()
    acc_off = max(4, (nv + 3) // 4 * 4)
    nfv = acc_off + na if na else nv
    assert nv <= 256 and na <= 256 and ns <= 102, (nv, na, ns)
    code = f""".globl {k.name}
.p2align 8
.type {k.name},@function
{k.name}:
{k.text()}
"""
    desc = f""".p2align 6
.amdhsa_kernel {k.name}
  .amdhsa_next_free_vgpr {nfv}
  .amdhsa_next_free_sgpr {max(ns, 16)}
  .amdhsa_accum_offset {acc_off}
  .amdhsa_group_segment_fixed_size 0
  .amdhsa_kernarg_size 80
  .amdhsa_user_sgpr_count 2
  .amdhsa_user_sgpr_kernarg_segment_ptr 1
  .amdhsa_system_sgpr_workgroup_id_x 1
.end_amdhsa_kernel
"""
    return code, desc


class Stamps:
    def __init__(self, k, sb, enable, nw=4):
        self.k, self.sb, self.n, self.on, self.nw = k, sb, 0, enable, nw

    def clone(self, back=2):
        c = Stamps(self.k, self.sb, self.on, self.nw)
        c.n = max(0, self.n - back)
        return c

    def stamp(self):
        if not self.on:
            return
        k = self.k
        k.I("s_memtime", s(self.sb + 4 * self.n, 2))
        k.I("s_memrealtime", s(self.sb + 4 * self.n + 2, 2))
        self.n += 1

    def dump(self, srd_ws, vt, slot):
        if not self.on:
            return
        k = self.k
        k.wait(lg=0)
        k.I("v_lshrrev_b32", v(vt), 6, v(0))
        k.I("s_lshl_b32", s(self.sb + 4 * self.n), s(2), 9 if self.nw == 4 else 10)
        k.I("v_lshlrev_b32", v(vt), 7, v(vt))
        k.I("v_add_u32", v(vt), s(self.sb + 4 * self.n), v(vt))
        k.I("v_add_u32", v(vt), hex(WS_STAMP + slot * 0x40000), v(vt))
        for i in range(self.n):
            k.I("v_mov_b32", v(vt + 2), s(self.sb + 4 * i))
            k.I("v_mov_b32", v(vt + 3), s(self.sb + 4 * i + 2))
            k.I("buffer_store_dwordx2", v(vt + 2, 2), v(vt), s(srd_ws, 4), 0, mods=f"offen offset:{8 * i}")


class LStamps:
    def __init__(self, k, vreg, sreg, enable):
        self.k, self.v, self.s, self.on, self.n = k, vreg, sreg, enable, 0
        self.names = []

    def stamp(self, name=""):
        if not self.on:
            return
        k = self.k
        au = k.auto
        k.I("s_memtime", s(self.s, 2))
        k.I("s_waitcnt", "lgkmcnt(0)")
        k.dsq = []
        k.smem_pending = set()
        k.I("v_writelane_b32", v(self.v), s(self.s), self.n)
        self.names.append(name)
        self.n += 1

    def dump(self, srd_ws, vt, slot):
        if not self.on:
            return
        k = self.k
        k.I("v_lshlrev_b32", v(vt), 2, v(0))
        k.I("s_lshl_b32", s(self.s), s(2), 10)
        k.I("v_add_u32", v(vt), s(self.s), v(vt))
        k.I("v_add_u32", v(vt), hex(WS_STAMP + slot * 0x40000), v(vt))
        k.I("buffer_store_dword", v(self.v), v(vt), s(srd_ws, 4), 0, mods="offen")
        open("lstamps_%d.txt" % slot, "w").write("\n".join(self.names))
```

```python
from common import *
from k_frag import f32bits

MF = "v_mfma_f32_16x16x32_bf16"
XB = 18432
WBLK = 3616
STG = XB + 29 * 1024
PQ = 440
L_ST = 63488
L_CS = 64768
LOG2E = 1.4426950408889634
NEG = -1e30
BC, BP, B0, QM, ONES, AQ, AV, AKP, AVP, AO = 216, 220, 224, 228, 236, 240, 241, 242, 243, 244


def reduce_groups(k, regs, tmp, op="v_add_f32"):
    for sw in ("v_permlane32_swap_b32", "v_permlane16_swap_b32"):
        for i, r in enumerate(regs):
            k.I("v_mov_b32", v(tmp + i), v(r))
        for i, r in enumerate(regs):
            k.I(sw, v(r), v(tmp + i))
        for i, r in enumerate(regs):
            k.I(op, v(r), v(r), v(tmp + i))


def emit_a(k, U, ST, dbg=""):
    k.I("s_and_b32", s(27), s(3), 1)
    k.I("s_lshr_b32", s(28), s(3), 1)
    VX, VW = 4, 6
    k.I("s_mov_b32", s(23), 1152)
    k.I("v_lshrrev_b32", v(14), 3, v(2))
    k.I("v_lshrrev_b32", v(15), 1, v(14))
    k.I("s_lshl_b32", s(22), s(27), 2)
    k.I("v_add_u32", v(15), s(22), v(15))
    k.I("v_and_b32", v(16), 7, v(2))
    k.I("v_xor_b32", v(15), v(15), v(16))
    k.I("s_lshl_b32", s(22), s(20), 7)
    k.I("s_lshl_b32", s(24), s(27), 4)
    k.I("s_add_u32", s(24), s(24), s(22))
    k.I("v_lshl_add_u32", v(16), v(14), 1, s(24))
    k.I("v_mul_lo_u32", v(16), v(16), s(23))
    k.I("v_lshl_add_u32", v(VX), v(15), 4, v(16))
    k.I("s_add_u32", s(24), s(22), s(27))
    k.I("s_sub_u32", s(24), s(24), 16)
    k.I("v_lshl_add_u32", v(16), v(14), 1, s(24))
    k.I("v_mul_lo_u32", v(16), v(16), s(23))
    k.I("v_lshl_add_u32", v(VX + 1), v(15), 4, v(16))
    k.I("s_mul_i32", s(22), s(28), 14)
    k.I("s_add_u32", s(22), s(22), s(27))
    k.I("s_lshl_b32", s(24), s(22), 6)
    k.I("v_add_u32", v(18), s(24), v(2))
    k.I("s_lshl_b32", s(24), s(22), 10)
    k.I("s_add_u32", s(24), s(24), XB)
    k.I("s_lshl_b32", s(37), s(27), 10)
    k.I("s_mul_i32", s(25), s(21), 144)
    k.I("s_mov_b32", s(26), 0)
    k.I("s_cmp_lg_u32", s(28), 0)
    k.I("s_cbranch_scc1", f"{U}_A1")
    for cls in range(2):
        if cls == 1:
            k.label(f"{U}_A1")
            k.vmq, k.dsq = [], []
        gemm(k, U, cls, ST if cls == 0 else ST.clone(), dbg)
        if cls == 0:
            k.I("s_branch", f"{U}_AJ")
    k.label(f"{U}_AJ")
    k.vmq, k.dsq = [], [(-2, set())]
    k.wait(lg=0)
    k.I("s_barrier")
    ST.stamp()
    attention(k, U, dbg)


def att_setup(k):
    k.I("v_and_b32", v(14), 15, v(2))
    k.I("v_lshrrev_b32", v(15), 4, v(2))
    k.I("v_mul_u32_u24", v(AQ), PQ, v(14))
    k.I("v_lshl_add_u32", v(AQ), v(15), 4, v(AQ))
    k.I("v_lshrrev_b32", v(AV), 2, v(2))
    k.I("v_mul_u32_u24", v(AV), PQ, v(AV))
    k.I("v_and_b32", v(16), 3, v(2))
    k.I("v_lshl_add_u32", v(AV), v(16), 3, v(AV))
    k.I("s_lshl_b32", s(22), s(3), 1)
    k.I("s_mul_i32", s(23), s(22), s(27))
    k.I("s_mul_i32", s(23), s(23), 16 * PQ)
    k.I("s_add_u32", s(22), s(22), 1)
    k.I("s_mul_i32", s(22), s(22), 16 * PQ)
    k.I("v_add_u32", v(AKP), s(23), v(AQ))
    k.I("v_add_u32", v(AVP), s(23), v(AV))
    k.I("v_add_u32", v(AQ), s(22), v(AQ))
    k.I("v_add_u32", v(AV), s(22), v(AV))
    k.I("v_mov_b32", v(16), hex(f32bits(NEG)))
    k.I("v_lshlrev_b32", v(17), 2, v(15))
    k.I("v_sub_u32", v(17), v(14), v(17))
    k.I("s_cmp_eq_u32", s(3), 0)
    k.I("s_cselect_b32", s(22), 8, 0)
    k.I("s_cselect_b32", s(23), 8, 16)
    k.I("s_or_b32", s(38), s(20), s(27))
    k.I("s_cmp_eq_u32", s(38), 0)
    k.I("s_cselect_b32", s(23), 0, s(23))
    for r in range(4):
        k.I("v_subrev_u32", v(246), r, v(17))
        k.I("v_cmp_gt_u32", "vcc", 8, v(246))
        k.I("v_cndmask_b32", v(BC + r), v(16), 0, "vcc")
        k.I("v_cmp_gt_i32", "vcc", -8, v(246))
        k.I("v_cndmask_b32", v(BP + r), v(16), 0, "vcc")
        k.I("v_subrev_u32", v(247), s(22), v(246))
        k.I("v_cmp_gt_i32", "vcc", -8, v(247))
        k.I("v_lshl_add_u32", v(247), v(15), 2, r)
        k.I("v_cmp_gt_u32", s(40, 2), s(23), v(247))
        k.I("s_and_b64", "vcc", "vcc", s(40, 2))
        k.I("v_cndmask_b32", v(B0 + r), v(16), 0, "vcc")
        k.I("v_cmp_gt_u32", "vcc", 9, v(247))
        k.I("v_cndmask_b32", v(QM + r), 0, -1, "vcc")
        k.I("v_subrev_u32", v(247), 1, v(247))
        k.I("v_cmp_gt_u32", "vcc", 9, v(247))
        k.I("v_cndmask_b32", v(QM + 4 + r), 0, -1, "vcc")
        k.I("v_mov_b32", v(ONES + r), "0x3f803f80")
    k.I("v_lshlrev_b32", v(246), 1, v(14))
    k.I("v_add_u32", v(246), s(28), v(246))
    k.I("v_lshrrev_b32", v(247), 4, v(246))
    k.I("v_mul_u32_u24", v(247), 72 * 256, v(247))
    k.I("v_and_b32", v(246), 15, v(246))
    k.I("v_lshl_add_u32", v(247), v(246), 4, v(247))
    k.I("v_lshrrev_b32", v(246), 1, v(15))
    k.I("v_lshl_add_u32", v(AO), v(246), 8, v(247))
    k.I("v_and_b32", v(246), 1, v(15))
    k.I("v_lshl_add_u32", v(AO), v(246), 3, v(AO))
    k.I("v_add_u32", v(16), 1, v(15))
    k.I("v_lshrrev_b32", v(246), 1, v(16))
    k.I("v_lshl_add_u32", v(AO + 1), v(246), 8, v(247))
    k.I("v_and_b32", v(246), 1, v(16))
    k.I("v_lshl_add_u32", v(AO + 1), v(246), 3, v(AO + 1))


def gemm(k, U, cls, ST, dbg):
    VX, VW = 4, 6
    L = f"{U}_G{cls}"
    xt = list(range(0, 5)) if cls == 0 else list(range(5, 9))
    tconst = lambda t: 32 * ((t - 1) & 3) + ((t - 1) >> 2)
    nW = 7 if cls == 0 else 8
    ndma = len(xt) + nW
    k.auto = False

    def wvoff(n):
        k.I("v_add_u32", v(14), 128 * n, v(18))
        if n == 7:
            k.I("v_add_u32", v(15), 28 * 64, v(2))
            k.I("v_min_u32", v(14), v(14), v(15))
            k.I("v_min_u32", v(14), 1807, v(14))
        k.I("v_mul_u32_u24", v(15), 18559, v(14))
        k.I("v_lshrrev_b32", v(15), 22, v(15))
        k.I("v_mul_u32_u24", v(16), 226, v(15))
        k.I("v_sub_u32", v(14), v(14), v(16))
        k.I("v_mul_u32_u24", v(16), 2341, v(14))
        k.I("v_lshrrev_b32", v(16), 16, v(16))
        k.I("v_min_u32", v(16), 7, v(16))
        k.I("v_lshl_add_u32", v(15), v(15), 3, v(16))
        k.I("v_mul_u32_u24", v(16), 28, v(16))
        k.I("v_sub_u32", v(14), v(14), v(16))
        k.I("v_min_u32", v(14), 26, v(14))
        k.I("v_mul_u32_u24", v(16), 57, v(14))
        k.I("v_lshrrev_b32", v(16), 9, v(16))
        k.I("v_mul_u32_u24", v(15), 3456, v(15))
        k.I("v_lshl_add_u32", v(15), v(14), 4, v(15))
        k.I("v_mul_u32_u24", v(16), 1152 - 144, v(16))
        k.I("v_add_u32", v(VW + n), v(15), v(16))

    def dma_items(slot, first=False):
        base = slot * STG
        I = []
        for t in xt:
            def f(t=t):
                k.I("s_add_u32", "m0", s(37), base + t * 2048)
                if t == 0:
                    k.I("buffer_load_dwordx4", v(VX + 1), s(8, 4), s(26), mods="offen lds")
                else:
                    k.I("s_add_u32", s(38), s(26), tconst(t) * 1152)
                    k.I("buffer_load_dwordx4", v(VX), s(8, 4), s(38), mods="offen lds")
            I.append(f)
        for n in range(nW):
            def f(n=n):
                if first:
                    wvoff(n)
                if n < 7:
                    k.I("s_add_u32", "m0", s(24), base + n * 2048)
                else:
                    k.I("s_mov_b32", "m0", base + XB + 28 * 1024)
                k.I("buffer_load_dwordx4", v(VW + n), s(12, 4), s(25), mods="offen lds")
            I.append(f)

        def adv():
            k.I("s_add_u32", s(25), s(25), 64 * 3456)
            k.I("s_add_u32", s(26), s(26), 128)
        I.append(adv)
        return I

    for f in dma_items(0, True):
        f()
    for f in dma_items(1):
        f()
    AX, AP, AW = 20, 26, 38
    k.I("v_and_b32", v(14), 15, v(2))
    k.I("v_lshrrev_b32", v(15), 1, v(14))
    k.I("v_lshrrev_b32", v(16), 4, v(2))
    k.I("v_xor_b32", v(15), v(15), v(16))
    k.I("v_lshlrev_b32", v(14), 7, v(14))
    k.I("v_lshl_add_u32", v(AX), v(15), 4, v(14))
    k.I("v_xor_b32", v(AX + 1), 64, v(AX))
    for sl in range(1, 3):
        k.I("v_add_u32", v(AX + 2 * sl), sl * STG, v(AX))
        k.I("v_add_u32", v(AX + 2 * sl + 1), sl * STG, v(AX + 1))
    k.I("s_lshl_b32", s(39), s(27), 1)
    k.I("s_add_u32", s(39), s(39), 1 + 4 * cls)
    k.I("s_xor_b32", s(42), s(27), 1)
    k.I("s_lshl_b32", s(42), s(42), 1)
    k.I("s_add_u32", s(42), s(42), 1 + 4 * cls)
    for pr, sr in enumerate((39, 42)):
        k.I("s_lshl_b32", s(22), s(sr), 11)
        for i in range(6):
            k.I("v_add_u32", v(AP + 6 * pr + i), s(22), v(AX + i))
    k.I("v_lshrrev_b32", v(14), 4, v(2))
    k.I("v_mul_u32_u24", v(14), WBLK, v(14))
    k.I("v_bfe_u32", v(15), v(2), 2, 2)
    k.I("v_mul_u32_u24", v(15), 448, v(15))
    k.I("v_add_u32", v(14), v(14), v(15))
    k.I("v_and_b32", v(15), 3, v(2))
    k.I("v_lshl_add_u32", v(14), v(15), 3, v(14))
    k.I("s_mul_i32", s(22), s(27), 7 * 32)
    k.I("s_add_u32", s(22), s(22), XB)
    k.I("v_add_u32", v(AW), s(22), v(14))
    for sl in range(1, 3):
        k.I("v_add_u32", v(AW + sl), sl * STG, v(AW))
    k.I("v_and_b32", v(14), 15, v(2))
    k.I("v_cmp_eq_u32", s(30, 2), 0, v(14))
    k.I("s_lshl_b32", s(22), s(27), 3)
    k.I("v_add_u32", v(14), s(22), v(14))
    k.I("v_cmp_le_u32", s(44, 2), 16, v(14))
    hs = list(range(0, 4)) if cls == 0 else list(range(4, 7))
    tiles = [(s_, t) for s_ in range(7) for t in range(4)] + [(s_, "h") for s_ in hs]
    ACC = {t: 72 + 4 * n for n, t in enumerate(tiles)}
    SA = 44
    HF, W6 = 56, 64
    for i in range(12):
        k.I("v_mov_b32", v(SA + i), 0)
    for i in range(4 * len(tiles)):
        k.I("v_mov_b32", v(72 + i), 0)
    att_setup(k)

    def xf(p, t):
        return v(HF + 4 * p, 4) if t == "h" else a(40 * p + 4 * t, 4)

    def wf(p, s_, h=None):
        if s_ == 6:
            return v(W6 + 4 * p, 4) if h is None else v(W6 + 4 * p + 2 * h, 2)
        return a(40 * p + 16 + 4 * s_, 4) if h is None else a(40 * p + 16 + 4 * s_ + 2 * h, 2)

    def read_items(sl, ks, p):
        I = []
        for t in range(4):
            I.append(lambda t=t: k.I("ds_read_b128", xf(p, t), v(AP + 6 * (t // 2) + 2 * sl + ks), mods=f"offset:{(t % 2) * 2048}"))
        I.append(lambda: k.I("ds_read_b128", xf(p, "h"), v(AX + 2 * sl + ks)))
        for s_ in range(7):
            for h in range(2):
                I.append(lambda s_=s_, h=h: k.I("ds_read_b64_tr_b16", wf(p, s_, h), v(AW + sl),
                                                mods=f"offset:{ks * 4 * WBLK + h * 4 * 448 + s_ * 32}"))
        return I

    def compute(p, fill, fill2):
        mm = []
        for j in range(2):
            mm.append((v(SA + 4 * j, 4), xf(p, j), xf(p, j)))
        if cls == 1:
            mm.append((v(SA + 8, 4), xf(p, "h"), xf(p, "h")))
        pre = [lambda j=j: k.I("v_cndmask_b32", v(HF + 4 * p + j), v(HF + 4 * p + j), v(ONES), s(30, 2)) for j in range(4)]
        pre += [lambda j=j: k.I("v_cndmask_b32", v(W6 + 4 * p + j), v(W6 + 4 * p + j), v(ONES), s(44, 2)) for j in range(4)]
        fill2 = [None, None, None] + pre + fill2
        for t in tiles:
            mm.append((v(ACC[t], 4), wf(p, t[0]), xf(p, t[1])))
        n = n2 = 0
        for (ac, A_, B_) in mm:
            if "nomm" not in dbg:
                k.I(MF, ac, A_, B_, ac)
            if n < len(fill):
                fill[n]()
                n += 1
            if n2 < len(fill2):
                if fill2[n2] is not None:
                    fill2[n2]()
                n2 += 1
        assert n == len(fill) and n2 == len(fill2)

    k.I("s_waitcnt", f"vmcnt({ndma})")
    k.I("s_barrier")
    ST.stamp()
    for f in read_items(0, 0, 0):
        f()
    for f in dma_items(2):
        f()
    k.I("s_mov_b32", s(33), 0)
    k.label(f"{L}_LOOP")
    for last in range(2):
        for sl in range(3):
            k.I("s_waitcnt", "lgkmcnt(0)")
            compute(0, read_items(sl, 1, 1), [])
            nsl = (sl + 1) % 3
            if last and sl == 2:
                k.I("s_waitcnt", "lgkmcnt(0)")
                compute(1, [], [])
                continue
            k.I("s_waitcnt", f"vmcnt({ndma if not (last and sl == 1) else 0}) lgkmcnt(0)")
            k.I("s_barrier")
            compute(1, read_items(nsl, 0, 0), dma_items(sl) if ("nodma" not in dbg and not last) else [])
        if not last:
            k.I("s_add_u32", s(33), s(33), 1)
            k.I("s_cmp_lt_u32", s(33), 2)
            k.I("s_cbranch_scc1", f"{L}_LOOP")
    k.auto = True
    k.vmq, k.dsq = [], []
    ST.stamp()
    nt = 2 if cls == 0 else 3
    k.I("v_and_b32", v(14), 15, v(2))
    k.I("v_lshrrev_b32", v(17), 4, v(2))
    k.I("v_lshlrev_b32", v(15), 3, v(14))
    k.I("v_add_u32", v(15), L_ST, v(15))
    k.I("s_lshl_b32", s(22), s(39), 7)
    k.I("v_add_u32", v(20), s(22), v(15))
    k.I("s_lshl_b32", s(22), s(42), 7)
    k.I("v_add_u32", v(21), s(22), v(15))
    k.I("v_and_b32", v(18), 3, v(14))
    for r in range(1, 4):
        k.I("v_cmp_eq_u32", "vcc", r, v(18))
        for t in range(nt):
            k.I("v_cndmask_b32", v(SA + 4 * t), v(SA + 4 * t), v(SA + 4 * t + r), "vcc")
    k.I("v_lshrrev_b32", v(18), 2, v(14))
    k.I("v_cmp_eq_u32", s(46, 2), v(18), v(17))
    k.I("v_lshlrev_b32", v(18), 4, v(17))
    k.I("s_mul_i32", s(22), s(27), 7 * 64)
    k.I("s_add_u32", s(22), s(22), L_CS)
    k.I("v_add_u32", v(18), s(22), v(18))
    k.I("s_lshl_b32", s(22), s(27), 2)
    k.I("v_add_u32", v(25), s(22), v(17))
    k.I("v_cmp_eq_u32", s(40, 2), 6, v(25))
    k.I("s_lshl_b32", s(22), s(27), 1)
    k.I("v_add_u32", v(25), s(22), v(17))
    k.I("v_cmp_gt_u32", s(44, 2), 4, v(25))
    k.I("s_barrier")
    k.I("s_mov_b64", "exec", s(46, 2))
    k.I("ds_write_b32", v(20), v(SA), mods="offset:4")
    k.I("ds_write_b32", v(20), v(SA + 4), mods="offset:132")
    if cls == 1:
        k.I("ds_write_b32", v(15), v(SA + 8), mods="offset:4")
    k.I("s_mov_b64", "exec", s(30, 2))
    for s_ in hs:
        k.I("ds_write_b128", v(18), v(ACC[(s_, "h")], 4), mods=f"offset:{64 * s_}")
    k.I("s_cmp_eq_u32", s(27), 0)
    k.I("s_cbranch_scc1", f"{L}_NS")
    k.I("s_mov_b64", "exec", s(40, 2))
    for t in range(4):
        k.I("ds_write_b32", v(20 + t // 2), v(ACC[(6, t)]), mods=f"offset:{128 * (t % 2)}")
    if cls == 1:
        k.I("ds_write_b32", v(15), v(ACC[(6, "h")]))
    k.label(f"{L}_NS")
    k.I("s_mov_b64", "exec", -1)
    k.I("v_mov_b32", v(26), hex(f32bits(1.0 / 576)))
    k.I("v_mov_b32", v(27), hex(f32bits(1.0 / 576)))
    k.I("v_mul_u32_u24", v(22), PQ, v(14))
    k.I("v_lshl_add_u32", v(22), v(17), 3, v(22))
    k.I("s_mul_i32", s(22), s(27), 7 * 32)
    k.I("v_add_u32", v(22), s(22), v(22))
    k.I("s_mul_i32", s(22), s(39), 16 * PQ)
    k.I("v_add_u32", v(23), s(22), v(22))
    k.I("s_mul_i32", s(22), s(42), 16 * PQ)
    k.I("v_add_u32", v(24), s(22), v(22))
    k.dsq.append((-2, set()))
    k.wait(lg=0)
    k.I("s_barrier")
    STT = {0: 28, 1: 30, 2: 32, 3: 34, "h": 36}
    CSR = 40
    for t in range(4):
        k.I("ds_read_b64", v(STT[t], 2), v(20 + t // 2), mods=f"offset:{128 * (t % 2)}")
    k.I("ds_read_b64", v(STT["h"], 2), v(15))
    for s_ in range(7):
        k.I("ds_read_b128", v(CSR + 4 * s_, 4), v(18), mods=f"offset:{64 * s_}")
    B = list(STT.values())
    for b in B:
        k.I("v_pk_mul_f32", v(b, 2), v(b, 2), v(26, 2))
    for b in B:
        k.I("v_fma_f32", v(b + 1), f"-{v(b)}", v(b), v(b + 1))
    for b in B:
        k.I("v_max_f32", v(b + 1), 0, v(b + 1))
    for b in B:
        k.I("v_add_f32", v(b + 1), hex(f32bits(1e-5)), v(b + 1))
    for b in B:
        k.I("v_rsq_f32", v(b + 1), v(b + 1))
    for b in B:
        k.I("v_mul_f32", v(b), f"-{v(b)}", v(b + 1))
    for n, t in enumerate(tiles):
        s_, T = t
        x = ACC[t]
        cs = CSR + 4 * s_
        if "nopk" not in dbg:
            for hh in range(2):
                k.I("v_pk_mul_f32", v(x + 2 * hh, 2), v(x + 2 * hh, 2), v(STT[T], 2), mods="op_sel:[0,1] op_sel_hi:[1,1]")
            for hh in range(2):
                k.I("v_pk_fma_f32", v(x + 2 * hh, 2), v(cs + 2 * hh, 2), v(STT[T], 2), v(x + 2 * hh, 2),
                    mods="op_sel:[0,0,0] op_sel_hi:[1,0,1]")
        else:
            for r in range(4):
                k.I("v_mul_f32", v(x + r), v(STT[T] + 1), v(x + r))
            for r in range(4):
                k.I("v_fmac_f32", v(x + r), v(STT[T]), v(cs + r))
        k.I("v_cvt_pk_bf16_f32", v(x), v(x), v(x + 1))
        k.I("v_cvt_pk_bf16_f32", v(x + 1), v(x + 2), v(x + 3))
        if s_ == 6:
            k.I("s_mov_b64", "exec", s(44, 2))
        if T == "h":
            k.I("ds_write_b64", v(22), v(x, 2), mods=f"offset:{s_ * 32}")
        else:
            k.I("ds_write_b64", v(23 + T // 2), v(x, 2), mods=f"offset:{(T % 2) * 16 * PQ + s_ * 32}")
        if s_ == 6:
            k.I("s_mov_b64", "exec", -1)


def attention(k, U, dbg):
    QF, KF, VF = 20, 52, 100
    SS = 164
    MX = 4
    c0 = [4 * (18 * h // 4) for h in range(4)]
    for t in range(3):
        for h in range(4):
            for hf in range(2):
                k.I("ds_read_b64", v(KF + 16 * t + 4 * h + 2 * hf, 2), v(AKP if t == 0 else AQ),
                    mods=f"offset:{(t - 1) * 16 * PQ * (t > 0) + 144 + 2 * c0[h] + 8 * hf}")
        if t >= 1:
            for h in range(4):
                for hf in range(2):
                    k.I("ds_read_b64", v(QF + 16 * (t - 1) + 4 * h + 2 * hf, 2), v(AQ),
                        mods=f"offset:{(t - 1) * 16 * PQ + 2 * c0[h] + 8 * hf}")
    k.I("s_lshl_b32", s(22), s(20), 3)
    k.I("s_lshl_b32", s(23), s(27), 2)
    k.I("s_add_u32", s(22), s(22), s(23))
    k.I("s_mul_i32", s(22), s(22), 72 * 256)
    k.I("s_mul_i32", s(23), s(21), 9 * 256)
    k.I("s_add_u32", s(22), s(22), s(23))
    k.I("s_add_u32", s(22), s(22), hex(WS_O))
    k.I("s_add_u32", s(23), s(22), 2 * 72 * 256)
    k.I("v_cmp_gt_u32", s(40, 2), 16, v(2))
    k.I("s_mov_b32", s(24), hex(f32bits(LOG2E * 18 ** -0.5)))

    def v_reads(t):
        for h in range(4):
            for rt in range(2):
                for kt in range(2):
                    tt = t + kt
                    k.I("ds_read_b64_tr_b16", v(VF + 32 * t + 8 * h + 4 * rt + 2 * kt, 2), v(AVP if tt == 0 else AV),
                        mods=f"offset:{(tt - 1) * 16 * PQ * (tt > 0) + 288 + 2 * c0[h] + 32 * rt}")
    for t in range(2):
        for h in range(4):
            for e in range(4):
                x = QF + 16 * t + 4 * h + e
                k.I("v_and_b32", v(x), v(QM + 4 * (h % 2) + e), v(x))
        for h in range(4):
            k.I(MF, v(SS + 8 * h, 4), v(KF + 16 * t + 4 * h, 4), v(QF + 16 * t + 4 * h, 4), v(B0 if t == 0 else BP, 4))
            k.I(MF, v(SS + 8 * h + 4, 4), v(KF + 16 * (t + 1) + 4 * h, 4), v(QF + 16 * t + 4 * h, 4), v(BC, 4))
        v_reads(t)
        for h in range(4):
            b = SS + 8 * h
            k.I("v_max3_f32", v(MX + h), v(b), v(b + 1), v(b + 2))
        for h in range(4):
            b = SS + 8 * h
            k.I("v_max3_f32", v(MX + h), v(MX + h), v(b + 3), v(b + 4))
        for h in range(4):
            b = SS + 8 * h
            k.I("v_max3_f32", v(MX + 4 + h), v(b + 5), v(b + 6), v(b + 7))
        for h in range(4):
            k.I("v_max_f32", v(MX + h), v(MX + h), v(MX + 4 + h))
        reduce_groups(k, [MX + h for h in range(4)], MX + 4, op="v_max_f32")
        for h in range(4):
            k.I("v_mul_f32", v(MX + h), s(24), v(MX + h))
        OA = QF + 16 * t
        OB = KF + 16 * t
        for h in range(4):
            for e in range(8):
                k.I("v_fma_f32", v(SS + 8 * h + e), v(SS + 8 * h + e), s(24), f"-{v(MX + h)}")
            for e in range(8):
                k.I("v_exp_f32", v(SS + 8 * h + e), v(SS + 8 * h + e))
            for e in range(4):
                k.I("v_cvt_pk_bf16_f32", v(SS + 8 * h + e), v(SS + 8 * h + 2 * e), v(SS + 8 * h + 2 * e + 1))
            if h > 0:
                hp = h - 1
                k.I(MF, v(SS + 8 * hp + 4, 4), v(ONES, 4), v(SS + 8 * hp, 4), 0)
                k.I(MF, v(OA + 4 * hp, 4), v(VF + 32 * t + 8 * hp, 4), v(SS + 8 * hp, 4), 0)
                k.I(MF, v(OB + 4 * hp, 4), v(VF + 32 * t + 8 * hp + 4, 4), v(SS + 8 * hp, 4), 0)
        hp = 3
        k.I(MF, v(SS + 8 * hp + 4, 4), v(ONES, 4), v(SS + 8 * hp, 4), 0)
        k.I(MF, v(OA + 4 * hp, 4), v(VF + 32 * t + 8 * hp, 4), v(SS + 8 * hp, 4), 0)
        k.I(MF, v(OB + 4 * hp, 4), v(VF + 32 * t + 8 * hp + 4, 4), v(SS + 8 * hp, 4), 0)
        for h in range(4):
            k.I("v_rcp_f32", v(MX + h), v(SS + 8 * h + 4))
            if h:
                g = h - 1
                for r in range(4):
                    k.I("v_mul_f32", v(OA + 4 * g + r), v(MX + g), v(OA + 4 * g + r))
                for r in range(2 if g % 2 == 0 else 4):
                    k.I("v_mul_f32", v(OB + 4 * g + r), v(MX + g), v(OB + 4 * g + r))
        g = 3
        for r in range(4):
            k.I("v_mul_f32", v(OA + 4 * g + r), v(MX + g), v(OA + 4 * g + r))
        for r in range(4):
            k.I("v_mul_f32", v(OB + 4 * g + r), v(MX + g), v(OB + 4 * g + r))
        for hp in range(2):
            e_, o_ = 2 * hp, 2 * hp + 1
            for r in range(2):
                k.I("v_cndmask_b32", v(OA + 4 * o_ + r), v(OA + 4 * o_ + r), v(OB + 4 * e_ + r), s(40, 2))
            for (reg, G) in ((OA + 4 * e_, 9 * hp), (OA + 4 * o_, 9 * hp + 4), (OB + 4 * o_, 9 * hp + 8)):
                k.I("v_cvt_pk_bf16_f32", v(reg), v(reg), v(reg + 1))
                k.I("v_cvt_pk_bf16_f32", v(reg + 1), v(reg + 2), v(reg + 3))
                last = G % 9 == 8
                if last:
                    k.I("s_mov_b64", "exec", s(40, 2))
                k.I("buffer_store_dwordx2", v(reg, 2), v(AO + G % 2), s(16, 4), s(22 + t),
                    mods=f"offen offset:{(G // 2) * 256} sc1")
                if last:
                    k.I("s_mov_b64", "exec", -1)
```

```python
from common import *
from k_frag import f32bits
import k_prep, k_a2
from k_prep import PrepRegs
from k_a2 import reduce_groups

MF = "v_mfma_f32_16x16x32_bf16"
BLK = 2432
LDS_TOTAL = 64 * BLK + 512
CODE_BYTES = 45056


def build_ab(dbg=""):
    k = Kern("kab_kernel")
    ST = Stamps(k, 64, "stamp" in dbg)
    k.I("s_cmp_ge_u32", s(2), 256)
    k.I("s_cbranch_scc1", "KAB_END")
    ST.stamp()
    k.I("s_load_dwordx4", s(4, 4), s(0, 2), KA_X)
    k.I("s_load_dwordx4", s(36, 4), s(0, 2), KA_DBG)
    k.I("s_load_dwordx2", s(40, 2), s(0, 2), KA_WO)
    k.I("s_load_dwordx4", s(44, 4), s(0, 2), KA_WG)
    k.I("s_load_dwordx2", s(42, 2), s(0, 2), KA_WD)
    k.I("v_lshrrev_b32", v(1), 6, v(0))
    k.I("v_and_b32", v(2), 63, v(0))
    k.I("v_readfirstlane_b32", s(3), v(1))
    k.I("s_lshr_b32", s(29), s(2), 4)
    k.I("s_bfe_u32", s(34), s(2), hex((2 << 16) | 1))
    k.I("s_and_b32", s(35), s(2), 1)
    k.I("v_mov_b32", v(3), 0)
    k.wait(lg=0)
    srd(k, 8, 4, S * D * 2)
    srd(k, 16, 38, WS_SIZE)
    srd(k, 48, 36, 256)
    k.I("s_bitcmp1_b32", s(2), 3)
    k.I("s_cbranch_scc1", "KAB_P" if "nop" not in dbg else "KAB_END")
    if "nop" in dbg:
        k.I("s_cbranch_scc1", "KAB_P")
    srd(k, 12, 6, D * 3 * D * 2)
    k.I("s_lshl_b32", s(20), s(34), 2)
    k.I("s_and_b32", s(21), s(29), 3)
    k.I("s_add_u32", s(20), s(20), s(21))
    k.I("s_lshl_b32", s(21), s(35), 2)
    k.I("s_lshr_b32", s(22), s(29), 2)
    k.I("s_add_u32", s(21), s(21), s(22))
    k_a2.emit_a(k, "KAB", ST, dbg)
    ST.stamp()
    k.I("buffer_load_dwordx2", v(12, 2), v(3), s(48, 4), 0, mods="offen sc1")
    k.wait(vm=0)
    k.I("s_barrier")
    ST.stamp()
    k.I("s_cmp_lg_u32", s(3), 0)
    k.I("s_cbranch_scc1", "KAB_ADONE")
    k.I("s_mov_b32", s(33), 20000 if "nop" not in dbg else 2)
    k.label("KAB_NL")
    k.I("v_readfirstlane_b32", s(22), v(12))
    k.I("s_cmp_lg_u32", s(22), 0)
    k.I("s_cbranch_scc1", "KAB_NOK")
    k.I("s_sub_u32", s(33), s(33), 1)
    k.I("s_cmp_eq_u32", s(33), 0)
    k.I("s_cbranch_scc1", "KAB_NOK")
    k.I("buffer_load_dwordx2", v(12, 2), v(3), s(48, 4), 0, mods="offen sc1")
    k.wait(vm=0)
    k.I("s_branch", "KAB_NL")
    k.label("KAB_NOK")
    k.I("s_lshl_b32", s(22), s(20), 7)
    k.I("s_lshl_b32", s(23), s(21), 3)
    k.I("s_add_u32", s(22), s(22), s(23))
    k.I("s_add_u32", s(22), s(22), hex(WS_F0))
    k.I("buffer_store_dwordx2", v(12, 2), v(3), s(16, 4), s(22), mods="offen sc1")
    k.label("KAB_ADONE")
    ST.dump(16, 100, 3)
    k.I("s_endpgm")

    k.label("KAB_P")
    k.vmq, k.dsq = [], []
    ST.n = 1 if ST.on else 0
    srd(k, 12, 40, D * D * 2)
    srd(k, 52, 44, D * F * 2)
    srd(k, 56, 46, D * F * 2)
    srd(k, 60, 42, D * F * 2)
    k.I("s_cmp_lg_u32", s(2), 8)
    k.I("s_cbranch_scc1", "KAB_NN")
    k.I("s_cmp_lg_u32", s(3), 0)
    k.I("s_cbranch_scc1", "KAB_NN")
    k.I("s_memrealtime", s(22, 2))
    k.wait(lg=0)
    k.I("s_or_b32", s(22), s(22), 1)
    k.I("v_mov_b32", v(4), s(22))
    k.I("v_mov_b32", v(5), s(23))
    k.I("buffer_store_dwordx2", v(4, 2), v(3), s(48, 4), 0, mods="offen sc1")
    k.vmq.pop()
    k.label("KAB_NN")
    k.I("s_and_b32", s(20), s(2), 7)
    k.I("s_lshl_b32", s(20), s(20), 4)
    k.I("s_add_u32", s(20), s(20), s(29))
    k.I("s_lshl_b32", s(21), s(20), 2)
    k.I("s_add_u32", s(21), s(21), s(3))
    k.I("s_mul_i32", s(22), s(3), 36864)
    k.I("s_add_u32", s(23), s(22), 9216)
    k.I("s_add_u32", s(26), s(22), 18432)
    k.I("s_add_u32", s(27), s(22), 27648)
    PR = PrepRegs(sb=30, vb=8, srd_ws=16, srd_g=52, srd_u=56, lane=2)
    PW = PrepRegs(sb=30, vb=48, srd_ws=16, lane=2)

    def gdec(su, skb, sg):
        k.I("s_mul_i32", s(skb), s(su), 911)
        k.I("s_lshr_b32", s(skb), s(skb), 16)
        k.I("s_mul_i32", s(sg), s(skb), 72)
        k.I("s_sub_u32", s(sg), s(su), s(sg))
    gdec(21, 24, 25)
    k_prep.g_setup(k, PR, 22)
    t0 = k_prep.g_load(k, PR, 22, 25, 24, 0)
    t1 = k_prep.g_load(k, PR, 23, 25, 24, 1)

    def g_first():
        k_prep.g_process(k, PR, 25, 24, 0, t0)
        k.I("v_add_u32", v(PR.vb + 1), 9216, v(PR.vb + 1))
        k_prep.g_process(k, PR, 25, 24, 1, t1)
        k_prep.g_finish(k, PR, 25, 24)
    save = list(k.vmq)
    k.I("s_cmp_ge_u32", s(21), 136)
    k.I("s_cbranch_scc1", "KAB_PW")
    k.I("s_add_u32", s(28), s(21), 512)
    gdec(28, 32, 33)
    t2 = k_prep.g_load(k, PR, 26, 33, 32, 0)
    t3 = k_prep.g_load(k, PR, 27, 33, 32, 1)
    g_first()
    for i in range(8):
        k.I("v_mov_b32", v(PR.vb + 24 + i), 0)
    k.I("v_add_u32", v(PR.vb + 1), 9216, v(PR.vb + 1))
    k_prep.g_process(k, PR, 33, 32, 0, t2)
    k.I("v_add_u32", v(PR.vb + 1), 9216, v(PR.vb + 1))
    k_prep.g_process(k, PR, 33, 32, 1, t3)
    k_prep.g_finish(k, PR, 33, 32)
    k.I("s_branch", "KAB_PDONE")
    k.label("KAB_PW")
    k.vmq, k.dsq = list(save), []
    k.I("s_cmp_ge_u32", s(21), 424)
    k.I("s_cbranch_scc1", "KAB_PX")
    k.I("s_sub_u32", s(32), s(21), 136)
    k.I("s_lshl_b32", s(32), s(32), 1)
    k.I("s_add_u32", s(33), s(32), 1)
    k_prep.w_setup(k, PW, 26)
    t2 = k_prep.w_load(k, PW, 26, 32, 60)
    t3 = k_prep.w_load(k, PW, 27, 33, 60)
    g_first()
    k_prep.w_process16(k, PW, 32, WS_WD, t2)
    k.I("v_add_u32", v(PW.vb + 1), 9216, v(PW.vb + 1))
    k_prep.w_process16(k, PW, 33, WS_WD, t3)
    k.I("s_branch", "KAB_PDONE")
    k.label("KAB_PX")
    k.vmq, k.dsq = list(save), []
    g_first()
    k.I("s_sub_u32", s(24), s(21), 424)
    k.I("s_cmp_ge_u32", s(24), 64)
    k.I("s_cbranch_scc1", "KAB_PDONE")
    k.I("s_lshl_b32", s(25), s(24), 10)
    k.I("s_lshr_b32", s(24), s(24), 5)
    k.I("s_lshl_b32", s(24), s(24), 15)
    k.I("s_add_u32", s(25), s(25), s(24))
    k.I("s_add_u32", s(25), s(25), hex(WS_F1))
    k.I("v_lshlrev_b32", v(8), 4, v(2))
    for i in range(4):
        k.I("v_mov_b32", v(12 + i), 0)
    k.I("buffer_store_dwordx4", v(12, 4), v(8), s(16, 4), s(25), mods="offen")
    k.label("KAB_PDONE")
    k.vmq, k.dsq = [], [(-2, set())]
    k.wait(lg=0)
    k.I("s_barrier")
    ST.stamp()
    k.I("s_lshl_b32", s(20), s(34), 3)
    k.I("s_and_b32", s(21), s(29), 7)
    k.I("s_add_u32", s(20), s(20), s(21))
    k.I("s_lshl_b32", s(21), s(35), 1)
    k.I("s_lshr_b32", s(22), s(29), 3)
    k.I("s_add_u32", s(21), s(21), s(22))
    k.I("s_mul_i32", s(24), s(21), 288)
    k.I("s_lshl_b32", s(25), s(3), 10)

    def wo_dma(row0, ninstr_total):
        tok = None
        k.auto = False
        for n in range((ninstr_total + 3) // 4):
            cond = (n + 1) * 4 > ninstr_total
            if cond:
                k.I("s_cmp_ge_u32", s(3), ninstr_total - 4 * n)
                k.I("s_cbranch_scc1", f"KAB_WO{row0}")
            k.I("v_add_u32", v(8), 256 * n, v(0))
            k.I("v_mul_u32_u24", v(9), 110377, v(8))
            k.I("v_lshrrev_b32", v(9), 24, v(9))
            k.I("v_mul_u32_u24", v(10), 152, v(9))
            k.I("v_sub_u32", v(8), v(8), v(10))
            k.I("v_min_u32", v(8), 143, v(8))
            k.I("v_mul_u32_u24", v(10), 57, v(8))
            k.I("v_lshrrev_b32", v(10), 10, v(10))
            k.I("v_lshl_add_u32", v(9), v(9), 3, v(10))
            k.I("v_mul_u32_u24", v(9), 1152, v(9))
            k.I("v_mul_u32_u24", v(10), 18, v(10))
            k.I("v_sub_u32", v(8), v(8), v(10))
            k.I("v_lshl_add_u32", v(9), v(8), 4, v(9))
            k.I("s_add_u32", "m0", s(25), n * 4096)
            k.I("buffer_load_dwordx4", v(9), s(12, 4), s(24), mods="offen lds")
        k.label(f"KAB_WO{row0}")
        k.auto = True
        k.wait(vm=0)
        k.I("s_barrier")

    k.I("v_lshrrev_b32", v(12), 4, v(2))
    k.I("v_mul_u32_u24", v(12), BLK, v(12))
    k.I("v_bfe_u32", v(13), v(2), 2, 2)
    k.I("v_mul_u32_u24", v(13), 288, v(13))
    k.I("v_add_u32", v(12), v(12), v(13))
    k.I("v_and_b32", v(13), 3, v(2))
    k.I("v_lshl_add_u32", v(12), v(13), 3, v(12))
    k.I("v_add_u32", v(13), 6 * 4 * BLK, v(12))
    k.I("v_add_u32", v(14), 12 * 4 * BLK, v(12))
    wo_dma(0, 19)
    WR = 112
    for kb in range(2):
        for r in range(9):
            for h in range(2):
                k.I("ds_read_b64_tr_b16", v(WR + 4 * (9 * kb + r) + 2 * h, 2), v(12),
                    mods=f"offset:{kb * 4 * BLK + h * 1152 + r * 32}")
    k.wait(lg=0)
    k.I("s_barrier")
    k.I("s_add_u32", s(24), s(24), 64 * 1152)
    wo_dma(64, 152)
    k.I("s_getpc_b64", s(30, 2))
    k.label("KAB_PC")
    k.raw("    s_sub_u32 s30, s30, KAB_PC-kcd_kernel")
    k.raw("    s_subb_u32 s31, s31, 0")
    k.I("v_lshlrev_b32", v(8), 4, v(0))
    for i in range(CODE_BYTES // 4096):
        k.I("global_load_dwordx4", v(20 + 4 * (i % 4), 4), v(8), s(30, 2))
        k.I("v_add_u32", v(8), 4096, v(8))
    k.wait(vm=0)
    k.label("KAB_B")
    k.vmq, k.dsq = [], []
    ST.stamp()
    k.I("s_lshl_b32", s(22), s(20), 2)
    k.I("s_add_u32", s(22), s(22), s(3))
    k.I("v_and_b32", v(8), 15, v(2))
    k.I("v_lshrrev_b32", v(9), 4, v(2))
    k.I("v_mul_u32_u24", v(10), 1152, v(8))
    k.I("v_lshl_add_u32", v(10), v(9), 3, v(10))
    k.I("s_mul_i32", s(23), s(22), 16 * 1152)
    k.I("s_mul_i32", s(24), s(21), 288)
    k.I("s_add_u32", s(23), s(23), s(24))
    RES = 184
    for r in range(9):
        k.I("buffer_load_dwordx2", v(RES + 2 * r, 2), v(10), s(8, 4), s(23), mods=f"offen offset:{32 * r}")
    k.I("s_lshr_b32", s(24), s(20), 1)
    k.I("s_lshl_b32", s(24), s(24), 7)
    k.I("s_add_u32", s(24), s(24), hex(WS_F0))
    k.I("v_and_b32", v(11), 7, v(2))
    k.I("v_lshlrev_b32", v(11), 3, v(11))
    k.I("s_mov_b32", s(33), 40000)
    k.label("KAB_PL")
    k.I("buffer_load_dwordx2", v(4, 2), v(3), s(48, 4), 0, mods="offen sc1")
    k.I("buffer_load_dwordx2", v(6, 2), v(11), s(16, 4), s(24), mods="offen sc1")
    k.wait(vm=0)
    k.I("v_cmp_eq_u64", "vcc", v(4, 2), v(6, 2))
    k.I("v_cmp_ne_u32", s(30, 2), 0, v(4))
    k.I("s_and_b64", "vcc", "vcc", s(30, 2))
    k.I("s_cmp_eq_u64", "vcc", -1)
    k.I("s_cbranch_scc1", "KAB_POK")
    k.I("s_sub_u32", s(33), s(33), 1)
    k.I("s_cmp_eq_u32", s(33), 0)
    k.I("s_cbranch_scc1", "KAB_POK")
    k.I("s_sleep", 2)
    k.I("s_branch", "KAB_PL")
    k.label("KAB_POK")
    ST.stamp()
    OF = 40
    k.I("v_lshlrev_b32", v(11), 4, v(2))
    k.I("s_mul_i32", s(24), s(22), 18 * 1024)
    k.I("s_add_u32", s(24), s(24), hex(WS_O))
    for kb in range(18):
        if kb % 4 == 0 and kb:
            k.I("s_add_u32", s(24), s(24), 4096)
        k.I("buffer_load_dwordx4", v(OF + 4 * kb, 4), v(11), s(16, 4), s(24), mods=f"offen offset:{(kb % 4) * 1024} sc1")
    BACC = 204
    AF = 16
    seq = [(kb, r) for kb in range(2, 18) for r in range(9)]

    def a_read(n):
        kb, r = seq[n]
        kk = kb - 2
        d = AF + 4 * (n % 6)
        for h in range(2):
            k.I("ds_read_b64_tr_b16", v(d + 2 * h, 2), v(12 + kk // 6),
                mods=f"offset:{(kk % 6) * 4 * BLK + h * 1152 + r * 32}")
    for n in range(5):
        a_read(n)
    for kb in range(2):
        for r in range(9):
            ac = v(BACC + 4 * r, 4)
            k.I(MF, ac, v(WR + 4 * (9 * kb + r), 4), v(OF + 4 * kb, 4), ac if kb else 0)
    for n, (kb, r) in enumerate(seq):
        ac = v(BACC + 4 * r, 4)
        k.I(MF, ac, v(AF + 4 * (n % 6), 4), v(OF + 4 * kb, 4), ac)
        if n + 5 < len(seq):
            a_read(n + 5)
    ST.stamp()
    k.I("v_lshlrev_b32", v(10), 4, v(8))
    k.I("v_lshrrev_b32", v(11), 1, v(9))
    k.I("v_lshl_add_u32", v(10), v(11), 8, v(10))
    k.I("v_and_b32", v(11), 1, v(9))
    k.I("v_lshl_add_u32", v(10), v(11), 3, v(10))
    k.I("s_mul_i32", s(23), s(22), 72 * 256)
    k.I("s_mul_i32", s(24), s(21), 18 * 256)
    k.I("s_add_u32", s(23), s(23), s(24))
    k.I("s_add_u32", s(23), s(23), hex(WS_H))
    k.I("s_add_u32", s(24), s(23), 4096)
    k.I("v_mov_b32", v(4), 0)
    k.I("v_mov_b32", v(5), 0)
    k.I("v_mov_b32", v(6), "0x3f803f80")
    for r in range(9):
        x = BACC + 4 * r
        t = 16 + 4 * (r % 2)
        for i in range(2):
            k.I("v_lshlrev_b32", v(t + 2 * i), 16, v(RES + 2 * r + i))
            k.I("v_and_b32", v(t + 2 * i + 1), "0xffff0000", v(RES + 2 * r + i))
        for i in range(4):
            k.I("v_add_f32", v(x + i), v(x + i), v(t + i))
        k.I("v_cvt_pk_bf16_f32", v(x), v(x), v(x + 1))
        k.I("v_cvt_pk_bf16_f32", v(x + 1), v(x + 2), v(x + 3))
        k.I("buffer_store_dwordx2", v(x, 2), v(10), s(16, 4), s(23) if r < 8 else s(24), mods=f"offen offset:{(r % 8) * 512}")
        for i in range(2):
            k.I("v_dot2c_f32_bf16", v(4), v(x + i), v(6))
            k.I("v_dot2c_f32_bf16", v(5), v(x + i), v(x + i))
    reduce_groups(k, [4, 5], 24)
    k.I("v_lshlrev_b32", v(10), 5, v(8))
    k.I("s_lshl_b32", s(23), s(22), 9)
    k.I("s_lshl_b32", s(24), s(21), 3)
    k.I("s_add_u32", s(23), s(23), s(24))
    k.I("s_add_u32", s(23), s(23), hex(WS_ST))
    k.I("buffer_store_dwordx2", v(4, 2), v(10), s(16, 4), s(23), mods="offen")
    ST.stamp()
    ST.dump(16, 100, 3)
    k.label("KAB_END")
    k.I("s_endpgm")
    return k, "grid=(256,1,1) block=(256,1,1) lds=%d" % LDS_TOTAL
```

```python
from common import *
from k_frag import f32bits
from collections import deque

RING = 6
STAGE = 24576
LDS_CS = RING * STAGE
LDS_TOTAL = LDS_CS + 2304
BUF = 73728
MF = "v_mfma_f32_16x16x32_bf16"
LOG2E = 1.4426950408889634
NSTAT = 8


class Pool:
    def __init__(self, vlo, vhi, alo, ahi):
        self.v = deque(range(vlo, vhi, 4))
        self.a = deque(range(alo, ahi, 4))

    def get(self, kind="any"):
        if kind == "v" or (kind == "any" and not self.a):
            return ("v", self.v.popleft())
        return ("a", self.a.popleft())

    def put(self, r):
        (self.v if r[0] == "v" else self.a).append(r[1])

    def n(self):
        return len(self.v) + len(self.a)


def r4(r):
    return R(r[0], r[1], 4)


def build_cd(dbg="", NA=7):
    k = Kern("kcd_kernel")
    ST = Stamps(k, 64, "stamp" in dbg)
    if "stC" in dbg or "stD" in dbg:
        ST2 = Stamps(k, 64, True)
    else:
        ST2 = Stamps(k, 64, False)
    SC = "sc1" if "nosc" not in dbg else ""
    k.I("s_cmp_ge_u32", s(2), 256)
    k.I("s_cbranch_scc1", "KCD_END")
    ST.stamp()
    k.I("s_load_dwordx2", s(4, 2), s(0, 2), KA_WS)
    k.I("s_load_dwordx2", s(6, 2), s(0, 2), KA_OUT)
    k.I("v_lshrrev_b32", v(1), 6, v(0))
    k.I("v_and_b32", v(2), 63, v(0))
    k.I("v_readfirstlane_b32", s(3), v(1))
    k.I("s_and_b32", s(20), s(2), 7)
    k.I("s_lshl_b32", s(20), s(20), 1)
    k.I("s_bfe_u32", s(21), s(2), hex((1 << 16) | 3))
    k.I("s_add_u32", s(20), s(20), s(21))
    k.I("s_lshr_b32", s(21), s(2), 4)
    k.I("s_lshr_b32", s(16), s(20), 2)
    k.I("s_and_b32", s(17), s(20), 3)
    k.I("v_lshlrev_b32", v(3), 4, v(2))
    k.I("s_lshl_b32", s(22), s(21), 3)
    k.I("s_lshl_b32", s(23), s(3), 1)
    k.I("s_add_u32", s(22), s(22), s(23))
    k.I("s_mul_i32", s(24), s(20), 9 * 18 * 4096)
    k.I("s_mul_i32", s(25), s(3), 6144)
    k.I("s_add_u32", s(24), s(24), s(25))
    k.I("s_add_u32", s(24), s(24), hex(WS_WGU))
    k.I("s_mul_i32", s(26), s(22), 18 * 1024)
    k.I("s_add_u32", s(26), s(26), hex(WS_H))
    k.I("s_add_u32", s(27), s(26), 18 * 1024)
    k.wait(lg=0)
    srd(k, 8, 4, WS_SIZE)
    srd(k, 12, 6, S * D * 2)

    P = Pool(28, 256, 0, 256)
    X = {(tt, kb): P.get("a") for kb in range(18) for tt in range(2)}
    ACC = {(st, tile, tt): P.get("v") for st in range(2) for tile in range(4) for tt in range(2)}
    CS = [P.get("v") for _ in range(4)]
    WF = {(b, tile): P.get("a") for b in range(3) for tile in range(4)}

    dma_tok = {}
    wtok = {}

    def dma_items(st):
        slot = st % RING

        def one(i):
            def f():
                if i == 0:
                    k.I("s_add_u32", "m0", s(25), slot * STAGE)
                if i == 4:
                    k.I("s_add_u32", "m0", s(25), slot * STAGE + 4096)
                    k.I("s_add_u32", s(30), s(24), 4096)
                t = k.I("buffer_load_dwordx4", v(3), s(8, 4), s(24) if i < 4 else s(30), mods=f"offen offset:{(i % 4) * 1024} lds")
                if i == 5:
                    dma_tok[st] = t
                    k.I("s_add_u32", s(24), s(24), STAGE)
            return f
        return [one(i) for i in range(6)]

    def x_items(kb0, kb1):
        L = []
        for kb in range(kb0, kb1):
            for tt in range(2):
                def f(kb=kb, tt=tt):
                    if kb % 4 == 0 and kb:
                        k.I("s_add_u32", s(26 + tt), s(26 + tt), 4096)
                    k.I("buffer_load_dwordx4", r4(X[(tt, kb)]), v(3), s(8, 4), s(26 + tt), mods=f"offen offset:{(kb % 4) * 1024}")
                L.append(f)
        return L

    for f in dma_items(0):
        f()
    for f in x_items(0, 6):
        f()
    k.I("v_add_u32", v(4), 2 * STAGE, v(3))
    k.I("v_add_u32", v(5), 4 * STAGE, v(3))
    k.I("v_add_u32", v(14), 144 * 1024, v(3))
    k.I("v_mov_b32", v(15), 0)
    k.I("s_mul_i32", s(28), s(22), 144 * 1024)
    k.I("s_mul_i32", s(29), s(20), 9 * 1024)
    k.I("s_add_u32", s(28), s(28), s(29))
    k.I("s_add_u32", s(28), s(28), hex(WS_HH))
    k.I("s_mul_i32", s(53), s(16), 36)
    k.I("s_mul_i32", s(54), s(3), 9)
    k.I("s_add_u32", s(53), s(53), s(54))
    k.I("s_mul_i32", s(32), s(53), 36864)
    k.I("s_mul_i32", s(54), s(17), 9216)
    k.I("s_add_u32", s(32), s(32), s(54))
    k.I("s_add_u32", s(32), s(32), hex(WS_WD))
    k.I("s_lshl_b32", s(54), s(21), 2)
    k.I("s_add_u32", s(55), s(54), s(16))
    k.I("s_lshl_b32", s(55), s(55), 2)
    k.I("s_add_u32", s(40), s(55), s(3))
    k.I("s_lshl_b32", s(40), s(40), 7)
    k.I("s_add_u32", s(40), s(40), hex(WS_F1))
    k.I("s_add_u32", s(44), s(55), s(17))
    k.I("s_lshl_b32", s(44), s(44), 7)
    k.I("s_lshl_b32", s(56), s(3), 2)
    k.I("s_add_u32", s(44), s(44), s(56))
    k.I("s_add_u32", s(44), s(44), hex(WS_F1))
    k.I("s_add_u32", s(55), s(54), s(17))
    k.I("s_lshl_b32", s(55), s(55), 2)
    for p in range(4):
        k.I("s_add_u32", s(56), s(16), p + 1)
        k.I("s_and_b32", s(56), s(56), 3)
        k.I("s_lshl_b32", s(57), s(21), 2)
        k.I("s_add_u32", s(57), s(57), s(56))
        k.I("s_mul_i32", s(57), s(57), 288)
        k.I("s_add_u32", s(57), s(57), s(53))
        k.I("s_lshl_b32", s(57), s(57), 10)
        k.I("s_add_u32", s(36 + p), s(57), hex(WS_HH))
        k.I("s_add_u32", s(57), s(55), s(56))
        if p < 3:
            k.I("s_lshl_b32", s(58), s(57), 2)
            k.I("s_add_u32", s(58), s(58), s(16))
            k.I("s_mul_i32", s(58), s(58), 18432)
            k.I("s_add_u32", s(45 + p), s(58), hex(WS_PART))
            k.I("s_lshl_b32", s(58), s(57), 5)
            k.I("s_lshl_b32", s(59), s(3), 2)
            k.I("s_add_u32", s(58), s(58), s(59))
            k.I("s_add_u32", s(58), s(58), s(16))
            k.I("s_lshl_b32", s(58), s(58), 2)
            k.I("s_add_u32", s(48 + p), s(58), hex(WS_F2))
        else:
            k.I("s_mul_i32", s(51), s(57), 4 * 18432)
            k.I("s_add_u32", s(51), s(51), hex(WS_PART))
            k.I("s_lshl_b32", s(52), s(57), 7)
            k.I("s_lshl_b32", s(59), s(3), 4)
            k.I("s_add_u32", s(52), s(52), s(59))
            k.I("s_add_u32", s(52), s(52), hex(WS_F2))

    tS = [P.get("v") for _ in range(4)]
    tC = [P.get("v") for _ in range(9)]

    def stat_loads(tS, sbase_reg, ntt=2):
        L = []
        for tt in range(ntt):
            for i in range(2):
                L.append(lambda tt=tt, i=i: k.I("buffer_load_dwordx4", r4(tS[2 * tt + i]), v(7), s(8, 4), s(sbase_reg),
                                                mods=f"offen offset:{tt * 512 + 16 * i}"))
        return L

    def stat_math(t4, dmean, drstd):
        b = [g[1] for g in t4]
        L = []
        for i in range(4):
            L.append(lambda i=i: k.I("v_add_f32", v(b[0] + i), v(b[0] + i), v(b[1] + i)))
        L.append(lambda: k.I("v_add_f32", v(b[0]), v(b[0]), v(b[0] + 2)))
        L.append(lambda: k.I("v_add_f32", v(b[0] + 1), v(b[0] + 1), v(b[0] + 3)))
        L.append(lambda: k.I("v_mul_f32", v(b[0]), hex(f32bits(-1.0 / 576)), v(b[0])))
        L.append(lambda: k.I("v_mul_f32", v(b[0] + 1), hex(f32bits(1.0 / 576)), v(b[0] + 1)))
        L.append(lambda: k.I("v_fma_f32", v(b[0] + 1), f"-{v(b[0])}", v(b[0]), v(b[0] + 1)))
        L.append(lambda: k.I("v_max_f32", v(b[0] + 1), 0, v(b[0] + 1)))
        L.append(lambda: k.I("v_add_f32", v(b[0] + 1), hex(f32bits(1e-5)), v(b[0] + 1)))
        L.append(lambda: k.I("v_rsq_f32", v(drstd), v(b[0] + 1)))
        if dmean is not None:
            L.append(lambda: k.I("v_mov_b32", v(dmean), v(b[0])))
        return L

    k.I("v_and_b32", v(7), 15, v(2))
    k.I("v_lshlrev_b32", v(7), 5, v(7))
    k.I("s_lshl_b32", s(23), s(22), 9)
    k.I("s_add_u32", s(23), s(23), hex(WS_ST))
    k.I("v_min_u32", v(24), 143, v(0))
    k.I("v_lshlrev_b32", v(24), 4, v(24))
    k.I("s_mul_i32", s(31), s(20), 2304)
    k.I("s_add_u32", s(31), s(31), hex(WS_CS))
    k.I("v_lshrrev_b32", v(6), 4, v(2))
    k.I("v_lshlrev_b32", v(6), 4, v(6))
    k.I("v_add_u32", v(6), LDS_CS, v(6))

    def cs_loads():
        L = []
        for p in range(9):
            def f(p=p):
                k.I("buffer_load_dwordx4", r4(tC[p]), v(24), s(8, 4), s(31), mods="offen")
                if p < 8:
                    k.I("s_add_u32", s(31), s(31), 36864)
            L.append(f)
        return L

    def startup_math():
        L = []
        for tt in range(2):
            L += stat_math(tS[2 * tt:2 * tt + 2], 8 + tt, 10 + tt)
            L.append(lambda tt=tt: k.I("v_mul_f32", v(10 + tt), hex(f32bits(-LOG2E)), v(10 + tt)))
            L.append(lambda tt=tt: k.I("v_mul_f32", v(12 + tt), v(10 + tt), v(8 + tt)))
        for p in range(1, 9):
            for i in range(4):
                L.append(lambda p=p, i=i: k.I("v_add_f32", v(tC[0][1] + i), v(tC[0][1] + i), v(tC[p][1] + i)))
        L.append(lambda: k.I("v_add_u32", v(24), LDS_CS, v(24)))
        L.append(lambda: k.I("ds_write_b128", v(24), r4(tC[0])))

        def rel():
            for g in tS + tC:
                P.put(g)
        L.append(rel)
        return L

    def w_read(u, tile):
        st, r = divmod(u, 6)
        slot = st % RING
        wtok[(u, tile)] = k.I("ds_read_b128", r4(WF[(u % 3, tile)]), v(3 + slot // 2),
                              mods=f"offset:{(slot % 2) * STAGE + r * 4096 + tile * 1024}")

    hh_store_tok = {}

    def epi_items(c):
        L = []
        st = c % 2
        for tile in range(4):
            L.append(lambda tile=tile: k.I("ds_read_b128", r4(CS[tile]), v(6), mods=f"offset:{c * 256 + tile * 64}"))
        for tt in range(2):
            g = [ACC[(st, e // 4, tt)][1] + e % 4 for e in range(8)]
            u = [ACC[(st, 2 + e // 4, tt)][1] + e % 4 for e in range(8)]
            cg = [CS[e // 4][1] + e % 4 for e in range(8)]
            cu = [CS[2 + e // 4][1] + e % 4 for e in range(8)]
            for e in range(8):
                L.append(lambda e=e, g=g, tt=tt: k.I("v_mul_f32", v(g[e]), v(10 + tt), v(g[e])))
            for e in range(8):
                L.append(lambda e=e, g=g, cg=cg, tt=tt: k.I("v_fmac_f32", v(g[e]), v(12 + tt), v(cg[e])))
            for e in range(8):
                L.append(lambda e=e, g=g: k.I("v_exp_f32", v(g[e]), v(g[e])))
                L.append(lambda e=e, u=u, cu=cu, tt=tt: k.I("v_fmac_f32", v(u[e]), v(8 + tt), v(cu[e])))
            for e in range(8):
                L.append(lambda e=e, g=g: k.I("v_add_f32", v(g[e]), 1.0, v(g[e])))
            for e in range(8):
                L.append(lambda e=e, g=g: k.I("v_rcp_f32", v(g[e]), v(g[e])))
            for e in range(8):
                L.append(lambda e=e, g=g, u=u: k.I("v_mul_f32", v(u[e]), v(g[e]), v(u[e])))
            for i in range(4):
                L.append(lambda i=i, u=u, tt=tt: k.I("v_cvt_pk_bf16_f32", v(16 + 4 * tt + i), v(u[2 * i]), v(u[2 * i + 1])))

            def stf(tt=tt):
                if c % 4 == 0 and c and tt == 0:
                    k.I("s_add_u32", s(28), s(28), 4096)
                tk = k.I("buffer_store_dwordx4", v(16 + 4 * tt, 4), v(3 if tt == 0 else 14), s(8, 4), s(28),
                         mods=f"offen offset:{(c % 4) * 1024} {SC}")
                if tt == 1:
                    hh_store_tok[c] = tk
            L.append(stf)
        return L

    def flag_store(tokfn, sreg, val):
        def f():
            k.wait_vm(tokfn())
            k.I("v_mov_b32", v(25), val)
            k.I("buffer_store_dword", v(25), v(15), s(8, 4), s(sreg), mods=f"offen {SC}")
        return f

    npoll = [0]

    def poll_issue(sreg, dst):
        return k.I("buffer_load_dwordx4", r4(dst), v(15), s(8, 4), s(sreg), mods=f"offen {SC}")

    def poll_check(sreg, dst, level, skip_reg=None):
        npoll[0] += 1
        n = npoll[0]
        b = dst[1]

        def test():
            if skip_reg is not None:
                for i in range(4):
                    k.I("s_cmp_eq_u32", s(skip_reg), i)
                    k.I("s_cselect_b32", s(59), level, 0)
                    k.I("v_max_u32", v(b + i), s(59), v(b + i))
            k.I("v_min_u32", v(b), v(b), v(b + 1))
            k.I("v_min_u32", v(b + 2), v(b + 2), v(b + 3))
            k.I("v_min_u32", v(b), v(b), v(b + 2))
            k.I("v_readfirstlane_b32", s(59), v(b))
            k.I("s_cmp_ge_u32", s(59), level)
        test()
        k.I("s_cbranch_scc1", f"KCD_PD{n}")
        k.I("s_mov_b32", s(60), 20000)
        k.label(f"KCD_PL{n}")
        save = (list(k.vmq), list(k.dsq))
        k.I("s_sub_u32", s(60), s(60), 1)
        k.I("s_cmp_eq_u32", s(60), 0)
        k.I("s_cbranch_scc1", f"KCD_PD{n}")
        k.I("s_sleep", 1)
        poll_issue(sreg, dst)
        k.wait(vm=0)
        test()
        k.I("s_cbranch_scc0", f"KCD_PL{n}")
        k.vmq, k.dsq = save
        k.label(f"KCD_PD{n}")

    WD = {}
    HH = {}

    def wd_load(i, r):
        def f():
            WD[(i, r)] = P.get()
            k.I("s_add_u32", s(59), s(32), i * 36864 + (r // 4) * 4096)
            k.I("buffer_load_dwordx4", r4(WD[(i, r)]), v(3), s(8, 4), s(59), mods=f"offen offset:{(r % 4) * 1024}")
        return f

    def hh_load(p, i, tt):
        def f():
            HH[(p, i, tt)] = P.get()
            if i >= 4:
                k.I("s_add_u32", s(59), s(36 + p), (i // 4) * 4096)
            k.I("buffer_load_dwordx4", r4(HH[(p, i, tt)]), v(3 if tt == 0 else 14), s(8, 4), s(59) if i >= 4 else s(36 + p),
                mods=f"offen offset:{(i % 4) * 1024} {SC}")
        return f

    def sync(st):
        k.wait_vm(dma_tok[st])
        k.I("s_barrier")

    vq = deque()
    vq += dma_items(1) + x_items(6, 12) + dma_items(2) + x_items(12, 18) + stat_loads(tS, 23) + cs_loads() + dma_items(3)
    sync(0)
    vq += dma_items(4)
    ST.stamp()
    for u in range(2):
        for tile in range(4):
            w_read(u, tile)
    NU = 162
    pollreg = None
    lateq = deque()
    for u in range(NU):
        c, kb = divmod(u, 18)
        if kb == 0:
            if "stC" in dbg:
                ST2.stamp()
            side = []
            if c == 1:
                side += startup_math()
            if c >= 2:
                pass
            if c > 0:
                side_epi = epi_items(c - 1)
                if c == 1:
                    side_late = side_epi
                else:
                    side += side_epi
            if c == NA:
                side.append(None)
                side.append(flag_store(lambda: hh_store_tok[NA - 1], 44, 1))
            nside = len(side)
            done = 0
            span = 100
            if 2 <= c <= 7:
                allw = [(i, r) for r in range(9) for i in range(5)]
                n0, n1 = (c - 2) * 45 // 6, (c - 1) * 45 // 6
                wdq = deque(wd_load(*x) for x in allw[n0:n1])
            else:
                wdq = deque()
        un = u + 2
        for m in range(8):
            tile, tt = divmod(m, 2)
            if m == 0:
                k.wait_ds(wtok[(u, 3)])
            ac = r4(ACC[(c % 2, tile, tt)])
            k.I(MF, ac, r4(WF[(u % 3, tile)]), r4(X[(tt, kb)]), ac if kb else 0)
            nf = 0
            if un < NU and m % 2 == 0:
                if m == 0 and un % 6 == 0:
                    stn = un // 6
                    if stn == 4:
                        while done < nside:
                            side[done]()
                            done += 1
                        k.wait(lg=0)
                    sync(stn)
                    if stn + RING - 2 < 27:
                        vq += dma_items(stn + RING - 2)
                    if stn == 4:
                        side += side_late
                        nside = len(side)
                w_read(un, m // 2)
                nf += 1
            elif vq:
                vq.popleft()()
                nf += 1
                if c == 0 and vq:
                    vq.popleft()()
            elif wdq and m == 3 and kb % 2 == 0:
                wdq.popleft()()
                nf += 1
            elif lateq and P.n() > 0:
                lateq.popleft()()
                nf += 1
            gi = kb * 8 + m
            if c == 1:
                target = nside
            else:
                target = 0 if gi < 3 else min(nside, (gi - 2) * nside // span + 1)
            while done < target and nf < 2:
                it = side[done]
                if it is None:
                    if gi < 128:
                        break
                else:
                    it()
                    nf += 1
                done += 1
        if c == 8:
            for tt in range(2):
                P.put(X[(tt, kb)])
            if kb == 0:
                pollreg = P.get("v")
                lateq += [wd_load(i, r) for r in range(3) for i in range(5, NA)]
            if kb == 8:
                poll_issue(40, pollreg)
            if kb == 10:
                poll_check(40, pollreg, 1)
                lateq.extendleft(reversed([hh_load(0, i, tt) for i in range(NA) for tt in range(2)]))
                lateq += [wd_load(i, r) for r in range(3, 9) for i in range(5, NA)]
        if kb == 17:
            while wdq:
                wdq.popleft()()
            while done < nside:
                if side[done] is not None:
                    side[done]()
                done += 1
    ST.stamp()
    for g in WF.values():
        P.put(g)
    for key, g in ACC.items():
        if key[0] == 1:
            P.put(g)

    k.I("v_mul_u32_u24", v(4), 18432, v(1))
    k.I("v_add_u32", v(4), v(4), v(3))
    k.I("v_add_u32", v(5), BUF, v(4))
    k.I("v_lshl_add_u32", v(26), v(1), 10, v(3))
    k.I("v_and_b32", v(27), 1, v(1))
    k.I("v_lshl_add_u32", v(27), v(27), 10, v(3))
    k.I("v_add_u32", v(27), 16384, v(27))
    lateq += [hh_load(1, i, tt) for i in range(NA) for tt in range(2)]
    lateq += [wd_load(i, r) for r in range(9) for i in range(NA, 9)]

    side = deque(epi_items(8))

    def rel_c():
        for key, g in ACC.items():
            if key[0] == 0:
                P.put(g)
        for g in CS:
            P.put(g)
    side.append(rel_c)

    red_tok = {}
    red_done = {}

    def reduce_items(p):
        L = []
        buf = (p % 2) * BUF
        T = [("v", 16), ("v", 20)]
        extra = []

        def start():
            extra.append(P.get("v"))
            extra.append(P.get("v"))
        L.append(start)
        for n in range(5):
            def rd(n=n):
                regs = T + extra
                k.I("v_add_u32", v(24), buf + (n * 4096 if n < 4 else 0), v(26 if n < 4 else 27))
                for w2 in range(4):
                    k.I("ds_read_b128", r4(regs[w2]), v(24), mods=f"offset:{w2 * 18432}")
            L.append(rd)
            L.append(None)
            for (x, y) in ((0, 1), (2, 3), (0, 2)):
                for i in range(4):
                    L.append(lambda x=x, y=y, i=i: k.I("v_add_f32", v((T + extra)[x][1] + i), v((T + extra)[x][1] + i), v((T + extra)[y][1] + i)))

            def stf(n=n):
                if n < 4 and n:
                    k.I("s_add_u32", s(59), s(45 + p), n * 4096)
                red_tok[p] = k.I("buffer_store_dwordx4", r4(T[0]), v(26 if n < 4 else 27), s(8, 4),
                                 s(59) if 0 < n < 4 else s(45 + p), mods=f"offen {SC}")
            L.append(stf)

        def fin():
            P.put(extra[0])
            P.put(extra[1])
            red_done[p] = red_tok[p]
        L.append(fin)
        return L

    passes = [(0, list(range(NA)), True), (1, list(range(NA)), True), (0, list(range(NA, 9)), False),
              (1, list(range(NA, 9)), False), (2, list(range(9)), True), (3, list(range(9)), True)]
    pend_w = deque()
    events = {}

    def at(pi, mi, fn):
        events.setdefault((pi, mi), []).append(fn)

    def barrier():
        k.wait(lg=0)
        k.I("s_barrier")

    at(0, 2, barrier)
    at(0, 90, flag_store(lambda: hh_store_tok[8], 44, 2))
    nA = 18 * NA
    at(1, nA - 60, lambda: poll_issue(40, pollreg))

    def lvl2():
        poll_check(40, pollreg, 2)
        P.put(pollreg)
        lateq.extend([hh_load(p, i, tt) for p in range(2) for i in range(NA, 9) for tt in range(2)])
        lateq.extend([hh_load(2, i, tt) for i in range(9) for tt in range(2)])
    at(1, nA - 36, lvl2)

    def b_red(p):
        def f():
            while side:
                it = side.popleft()
                if it is not None:
                    it()
            barrier()
            side.extend(reduce_items(p))
        return f
    at(3, 4, b_red(0))
    at(4, 4, b_red(1))
    at(4, 30, flag_store(lambda: red_done[0], 48, 1))
    at(4, 20, lambda: lateq.extend([hh_load(3, i, tt) for i in range(9) for tt in range(2)]))
    at(4, 130, flag_store(lambda: red_done[1], 49, 1))
    at(5, 4, b_red(2))
    at(5, 90, flag_store(lambda: red_done[2], 50, 1))

    fin = {}

    def fin_setup():
        k.I("s_lshl_b32", s(53), s(21), 3)
        k.I("s_lshl_b32", s(54), s(16), 1)
        k.I("s_add_u32", s(53), s(53), s(54))
        k.I("s_and_b32", s(54), s(3), 1)
        k.I("s_add_u32", s(53), s(53), s(54))
        k.I("s_lshl_b32", s(23), s(53), 9)
        k.I("s_add_u32", s(23), s(23), hex(WS_ST))
        fin["st"] = [P.get("v") for _ in range(2)]
        for f in stat_loads(fin["st"], 23, 1):
            f()
        k.I("s_mul_i32", s(54), s(53), 72 * 256)
        k.I("s_mul_i32", s(55), s(17), 18 * 256)
        k.I("s_add_u32", s(54), s(54), s(55))
        k.I("s_add_u32", s(54), s(54), hex(WS_H))
        k.I("s_lshr_b32", s(56), s(3), 1)
        k.I("s_lshl_b32", s(55), s(56), 9)
        k.I("s_add_u32", s(55), s(55), s(54))
        k.I("s_add_u32", s(54), s(54), 4096)
        k.I("v_and_b32", v(8), 15, v(2))
        k.I("v_lshlrev_b32", v(9), 4, v(8))
        k.I("v_lshrrev_b32", v(10), 5, v(2))
        k.I("v_lshl_add_u32", v(9), v(10), 8, v(9))
        k.I("v_bfe_u32", v(10), v(2), 4, 1)
        k.I("v_lshl_add_u32", v(9), v(10), 3, v(9))
        fin["res"] = [P.get("v") for _ in range(3)]
        for n in range(5):
            g = fin["res"][n // 2]
            k.I("buffer_load_dwordx2", v(g[1] + 2 * (n % 2), 2), v(9), s(8, 4), s(55) if n < 4 else s(54),
                mods=f"offen offset:{n * 1024 if n < 4 else 0}")
        k.I("v_mul_u32_u24", v(9), 1152, v(8))
        k.I("v_lshrrev_b32", v(10), 4, v(2))
        k.I("v_lshl_add_u32", v(9), v(10), 3, v(9))
        k.I("s_mul_i32", s(53), s(53), 16 * 1152)
        k.I("s_mul_i32", s(54), s(17), 288)
        k.I("s_add_u32", s(53), s(53), s(54))
        k.I("s_lshl_b32", s(54), s(56), 5)
        k.I("s_add_u32", s(54), s(54), s(53))
        fin["poll"] = P.get("v")
    at(5, 40, fin_setup)
    at(5, 100, lambda: side.extend(stat_math(fin["st"], None, 11)))
    at(5, 120, lambda: poll_issue(52, fin["poll"]))

    def fin_loads():
        poll_check(52, fin["poll"], 1, skip_reg=16)
        fin["rp"] = {}
        for d in range(1, 4):
            k.I("s_add_u32", s(57), s(16), d)
            k.I("s_and_b32", s(57), s(57), 3)
            k.I("s_mul_i32", s(57), s(57), 18432)
            k.I("s_add_u32", s(57), s(57), s(51))
            for n in range(5):
                g = P.get("v")
                fin["rp"][(d, n)] = g
                if 0 < n < 4:
                    k.I("s_add_u32", s(58), s(57), n * 4096)
                k.I("buffer_load_dwordx4", r4(g), v(26 if n < 4 else 27), s(8, 4), s(58) if 0 < n < 4 else s(57), mods=f"offen {SC}")

    for pi, (p, il, first) in enumerate(passes):
        wbase = 4 + p % 2
        accs = {}
        if "stD" in dbg:
            ST2.stamp()

        def acc_get(r):
            accs[r] = [P.get(), P.get()]
            if not first:
                for tt in range(2):
                    k.I("ds_read_b128", r4(accs[r][tt]), v(wbase), mods=f"offset:{(2 * r + tt) * 1024}")
        ahead = 1 if first else 4
        for r in range(ahead):
            acc_get(r)
        mi = 0
        for r in range(9):
            for n_i, i in enumerate(il):
                for tt in range(2):
                    while (i, r) not in WD or (p, i, tt) not in HH:
                        lateq.popleft()()
                    ac = r4(accs[r][tt])
                    k.I(MF, ac, r4(WD[(i, r)]), r4(HH[(p, i, tt)]), 0 if (first and n_i == 0) else ac)
                    nf = 0
                    for fn in events.pop((pi, mi), []):
                        fn()
                        nf += 1
                    if pend_w and pend_w[0][0] <= 0:
                        pend_w.popleft()[1]()
                        nf += 1
                    pend_w = deque((cd - 1, fn) for cd, fn in pend_w)
                    if lateq and P.n() > 6 and nf < 2 and mi % 2 == 1:
                        lateq.popleft()()
                        nf += 1
                    while side and nf < 2:
                        it = side.popleft()
                        if it is None:
                            break
                        it()
                        nf += 1
                    if r == 8:
                        P.put(HH.pop((p, i, tt)))
                    if pi == 5 and tt == 1:
                        P.put(WD.pop((i, r)))
                    mi += 1
            for tt in range(2):
                def wr(r=r, tt=tt, g=accs[r][tt], wbase=wbase):
                    k.I("ds_write_b128", v(wbase), r4(g), mods=f"offset:{(2 * r + tt) * 1024}")
                    P.put(g)
                pend_w.append((1 + tt, wr))
            if r + ahead < 9:
                acc_get(r + ahead)
        if pi == 1 or pi == 2:
            pass
    assert not events, events.keys()
    ST.stamp()
    if "stD" in dbg:
        ST2.stamp()
    while pend_w:
        pend_w.popleft()[1]()
    while side:
        it = side.popleft()
        if it is not None:
            it()
    fin_loads()
    if "stD" in dbg:
        ST2.stamp()
    barrier()
    ST.stamp()
    for n in range(5):
        regs = [P.get("v") for _ in range(4)]
        k.I("v_add_u32", v(24), BUF + (n * 4096 if n < 4 else 0), v(26 if n < 4 else 27))
        for w2 in range(4):
            k.I("ds_read_b128", r4(regs[w2]), v(24), mods=f"offset:{w2 * 18432}")
        fin[("own", n)] = regs
    for n in range(5):
        b = [g[1] for g in fin[("own", n)]]
        rp = [fin["rp"][(d, n)][1] for d in range(1, 4)]
        for i in range(4):
            k.I("v_add_f32", v(b[0] + i), v(b[0] + i), v(b[1] + i))
            k.I("v_add_f32", v(b[2] + i), v(b[2] + i), v(b[3] + i))
            k.I("v_add_f32", v(rp[0] + i), v(rp[0] + i), v(rp[1] + i))
        for i in range(4):
            k.I("v_add_f32", v(b[0] + i), v(b[0] + i), v(b[2] + i))
            k.I("v_add_f32", v(rp[0] + i), v(rp[0] + i), v(rp[2] + i))
        for i in range(4):
            k.I("v_add_f32", v(b[0] + i), v(b[0] + i), v(rp[0] + i))
        rs = fin["res"][n // 2][1] + 2 * (n % 2)
        for i in range(2):
            k.I("v_lshlrev_b32", v(b[1] + 2 * i), 16, v(rs + i))
            k.I("v_and_b32", v(b[1] + 2 * i + 1), "0xffff0000", v(rs + i))
        for i in range(4):
            k.I("v_fma_f32", v(b[0] + i), v(b[0] + i), v(11), v(b[1] + i))
        k.I("v_cvt_pk_bf16_f32", v(b[2]), v(b[0]), v(b[0] + 1))
        k.I("v_cvt_pk_bf16_f32", v(b[2] + 1), v(b[0] + 2), v(b[0] + 3))
        k.I("buffer_store_dwordx2", v(b[2], 2), v(9), s(12, 4), s(54) if n < 4 else s(53),
            mods=f"offen offset:{n * 64 if n < 4 else 256}")
    ST.stamp()
    ST.dump(8, 16, 2)
    if "stD" in dbg:
        ST2.stamp()
    ST2.dump(8, 16, 2)
    k.label("KCD_END")
    k.I("s_endpgm")
    return k, "grid=(256,1,1) block=(256,1,1) lds=%d" % LDS_TOTAL
```

```python
import sys, os
sys.path.insert(0, os.path.dirname(__file__))
from common import *

HEADER = """; Kernarg layout (80 bytes, ptrs only, base s[0:1]):
"""

def build(kernels, path, reverse_code=False):
    launches, codes, descs = [], [], []
    for k, geo in kernels:
        c, d = kernel_text(k)
        launches.append(f"; @launch kernel={k.name} {geo}")
        codes.append(c); descs.append(d)
    if reverse_code:
        codes = codes[::-1]
    txt = HEADER + "\n".join(launches) + "\n"
    txt += '.amdgcn_target "amdgcn-amd-amdhsa--gfx950"\n.text\n'
    txt += "\n".join(codes)
    txt += '.section .rodata,"a"\n' + "\n".join(descs)
    open(path, "w").write(txt)
    return txt

if __name__ == "__main__":
    import k_ab3 as k_ab, k_cd
    dbg = sys.argv[2] if len(sys.argv) > 2 else ""
    ks = [k_ab.build_ab(dbg), k_cd.build_cd(dbg)]
    out = sys.argv[1] if len(sys.argv) > 1 else f"cdna_kernels/{NAME}.s"
    build(ks, out, reverse_code=True)
    print("wrote", out)
```

```python
import re

_REG = re.compile(r"^(-|\|)?(abs\()?([vas])(\d+|\[(\d+):(\d+)\])\)?\|?$")


def regs_of(op):
    if not isinstance(op, str):
        return []
    op = op.strip()
    if op in ("vcc", "exec"):
        return [(op, 0), (op, 1)]
    if op in ("vcc_lo", "exec_lo"):
        return [(op[:-3], 0)]
    if op in ("vcc_hi", "exec_hi"):
        return [(op[:-3], 1)]
    if op == "m0":
        return [("m0", 0)]
    m = _REG.match(op)
    if not m:
        return []
    f = m.group(3)
    if m.group(5) is not None:
        return [(f, i) for i in range(int(m.group(5)), int(m.group(6)) + 1)]
    return [(f, int(m.group(4)))]


def R(f, i, n=1):
    return f"{f}{i}" if n == 1 else f"{f}[{i}:{i + n - 1}]"


def v(i, n=1):
    return R("v", i, n)


def a(i, n=1):
    return R("a", i, n)


def s(i, n=1):
    return R("s", i, n)


TRANS = ("v_exp_f32", "v_log_f32", "v_rcp_f32", "v_rsq_f32", "v_sqrt_f32", "v_sin_f32", "v_cos_f32")


class Ins:
    __slots__ = ("mn", "ops", "mods", "dst", "src", "kind", "comment", "passes", "srcC", "text")

    def __init__(self, mn, ops, mods="", comment=None):
        self.mn, self.ops, self.mods, self.comment = mn, list(ops), mods, comment
        self.passes = 0
        self.srcC = []
        self.text = None
        o = [str(x) for x in ops]
        dst, src = [], []
        lds = " lds" in (" " + mods)
        if mn.startswith("v_mfma"):
            self.kind = "mfma"
            self.passes = 8 if "32x32x16" in mn else 4
            dst = regs_of(o[0])
            src = regs_of(o[1]) + regs_of(o[2]) + regs_of(o[3])
            self.srcC = regs_of(o[3])
        elif mn.startswith("buffer_load") or mn.startswith("global_load"):
            self.kind = "vmem"
            if lds or "lds" in mn:
                src = sum((regs_of(x) for x in o), []) + [("m0", 0)]
            else:
                dst = regs_of(o[0])
                src = sum((regs_of(x) for x in o[1:]), [])
        elif mn.startswith("buffer_store") or mn.startswith("global_store"):
            self.kind = "vmem"
            src = sum((regs_of(x) for x in o), [])
        elif mn.startswith("buffer_atomic") or mn.startswith("global_atomic"):
            self.kind = "vmem"
            src = sum((regs_of(x) for x in o), [])
            if "sc0" in mods:
                dst = regs_of(o[0])
        elif mn in ("buffer_inv", "buffer_wbl2"):
            self.kind = "vmem"
        elif mn.startswith("ds_read") or mn.startswith("ds_bpermute") or mn.startswith("ds_swizzle") or mn.startswith("ds_permute"):
            self.kind = "ds"
            dst = regs_of(o[0])
            src = sum((regs_of(x) for x in o[1:]), [])
        elif mn.startswith("ds_"):
            self.kind = "ds"
            src = sum((regs_of(x) for x in o), [])
        elif mn.startswith("s_load") or mn.startswith("s_memtime") or mn.startswith("s_memrealtime") or mn.startswith("s_buffer_load"):
            self.kind = "smem"
            dst = regs_of(o[0])
            src = sum((regs_of(x) for x in o[1:]), [])
        elif mn.startswith("s_cmp") or mn.startswith("s_cbranch") or mn in ("s_branch", "s_barrier", "s_waitcnt", "s_nop", "s_endpgm", "s_setprio", "s_sleep", "s_bitcmp1_b32", "s_bitcmp0_b32"):
            self.kind = "sctl"
            src = sum((regs_of(x) for x in o), [])
        elif mn.startswith("s_"):
            self.kind = "salu"
            dst = regs_of(o[0])
            src = sum((regs_of(x) for x in o[1:]), [])
            if "saveexec" in mn:
                dst += [("exec", 0), ("exec", 1)]
                src += [("exec", 0), ("exec", 1)]
        elif mn.startswith("v_"):
            self.kind = "valu"
            dst = regs_of(o[0])
            src = sum((regs_of(x) for x in o[1:]), [])
            if mn.startswith("v_fmac") or mn.startswith("v_dot2c") or mn.startswith("v_permlane"):
                src += regs_of(o[0])
            if mn.startswith("v_permlane"):
                dst += regs_of(o[1])
            if mn.startswith("v_add_co") or mn.startswith("v_sub_co") or mn.startswith("v_addc_co"):
                dst += regs_of(o[1])
            if "dpp" in mn or "row_" in mods or "quad_perm" in mods:
                src += regs_of(o[0])
        else:
            raise ValueError("unknown mnemonic " + mn)
        self.dst, self.src = dst, src

    def is_dpp(self):
        return "dpp" in self.mn or "row_" in self.mods or "quad_perm" in self.mods

    def render(self):
        if self.text is not None:
            return self.text
        t = self.mn
        if self.ops:
            t += " " + ", ".join(str(x) for x in self.ops)
        if self.mods:
            t += " " + self.mods
        if self.comment:
            t += "  ; " + self.comment
        return t


class Raw(Ins):
    def __init__(self, text):
        self.mn, self.ops, self.mods, self.comment = "", [], "", None
        self.dst, self.src, self.kind, self.passes, self.srcC = [], [], "raw", 0, []
        self.text = text


class Kern:
    def __init__(self, name):
        self.name = name
        self.ins = []
        self.vmq = []
        self.dsq = []
        self.smem_pending = set()
        self.nid = 0
        self.auto = True
        self.bgq = []
        self.bg_period = 8
        self.bg_hold = False
        self._bgc = 0

    def _need_waits(self, ins):
        touched = set(ins.src) | set(ins.dst)
        vm = lg = None
        for i, (tid, d) in enumerate(self.vmq):
            if d & touched:
                vm = len(self.vmq) - 1 - i
        for i, (tid, d) in enumerate(self.dsq):
            if d & touched:
                lg = len(self.dsq) - 1 - i
        if self.smem_pending & touched:
            lg = 0
        if lg is not None and self.smem_pending:
            lg = 0
        return vm, lg

    def _do_wait(self, vm, lg):
        parts = []
        if vm is not None:
            assert vm <= 63
            parts.append(f"vmcnt({vm})")
            self.vmq = self.vmq[len(self.vmq) - vm:] if vm else []
        if lg is not None:
            lg = min(lg, 15)
            parts.append(f"lgkmcnt({lg})")
            self.dsq = self.dsq[len(self.dsq) - lg:] if lg else []
            if lg == 0:
                self.smem_pending = set()
        if parts:
            self.ins.append(Ins("s_waitcnt", [" ".join(parts)]))

    def I(self, mn, *ops, mods="", c=None):
        ins = Ins(mn, ops, mods, c)
        if self.auto:
            vm, lg = self._need_waits(ins)
            if vm is not None and vm > 63:
                vm = 63
            self._do_wait(vm, lg)
            if ins.kind == "vmem" and len(self.vmq) >= 63:
                self._do_wait(62, None)
        self.ins.append(ins)
        tid = None
        if ins.kind == "vmem":
            self.nid += 1
            tid = self.nid
            self.vmq.append((tid, set(ins.dst)))
        elif ins.kind == "ds":
            self.nid += 1
            tid = self.nid
            self.dsq.append((tid, set(ins.dst)))
        elif ins.kind == "smem":
            self.smem_pending |= set(ins.dst)
            self.dsq.append((-1, set()))
        if self.bgq and not self.bg_hold:
            self._bgc += 1
            if self._bgc >= self.bg_period:
                self._bgc = 0
                self.bg_hold = True
                self.bgq.pop(0)()
                self.bg_hold = False
        return tid

    def wait_vm(self, tid):
        for i, (t, d) in enumerate(self.vmq):
            if t == tid:
                n = len(self.vmq) - 1 - i
                self._do_wait(min(n, 63) if n <= 63 else 63, None)
                return

    def wait_ds(self, tid):
        for i, (t, d) in enumerate(self.dsq):
            if t == tid:
                n = len(self.dsq) - 1 - i
                if self.smem_pending:
                    n = 0
                self._do_wait(None, n)
                return

    def wait(self, vm=None, lg=None):
        if vm is not None:
            vm = min(vm, len(self.vmq))
        if lg is not None:
            lg = min(lg, len(self.dsq))
        self._do_wait(vm, lg)

    def label(self, name):
        self.ins.append(Raw(name + ":"))

    def raw(self, text):
        self.ins.append(Raw(text))

    def pad_hazards(self):
        out = []
        hist = []
        t = 0

        def states(i):
            if i.kind == "raw":
                return 0
            if i.mn == "s_nop":
                return int(i.ops[0]) + 1
            return 1

        branches = {}
        for ins in self.ins:
            if ins.kind == "raw":
                out.append(ins)
                lab = ins.text.strip().rstrip(":")
                for tb in branches.pop(lab, []):
                    sh = t - (tb + 1)
                    hist = [((tp + sh) if tp <= tb else tp, p) for (tp, p) in hist]
                    hist.sort(key=lambda e: e[0])
                continue
            need = 0
            src, dst = set(ins.src), set(ins.dst)
            for (tp, p) in reversed(hist):
                dist = t - tp - 1
                if dist >= 20:
                    break
                pd, ps = set(p.dst), set(p.src)
                req = 0
                if p.kind == "mfma":
                    big = {4: 8, 8: 12}[p.passes]
                    if ins.kind == "mfma":
                        c = set(ins.srcC)
                        ab = src - c if not (set(regs_of(str(ins.ops[1]))) | set(regs_of(str(ins.ops[2])))) & c else src
                        ab = set(regs_of(str(ins.ops[1]))) | set(regs_of(str(ins.ops[2])))
                        if ab & pd:
                            req = max(req, big)
                        if c & pd:
                            if c == pd and ins.passes == p.passes:
                                req = max(req, 0)
                            else:
                                req = max(req, {4: 6, 8: 10}[p.passes])
                        if (dst & pd) and not (c == pd):
                            req = max(req, {4: 6, 8: 10}[p.passes])
                    elif ins.kind in ("valu", "vmem", "ds"):
                        if (src | dst) & pd:
                            req = max(req, big)
                        if ins.kind == "valu" and dst & set(p.srcC):
                            req = max(req, {4: 3, 8: 7}[p.passes])
                elif p.kind == "valu":
                    vd = {r for r in pd if r[0] in "va"}
                    sd = pd - vd
                    if ins.kind == "mfma" and src & vd:
                        req = max(req, 2)
                    if ins.kind == "valu":
                        if p.mn.startswith(TRANS) and (src & vd) and not ins.mn.startswith(TRANS):
                            req = max(req, 1)
                        if p.mn.startswith(TRANS) and (src & vd):
                            req = max(req, 1)
                        if ins.is_dpp() and src & vd:
                            req = max(req, 2)
                        if ins.mn.startswith("v_permlane") and src & vd:
                            req = max(req, 2)
                        if (ins.mn.startswith("v_readfirstlane") or ins.mn.startswith("v_readlane")) and src & vd:
                            req = max(req, 1)
                        if src & sd:
                            req = max(req, 4 if ins.mn.startswith(("v_readlane", "v_writelane")) else 2)
                        if p.mn.startswith("v_dot") and (src | dst) & vd:
                            same = ins.mn == p.mn
                            if same and ins.mn.startswith("v_dot2c"):
                                ab = set(regs_of(str(ins.ops[1]))) | set(regs_of(str(ins.ops[2])))
                                if ab & vd:
                                    req = max(req, 3)
                            elif same:
                                ab = set(regs_of(str(ins.ops[1]))) | set(regs_of(str(ins.ops[2])))
                                if ab & vd:
                                    req = max(req, 3)
                            else:
                                req = max(req, 3)
                    if p.mn.startswith("v_dot") and ins.kind in ("mfma", "vmem", "ds") and (src | dst) & vd:
                        req = max(req, 3)
                    if ins.kind == "vmem" and src & sd:
                        req = max(req, 5)
                    if ins.kind in ("salu", "sctl") and src & sd:
                        req = max(req, 1)
                    if any(r[0] == "exec" for r in pd):
                        if ins.kind == "mfma":
                            req = max(req, 4)
                        elif ins.kind == "valu":
                            req = max(req, 5)
                elif p.kind == "salu":
                    if ("m0", 0) in pd and ins.kind in ("vmem", "ds") and ("m0", 0) in src:
                        req = max(req, 1)
                elif p.kind == "vmem":
                    if ("store" in p.mn or "atomic" in p.mn) and ("x4" in p.mn or "x3" in p.mn):
                        data = set(regs_of(str(p.ops[0]))) if p.mn.startswith("buffer") else set(regs_of(str(p.ops[1])))
                        if dst & data:
                            req = max(req, 2)
                if req - dist > need:
                    need = req - dist
            while need > 0:
                n = min(need, 16)
                nop = Ins("s_nop", [n - 1])
                out.append(nop)
                t += n
                need -= n
            out.append(ins)
            hist.append((t, ins))
            if ins.mn.startswith("s_cbranch") or ins.mn == "s_branch":
                branches.setdefault(str(ins.ops[0]), []).append(t)
            t += states(ins)
            if len(hist) > 400 and not branches:
                hist = hist[-48:]
        self.ins = out

    def text(self):
        lines = []
        for i in self.ins:
            if i.kind == "raw":
                lines.append(i.render())
            else:
                lines.append("    " + i.render())
        return "\n".join(lines)

    def max_regs(self):
        mv = ma = ms = -1
        for i in self.ins:
            for (f, n) in list(i.dst) + list(i.src):
                if f == "v":
                    mv = max(mv, n)
                elif f == "a":
                    ma = max(ma, n)
                elif f == "s":
                    ms = max(ms, n)
        return mv + 1, ma + 1, ms + 1
```

```python
from common import *
from k_frag import f32bits
import k_prep
from k_prep import PrepRegs
from k_a2 import reduce_groups

MF = "v_mfma_f32_16x16x32_bf16"
XB = 10240
WBLK = 3616
STG = XB + 29 * 1024
L_PREP = 122880
PQ = 440
L_WO = 0
L_QKV = 83968
L_ST = 119808
L_CS = 120576
LDS_TOTAL = 162048
LOG2E = 1.4426950408889634
NEG = -1e30
BC, B0, QM, ONES, AQ, AV, AKP, AVP, AO = 216, 224, 228, 236, 240, 241, 242, 243, 244
PVB = 160
S_WS, S_X, S_QKV, S_WO, S_DBG, S_WG, S_WU, S_WD = 8, 12, 16, 44, 48, 52, 56, 60


def att_setup(k):
    k.I("v_and_b32", v(14), 15, v(2))
    k.I("v_lshrrev_b32", v(15), 4, v(2))
    k.I("v_mul_u32_u24", v(AQ), PQ, v(14))
    k.I("v_lshl_add_u32", v(AQ), v(15), 4, v(AQ))
    k.I("v_lshrrev_b32", v(AV), 2, v(2))
    k.I("v_mul_u32_u24", v(AV), PQ, v(AV))
    k.I("v_and_b32", v(16), 3, v(2))
    k.I("v_lshl_add_u32", v(AV), v(16), 3, v(AV))
    k.I("s_mul_i32", s(23), s(3), s(27))
    k.I("s_mul_i32", s(23), s(23), 16 * PQ)
    k.I("s_add_u32", s(23), s(23), L_QKV)
    k.I("s_add_u32", s(22), s(3), 1)
    k.I("s_mul_i32", s(22), s(22), 16 * PQ)
    k.I("s_add_u32", s(22), s(22), L_QKV)
    k.I("v_add_u32", v(AKP), s(23), v(AQ))
    k.I("v_add_u32", v(AVP), s(23), v(AV))
    k.I("v_add_u32", v(AQ), s(22), v(AQ))
    k.I("v_add_u32", v(AV), s(22), v(AV))
    k.I("v_mov_b32", v(16), hex(f32bits(NEG)))
    k.I("v_lshlrev_b32", v(17), 2, v(15))
    k.I("v_sub_u32", v(17), v(14), v(17))
    k.I("s_cmp_eq_u32", s(3), 0)
    k.I("s_cselect_b32", s(22), 8, 0)
    k.I("s_cselect_b32", s(23), 8, 16)
    k.I("s_or_b32", s(38), s(20), s(27))
    k.I("s_cmp_eq_u32", s(38), 0)
    k.I("s_cselect_b32", s(23), 0, s(23))
    for r in range(4):
        k.I("v_subrev_u32", v(246), r, v(17))
        k.I("v_cmp_gt_u32", "vcc", 8, v(246))
        k.I("v_cndmask_b32", v(BC + r), v(16), 0, "vcc")
        k.I("v_subrev_u32", v(247), s(22), v(246))
        k.I("v_cmp_gt_i32", "vcc", -8, v(247))
        k.I("v_lshl_add_u32", v(247), v(15), 2, r)
        k.I("v_cmp_gt_u32", s(40, 2), s(23), v(247))
        k.I("s_and_b64", "vcc", "vcc", s(40, 2))
        k.I("v_cndmask_b32", v(B0 + r), v(16), 0, "vcc")
        k.I("v_cmp_gt_u32", "vcc", 9, v(247))
        k.I("v_cndmask_b32", v(QM + r), 0, -1, "vcc")
        k.I("v_subrev_u32", v(247), 1, v(247))
        k.I("v_cmp_gt_u32", "vcc", 9, v(247))
        k.I("v_cndmask_b32", v(QM + 4 + r), 0, -1, "vcc")
        k.I("v_mov_b32", v(ONES + r), "0x3f803f80")
    k.I("v_lshlrev_b32", v(246), 1, v(14))
    k.I("v_add_u32", v(246), s(28), v(246))
    k.I("v_lshrrev_b32", v(247), 4, v(246))
    k.I("v_mul_u32_u24", v(247), 72 * 256, v(247))
    k.I("v_and_b32", v(246), 15, v(246))
    k.I("v_lshl_add_u32", v(247), v(246), 4, v(247))
    k.I("v_lshrrev_b32", v(246), 1, v(15))
    k.I("v_lshl_add_u32", v(AO), v(246), 8, v(247))
    k.I("v_and_b32", v(246), 1, v(15))
    k.I("v_lshl_add_u32", v(AO), v(246), 3, v(AO))
    k.I("v_add_u32", v(16), 1, v(15))
    k.I("v_lshrrev_b32", v(246), 1, v(16))
    k.I("v_lshl_add_u32", v(AO + 1), v(246), 8, v(247))
    k.I("v_and_b32", v(246), 1, v(16))
    k.I("v_lshl_add_u32", v(AO + 1), v(246), 3, v(AO + 1))


class Prep:
    NSL = 6

    def __init__(self, k, U, sc):
        self.k, self.U, self.sc = k, U, sc
        self.tok = {}

    def decode(self):
        k = self.k
        k.I("s_lshl_b32", s(42), s(2), 2)
        k.I("s_add_u32", s(42), s(42), s(3))
        k.I("s_mul_i32", s(7), s(3), self.NSL * 1024)
        k.I("s_add_u32", s(7), s(7), L_PREP)
        k.I("v_lshrrev_b32", v(168), 3, v(2))
        k.I("v_and_b32", v(169), 7, v(2))
        k.I("v_lshrrev_b32", v(170), 4, v(2))
        k.I("v_bfe_u32", v(171), v(2), 2, 2)
        k.I("v_and_b32", v(172), 3, v(2))
        k.I("v_and_b32", v(173), 15, v(2))
        k.I("v_lshlrev_b32", v(161), 7, v(171))
        k.I("v_add_u32", v(161), s(7), v(161))
        k.I("v_mov_b32", v(164), 0)
        k.I("v_mov_b32", v(165), 0)
        k.I("v_mov_b32", v(166), "0x3f803f80")
        k.I("s_cmp_ge_u32", s(42), 648)
        k.I("s_cbranch_scc1", f"{self.U}_PW")
        k.I("s_mov_b32", s(4), 1)
        k.I("s_mul_i32", s(43), s(42), 911)
        k.I("s_lshr_b32", s(43), s(43), 16)
        k.I("s_mul_i32", s(5), s(43), 72)
        k.I("s_sub_u32", s(42), s(42), s(5))
        k.I("s_mul_i32", s(5), s(43), 64 * 9216)
        k.I("s_lshl_b32", s(6), s(42), 7)
        k.I("s_add_u32", s(5), s(5), s(6))
        k.I("s_mul_i32", s(6), s(42), 147456)
        k.I("s_lshl_b32", s(41), s(43), 13)
        k.I("s_add_u32", s(6), s(6), s(41))
        k.I("s_add_u32", s(6), s(6), hex(WS_WGU))
        k.I("s_mul_i32", s(43), s(43), 36864)
        k.I("s_lshl_b32", s(42), s(42), 9)
        k.I("s_add_u32", s(43), s(43), s(42))
        k.I("s_add_u32", s(43), s(43), hex(WS_CS))
        k.I("v_mov_b32", v(163), s(43))
        k.I("v_mul_u32_u24", v(160), 9216, v(168))
        k.I("v_lshrrev_b32", v(174), 1, v(170))
        k.I("v_and_b32", v(175), 1, v(170))
        k.I("v_lshl_add_u32", v(161), v(174), 6, v(161))
        k.I("v_lshl_add_u32", v(161), v(172), 4, v(161))
        k.I("v_lshl_add_u32", v(161), v(175), 3, v(161))
        k.I("v_mul_u32_u24", v(162), 73728, v(174))
        k.I("v_lshl_add_u32", v(162), v(175), 10, v(162))
        k.I("v_lshl_add_u32", v(163), v(174), 8, v(163))
        k.I("v_lshl_add_u32", v(163), v(175), 6, v(163))
        k.I("v_lshl_add_u32", v(163), v(173), 2, v(163))
        k.I("s_branch", f"{self.U}_PD")
        k.label(f"{self.U}_PW")
        k.I("s_mov_b32", s(4), 0)
        k.I("s_sub_u32", s(42), s(42), 648)
        k.I("s_mul_i32", s(43), s(42), 7282)
        k.I("s_lshr_b32", s(43), s(43), 16)
        k.I("s_mul_i32", s(5), s(43), 9)
        k.I("s_sub_u32", s(41), s(42), s(5))
        k.I("s_cmp_ge_u32", s(42), 324)
        k.I("s_cselect_b32", s(43), "0x1000", s(43))
        k.I("s_mul_i32", s(5), s(43), 16 * 9216)
        k.I("s_lshl_b32", s(6), s(41), 7)
        k.I("s_add_u32", s(5), s(5), s(6))
        k.I("s_mul_i32", s(6), s(43), 4 * 36864)
        k.I("s_lshl_b32", s(41), s(41), 12)
        k.I("s_add_u32", s(6), s(6), s(41))
        k.I("s_add_u32", s(6), s(6), hex(WS_WD))
        k.I("v_mov_b32", v(163), "0x7fffff00")
        k.I("v_mul_u32_u24", v(160), 1152, v(168))
        k.I("v_lshl_add_u32", v(161), v(170), 5, v(161))
        k.I("v_lshl_add_u32", v(161), v(172), 3, v(161))
        k.I("v_lshlrev_b32", v(162), 10, v(170))
        for sr in (S_WG, S_WU):
            k.I("s_mov_b32", s(sr), s(S_WD))
            k.I("s_mov_b32", s(sr + 1), s(S_WD + 1))
        k.label(f"{self.U}_PD")
        k.I("v_lshl_add_u32", v(160), v(169), 4, v(160))
        k.I("v_lshl_add_u32", v(162), v(173), 4, v(162))

    def _off(self, base, cg, cw):
        k = self.k
        k.I("s_mul_i32", s(42), s(4), cg - cw)
        k.I("s_add_u32", s(42), s(42), s(base))
        if cw:
            k.I("s_add_u32", s(42), s(42), cw)

    def load(self, t):
        def f():
            k = self.k
            self._off(5, (t // 2) * 73728, t * 9216)
            k.I("s_add_u32", "m0", s(7), (t % self.NSL) * 1024)
            self.tok[t] = k.I("buffer_load_dwordx4", v(160), s(S_WG if t % 2 == 0 else S_WU, 4), s(42), mods="offen lds")
        return f

    def read(self, t):
        def f():
            k = self.k
            k.wait_vm(self.tok[t])
            d = 168 + 4 * (t % 4)
            for h in range(2):
                k.I("ds_read_b64_tr_b16", v(d + 2 * h, 2), v(161), mods=f"offset:{(t % self.NSL) * 1024 + h * 512}")
        return f

    def store(self, t):
        def f():
            k = self.k
            d = 168 + 4 * (t % 4)
            self._off(6, (t // 8) * 4096 + (t % 2) * 2048 + ((t // 2) % 4) * 256, (t // 4) * 36864 + (t % 4) * 256)
            k.I("buffer_store_dwordx4", v(d, 4), v(162), s(S_WS, 4), s(42), mods=f"offen {self.sc}")
            for j in range(4):
                k.I("v_dot2c_f32_bf16", v(164 + t % 2), v(d + j), v(166))
        return f

    def finish(self):
        k = self.k
        for m in range(2):
            k.I("buffer_store_dword", v(164 + m), v(163), s(S_WS, 4), 0, mods=f"offen offset:{m * 128} {self.sc}")


def gemm(k, U, cls, ST, prep, wo_items, touch_items, wofrag, dbg, LS):
    VX, VW = 4, 6
    L = f"{U}_G{cls}"
    xt = [0, 1, 2] if cls == 0 else [3, 4]
    tconst = lambda t: 32 * ((t - 1) & 1) + ((t - 1) >> 1)
    nW = 7 if cls == 0 else 8
    tok = {}

    def wvoff(n):
        k.I("v_add_u32", v(14), 128 * n, v(18))
        if n == 7:
            k.I("v_add_u32", v(15), 28 * 64, v(2))
            k.I("v_min_u32", v(14), v(14), v(15))
            k.I("v_min_u32", v(14), 1807, v(14))
        k.I("v_mul_u32_u24", v(15), 18559, v(14))
        k.I("v_lshrrev_b32", v(15), 22, v(15))
        k.I("v_mul_u32_u24", v(16), 226, v(15))
        k.I("v_sub_u32", v(14), v(14), v(16))
        k.I("v_mul_u32_u24", v(16), 2341, v(14))
        k.I("v_lshrrev_b32", v(16), 16, v(16))
        k.I("v_min_u32", v(16), 7, v(16))
        k.I("v_lshl_add_u32", v(15), v(15), 3, v(16))
        k.I("v_mul_u32_u24", v(16), 28, v(16))
        k.I("v_sub_u32", v(14), v(14), v(16))
        k.I("v_min_u32", v(14), 26, v(14))
        k.I("v_mul_u32_u24", v(16), 57, v(14))
        k.I("v_lshrrev_b32", v(16), 9, v(16))
        k.I("v_mul_u32_u24", v(15), 3456, v(15))
        k.I("v_lshl_add_u32", v(15), v(14), 4, v(15))
        k.I("v_mul_u32_u24", v(16), 1152 - 144, v(16))
        k.I("v_add_u32", v(VW + n), v(15), v(16))

    def dma_items(st):
        base = (st % 3) * STG
        I = []
        for t in xt:
            def f(t=t):
                k.I("s_add_u32", "m0", s(37), base + t * 2048)
                k.I("s_add_u32", s(38), s(34), (tconst(t) * 1152 if t else 0))
                k.I("buffer_load_dwordx4", v(VX + (t == 0)), s(S_X, 4), s(38), mods="offen lds")
            I.append(f)
        for n in range(nW):
            def f(n=n):
                if st == 0:
                    wvoff(n)
                if n < 7:
                    k.I("s_add_u32", "m0", s(24), base + n * 2048)
                else:
                    k.I("s_mov_b32", "m0", base + XB + 28 * 1024)
                tok[st] = k.I("buffer_load_dwordx4", v(VW + n), s(S_QKV, 4), s(25), mods="offen lds")
                if n == nW - 1:
                    k.I("s_add_u32", s(25), s(25), 64 * 3456)
                    k.I("s_add_u32", s(34), s(34), 128)
                    k.I("s_cmp_ge_u32", s(34), 1152)
                    k.I("s_cselect_b32", s(34), 0, s(34))
                    k.I("s_cselect_b32", s(25), s(26), s(25))
            I.append(f)
        return I

    for f in dma_items(0):
        f()
    LS.stamp("S0 issued")
    for f in touch_items:
        f()
    for f in dma_items(1):
        f()
    LS.stamp("S1 issued")
    AX, AP, AW = 20, 26, 38
    k.I("v_and_b32", v(14), 15, v(2))
    k.I("v_lshrrev_b32", v(15), 1, v(14))
    k.I("v_lshrrev_b32", v(16), 4, v(2))
    k.I("v_xor_b32", v(15), v(15), v(16))
    k.I("v_lshlrev_b32", v(14), 7, v(14))
    k.I("v_lshl_add_u32", v(AX), v(15), 4, v(14))
    k.I("v_xor_b32", v(AX + 1), 64, v(AX))
    for sl in range(1, 3):
        k.I("v_add_u32", v(AX + 2 * sl), sl * STG, v(AX))
        k.I("v_add_u32", v(AX + 2 * sl + 1), sl * STG, v(AX + 1))
    k.I("s_add_u32", s(39), s(27), 1 + 2 * cls)
    k.I("s_xor_b32", s(36), s(27), 1)
    k.I("s_add_u32", s(36), s(36), 1 + 2 * cls)
    for pr, sr in enumerate((39, 36)):
        k.I("s_lshl_b32", s(22), s(sr), 11)
        for i in range(6):
            k.I("v_add_u32", v(AP + 6 * pr + i), s(22), v(AX + i))
    k.I("v_lshrrev_b32", v(14), 4, v(2))
    k.I("v_mul_u32_u24", v(14), WBLK, v(14))
    k.I("v_bfe_u32", v(15), v(2), 2, 2)
    k.I("v_mul_u32_u24", v(15), 448, v(15))
    k.I("v_add_u32", v(14), v(14), v(15))
    k.I("v_and_b32", v(15), 3, v(2))
    k.I("v_lshl_add_u32", v(14), v(15), 3, v(14))
    k.I("s_mul_i32", s(22), s(27), 7 * 32)
    k.I("s_add_u32", s(22), s(22), XB)
    k.I("v_add_u32", v(AW), s(22), v(14))
    for sl in range(1, 3):
        k.I("v_add_u32", v(AW + sl), sl * STG, v(AW))
    k.I("v_and_b32", v(14), 15, v(2))
    k.I("v_cmp_eq_u32", s(30, 2), 0, v(14))
    k.I("s_lshl_b32", s(22), s(27), 3)
    k.I("v_add_u32", v(14), s(22), v(14))
    k.I("v_cmp_le_u32", s(32, 2), 16, v(14))
    for f in dma_items(2):
        f()
    att_setup(k)
    hs = list(range(0, 4)) if cls == 0 else list(range(4, 7))
    tiles = [(s_, t) for s_ in range(7) for t in range(2)] + [(s_, "h") for s_ in hs]
    ACC = {t: 72 + 4 * n for n, t in enumerate(tiles)}
    SA = 44
    HF, W6 = 144, 200

    def xf(p, t):
        return v(HF + 4 * p, 4) if t == "h" else a(32 * p + 4 * t, 4)

    def wf(p, s_, h=None):
        if s_ == 6:
            return v(W6 + 4 * p, 4) if h is None else v(W6 + 4 * p + 2 * h, 2)
        return a(32 * p + 8 + 4 * s_, 4) if h is None else a(32 * p + 8 + 4 * s_ + 2 * h, 2)

    def read_items(st):
        I = []
        sl = st % 3
        for ks in range(2):
            p = (2 * st + ks) % 4
            for t in range(2):
                I.append(lambda t=t, p=p, ks=ks: k.I("ds_read_b128", xf(p, t), v(AP + 6 * t + 2 * sl + ks)))
            I.append(lambda p=p, ks=ks: k.I("ds_read_b128", xf(p, "h"), v(AX + 2 * sl + ks)))
            for s_ in range(7):
                for h in range(2):
                    I.append(lambda s_=s_, h=h, p=p, ks=ks: k.I("ds_read_b64_tr_b16", wf(p, s_, h), v(AW + sl),
                                                                mods=f"offset:{ks * 4 * WBLK + h * 4 * 448 + s_ * 32}"))
        return I

    def compute(kb, fill, per):
        p = kb % 4
        z = kb == 0
        mm = [(v(SA, 4), xf(p, 0), xf(p, 0))]
        if cls == 1:
            mm.append((v(SA + 4, 4), xf(p, "h"), xf(p, "h")))
        pre = [lambda: [k.I("v_cndmask_b32", v(HF + 4 * p + j), v(HF + 4 * p + j), v(ONES), s(30, 2)) for j in range(4)],
               lambda: [k.I("v_cndmask_b32", v(W6 + 4 * p + j), v(W6 + 4 * p + j), v(ONES), s(32, 2)) for j in range(4)]]
        fill2 = [None, None] + pre
        for t in tiles:
            mm.append((v(ACC[t], 4), wf(p, t[0]), xf(p, t[1])))
        n = n2 = 0
        for (ac, A_, B_) in mm:
            k.I(MF, ac, A_, B_, 0 if z else ac)
            for _ in range(per):
                if n < len(fill):
                    fill[n]()
                    n += 1
            if n2 < len(fill2):
                if fill2[n2] is not None:
                    fill2[n2]()
                n2 += 1
        while n < len(fill):
            fill[n]()
            n += 1

    def later(st):
        if st < 9:
            return dma_items(st)
        if st == 9:
            return wo_items[0:10]
        if st == 10:
            return wo_items[10:20]
        return []

    LS.stamp("S2 issued")
    k.wait_vm(tok[0])
    k.I("s_barrier")
    LS.stamp("S0 landed")
    ST.stamp()
    for f in read_items(0):
        f()
    k.wait(lg=0)
    k.I("s_barrier")
    for f in later(3):
        f()
    def pl(st):
        return [prep.load(2 * st), prep.load(2 * st + 1)] if (0 <= st < 8 and not prep.off) else []

    def pr(st):
        return [prep.read(2 * st), prep.read(2 * st + 1)] if (0 <= st < 8 and not prep.off) else []

    def ps(st):
        return [prep.store(2 * st), prep.store(2 * st + 1)] if (0 <= st < 8 and not prep.off) else []
    for f in pl(0) + pl(1):
        f()
    for st in range(9):
        if st < 8:
            k.wait_vm(tok[st + 1])
            k.I("s_barrier")
            compute(2 * st, read_items(st + 1) + pr(st - 1), 2)
            k.wait(lg=0)
            k.I("s_barrier")
            compute(2 * st + 1, later(st + 4) + ps(st - 1) + pl(st + 2), 2)
        else:
            compute(2 * st, pr(st - 1), 2)
            compute(2 * st + 1, ps(st - 1), 1)
        LS.stamp(f"st{st}")
    ST.stamp()
    nt = 1 if cls == 0 else 2
    k.I("v_and_b32", v(14), 15, v(2))
    k.I("v_lshrrev_b32", v(17), 4, v(2))
    k.I("v_lshlrev_b32", v(15), 3, v(14))
    k.I("v_add_u32", v(15), L_ST, v(15))
    k.I("s_lshl_b32", s(22), s(39), 7)
    k.I("v_add_u32", v(20), s(22), v(15))
    k.I("s_lshl_b32", s(22), s(36), 7)
    k.I("v_add_u32", v(21), s(22), v(15))
    k.I("v_and_b32", v(18), 3, v(14))
    for r in range(1, 4):
        k.I("v_cmp_eq_u32", "vcc", r, v(18))
        for t in range(nt):
            k.I("v_cndmask_b32", v(SA + 4 * t), v(SA + 4 * t), v(SA + 4 * t + r), "vcc")
    k.I("v_lshrrev_b32", v(18), 2, v(14))
    k.I("v_cmp_eq_u32", s(34, 2), v(18), v(17))
    k.I("v_lshlrev_b32", v(18), 4, v(17))
    k.I("s_mul_i32", s(22), s(27), 7 * 64)
    k.I("s_add_u32", s(22), s(22), L_CS)
    k.I("v_add_u32", v(18), s(22), v(18))
    k.I("s_lshl_b32", s(22), s(27), 2)
    k.I("v_add_u32", v(25), s(22), v(17))
    k.I("v_cmp_eq_u32", s(40, 2), 6, v(25))
    k.I("s_lshl_b32", s(22), s(27), 1)
    k.I("v_add_u32", v(25), s(22), v(17))
    k.I("v_cmp_gt_u32", s(32, 2), 4, v(25))
    k.I("s_mov_b64", "exec", s(34, 2))
    k.I("ds_write_b32", v(20), v(SA), mods="offset:4")
    if cls == 1:
        k.I("ds_write_b32", v(15), v(SA + 4), mods="offset:4")
    k.I("s_mov_b64", "exec", s(30, 2))
    for s_ in hs:
        k.I("ds_write_b128", v(18), v(ACC[(s_, "h")], 4), mods=f"offset:{64 * s_}")
    k.I("s_cmp_eq_u32", s(27), 0)
    k.I("s_cbranch_scc1", f"{L}_NS")
    k.I("s_mov_b64", "exec", s(40, 2))
    for t in range(2):
        k.I("ds_write_b32", v(20 + t), v(ACC[(6, t)]))
    if cls == 1:
        k.I("ds_write_b32", v(15), v(ACC[(6, "h")]))
    k.label(f"{L}_NS")
    k.I("s_mov_b64", "exec", -1)
    wo_tok = wo_items[20]()
    if not prep.off:
        prep.finish()
    k.I("v_mov_b32", v(26), hex(f32bits(1.0 / 576)))
    k.I("v_mov_b32", v(27), hex(f32bits(1.0 / 576)))
    k.I("v_mul_u32_u24", v(22), PQ, v(14))
    k.I("v_lshl_add_u32", v(22), v(17), 3, v(22))
    k.I("s_mul_i32", s(22), s(27), 7 * 32)
    k.I("s_add_u32", s(22), s(22), L_QKV)
    k.I("v_add_u32", v(22), s(22), v(22))
    k.I("s_mul_i32", s(22), s(39), 16 * PQ)
    k.I("v_add_u32", v(23), s(22), v(22))
    k.I("s_mul_i32", s(22), s(36), 16 * PQ)
    k.I("v_add_u32", v(24), s(22), v(22))
    k.dsq.append((-2, set()))
    k.wait(lg=0)
    k.I("s_barrier")
    STT = {0: 28, 1: 30, "h": 32}
    CSR = 40
    for t in range(2):
        k.I("ds_read_b64", v(STT[t], 2), v(20 + t))
    k.I("ds_read_b64", v(STT["h"], 2), v(15))
    for s_ in range(7):
        k.I("ds_read_b128", v(CSR + 4 * s_, 4), v(18), mods=f"offset:{64 * s_}")
    B = list(STT.values())
    for b in B:
        k.I("v_pk_mul_f32", v(b, 2), v(b, 2), v(26, 2))
    for b in B:
        k.I("v_fma_f32", v(b + 1), f"-{v(b)}", v(b), v(b + 1))
    for b in B:
        k.I("v_max_f32", v(b + 1), 0, v(b + 1))
    for b in B:
        k.I("v_add_f32", v(b + 1), hex(f32bits(1e-5)), v(b + 1))
    for b in B:
        k.I("v_rsq_f32", v(b + 1), v(b + 1))
    for b in B:
        k.I("v_mul_f32", v(b), f"-{v(b)}", v(b + 1))
    for n, t in enumerate(tiles):
        s_, T = t
        x = ACC[t]
        cs = CSR + 4 * s_
        for hh in range(2):
            k.I("v_pk_mul_f32", v(x + 2 * hh, 2), v(x + 2 * hh, 2), v(STT[T], 2), mods="op_sel:[0,1] op_sel_hi:[1,1]")
        for hh in range(2):
            k.I("v_pk_fma_f32", v(x + 2 * hh, 2), v(cs + 2 * hh, 2), v(STT[T], 2), v(x + 2 * hh, 2),
                mods="op_sel:[0,0,0] op_sel_hi:[1,0,1]")
        k.I("v_cvt_pk_bf16_f32", v(x), v(x), v(x + 1))
        k.I("v_cvt_pk_bf16_f32", v(x + 1), v(x + 2), v(x + 3))
        if s_ == 6:
            k.I("s_mov_b64", "exec", s(32, 2))
        k.I("ds_write_b64", v(22 if T == "h" else 23 + T), v(x, 2), mods=f"offset:{s_ * 32}")
        if s_ == 6:
            k.I("s_mov_b64", "exec", -1)
    k.wait(vm=3 if not prep.off else 1)


def attention(k, wo_items):
    QF, KF, VF, SS, MX = 20, 36, 68, 100, 4
    c0 = [4 * (18 * h // 4) for h in range(4)]
    for h in range(4):
        for hf in range(2):
            k.I("ds_read_b64", v(QF + 4 * h + 2 * hf, 2), v(AQ), mods=f"offset:{2 * c0[h] + 8 * hf}")
        for t in range(2):
            for hf in range(2):
                k.I("ds_read_b64", v(KF + 16 * t + 4 * h + 2 * hf, 2), v(AKP if t == 0 else AQ),
                    mods=f"offset:{144 + 2 * c0[h] + 8 * hf}")
    k.I("s_lshl_b32", s(22), s(20), 2)
    k.I("s_lshl_b32", s(23), s(27), 1)
    k.I("s_add_u32", s(22), s(22), s(23))
    k.I("s_mul_i32", s(22), s(22), 72 * 256)
    k.I("s_mul_i32", s(23), s(21), 9 * 256)
    k.I("s_add_u32", s(22), s(22), s(23))
    k.I("s_add_u32", s(22), s(22), hex(WS_O))
    k.I("v_cmp_gt_u32", s(40, 2), 16, v(2))
    k.I("s_mov_b32", s(24), hex(f32bits(LOG2E * 18 ** -0.5)))
    k.bgq = list(wo_items)
    k.bg_period = 1
    for h in range(4):
        for e in range(4):
            x = QF + 4 * h + e
            k.I("v_and_b32", v(x), v(QM + 4 * (h % 2) + e), v(x))
        k.I(MF, v(SS + 8 * h, 4), v(KF + 4 * h, 4), v(QF + 4 * h, 4), v(B0, 4))
        k.I(MF, v(SS + 8 * h + 4, 4), v(KF + 16 + 4 * h, 4), v(QF + 4 * h, 4), v(BC, 4))
    for h in range(4):
        for rt in range(2):
            for kt in range(2):
                k.I("ds_read_b64_tr_b16", v(VF + 8 * h + 4 * rt + 2 * kt, 2), v(AVP if kt == 0 else AV),
                    mods=f"offset:{288 + 2 * c0[h] + 32 * rt}")
    for h in range(4):
        b = SS + 8 * h
        k.I("v_max3_f32", v(MX + h), v(b), v(b + 1), v(b + 2))
    for h in range(4):
        b = SS + 8 * h
        k.I("v_max3_f32", v(MX + h), v(MX + h), v(b + 3), v(b + 4))
    for h in range(4):
        b = SS + 8 * h
        k.I("v_max3_f32", v(MX + 4 + h), v(b + 5), v(b + 6), v(b + 7))
    for h in range(4):
        k.I("v_max_f32", v(MX + h), v(MX + h), v(MX + 4 + h))
    reduce_groups(k, [MX + h for h in range(4)], MX + 4, op="v_max_f32")
    for h in range(4):
        k.I("v_mul_f32", v(MX + h), s(24), v(MX + h))
    OA, OB = QF, KF

    def pv(hp):
        k.I(MF, v(SS + 8 * hp + 4, 4), v(ONES, 4), v(SS + 8 * hp, 4), 0)
        k.I(MF, v(OA + 4 * hp, 4), v(VF + 8 * hp, 4), v(SS + 8 * hp, 4), 0)
        k.I(MF, v(OB + 4 * hp, 4), v(VF + 8 * hp + 4, 4), v(SS + 8 * hp, 4), 0)
    for h in range(4):
        for e in range(8):
            k.I("v_fma_f32", v(SS + 8 * h + e), v(SS + 8 * h + e), s(24), f"-{v(MX + h)}")
        for e in range(8):
            k.I("v_exp_f32", v(SS + 8 * h + e), v(SS + 8 * h + e))
        for e in range(4):
            k.I("v_cvt_pk_bf16_f32", v(SS + 8 * h + e), v(SS + 8 * h + 2 * e), v(SS + 8 * h + 2 * e + 1))
        if h > 0:
            pv(h - 1)
    pv(3)
    while k.bgq:
        k.bgq.pop(0)()

    def scale(g):
        for r in range(4):
            k.I("v_mul_f32", v(OA + 4 * g + r), v(MX + g), v(OA + 4 * g + r))
        for r in range(2 if g % 2 == 0 else 4):
            k.I("v_mul_f32", v(OB + 4 * g + r), v(MX + g), v(OB + 4 * g + r))
    for h in range(4):
        k.I("v_rcp_f32", v(MX + h), v(SS + 8 * h + 4))
        if h:
            scale(h - 1)
    scale(3)
    for hp in range(2):
        e_, o_ = 2 * hp, 2 * hp + 1
        for r in range(2):
            k.I("v_cndmask_b32", v(OA + 4 * o_ + r), v(OA + 4 * o_ + r), v(OB + 4 * e_ + r), s(40, 2))
        for (reg, G) in ((OA + 4 * e_, 9 * hp), (OA + 4 * o_, 9 * hp + 4), (OB + 4 * o_, 9 * hp + 8)):
            k.I("v_cvt_pk_bf16_f32", v(reg), v(reg), v(reg + 1))
            k.I("v_cvt_pk_bf16_f32", v(reg + 1), v(reg + 2), v(reg + 3))
            last = G % 9 == 8
            if last:
                k.I("s_mov_b64", "exec", s(40, 2))
            k.I("buffer_store_dwordx2", v(reg, 2), v(AO + G % 2), s(S_WS, 4), s(22), mods=f"offen offset:{(G // 2) * 256} sc1")
            if last:
                k.I("s_mov_b64", "exec", -1)


def emit_ab(k, U, ST, dbg="", sc=""):
    LS = LStamps(k, 255, 100, "lst" in dbg)
    LS.stamp("start")
    k.I("s_load_dwordx4", s(20, 4), s(0, 2), KA_X)
    k.I("s_load_dwordx4", s(24, 4), s(0, 2), KA_DBG)
    k.I("s_load_dwordx2", s(28, 2), s(0, 2), KA_WO)
    k.I("s_load_dwordx4", s(32, 4), s(0, 2), KA_WG)
    k.I("s_load_dwordx2", s(30, 2), s(0, 2), KA_WD)
    k.I("v_lshrrev_b32", v(1), 6, v(0))
    k.I("v_and_b32", v(2), 63, v(0))
    k.I("v_readfirstlane_b32", s(3), v(1))
    k.I("v_mov_b32", v(3), 0)
    k.I("v_lshrrev_b32", v(14), 3, v(2))
    k.I("v_lshrrev_b32", v(15), 1, v(14))
    k.I("v_and_b32", v(16), 7, v(2))
    k.wait(lg=0)
    LS.stamp("kernarg")
    srd(k, S_X, 20, S * D * 2)
    srd(k, S_QKV, 22, D * 3 * D * 2)
    srd(k, S_WS, 26, WS_SIZE)
    srd(k, S_DBG, 24, 256)
    srd(k, S_WO, 28, D * D * 2)
    srd(k, S_WG, 32, D * F * 2)
    srd(k, S_WU, 34, D * F * 2)
    srd(k, S_WD, 30, D * F * 2)
    k.I("s_bfe_u32", s(20), s(2), hex((2 << 16) | 1))
    k.I("s_lshl_b32", s(20), s(20), 3)
    k.I("s_bfe_u32", s(21), s(2), hex((3 << 16) | 3))
    k.I("s_add_u32", s(20), s(20), s(21))
    k.I("s_and_b32", s(21), s(2), 1)
    k.I("s_lshl_b32", s(21), s(21), 2)
    k.I("s_lshr_b32", s(22), s(2), 6)
    k.I("s_add_u32", s(21), s(21), s(22))
    k.I("s_and_b32", s(27), s(3), 1)
    k.I("s_lshr_b32", s(28), s(3), 1)
    VX = 4
    k.I("s_mov_b32", s(23), 1152)
    k.I("s_lshl_b32", s(22), s(27), 2)
    k.I("v_add_u32", v(15), s(22), v(15))
    k.I("v_xor_b32", v(15), v(15), v(16))
    k.I("s_lshl_b32", s(22), s(20), 6)
    k.I("s_lshl_b32", s(24), s(27), 4)
    k.I("s_add_u32", s(24), s(24), s(22))
    k.I("v_lshl_add_u32", v(16), v(14), 1, s(24))
    k.I("v_mul_lo_u32", v(16), v(16), s(23))
    k.I("v_lshl_add_u32", v(VX), v(15), 4, v(16))
    k.I("s_add_u32", s(24), s(22), s(27))
    k.I("s_sub_u32", s(24), s(24), 16)
    k.I("v_lshl_add_u32", v(16), v(14), 1, s(24))
    k.I("v_mul_lo_u32", v(16), v(16), s(23))
    k.I("v_lshl_add_u32", v(VX + 1), v(15), 4, v(16))
    k.I("s_mul_i32", s(22), s(28), 14)
    k.I("s_add_u32", s(22), s(22), s(27))
    k.I("s_lshl_b32", s(24), s(22), 6)
    k.I("v_add_u32", v(18), s(24), v(2))
    k.I("s_lshl_b32", s(24), s(22), 10)
    k.I("s_add_u32", s(24), s(24), XB)
    k.I("s_lshl_b32", s(37), s(27), 10)
    k.I("s_mul_i32", s(25), s(21), 144)
    k.I("s_mov_b32", s(26), s(25))
    k.I("s_and_b32", s(34), s(20), 7)
    k.I("s_and_b32", s(35), s(21), 3)
    k.I("s_lshl_b32", s(35), s(35), 1)
    k.I("s_add_u32", s(34), s(34), s(35))
    k.I("s_sub_u32", s(35), s(34), 9)
    k.I("s_cmp_ge_u32", s(34), 9)
    k.I("s_cselect_b32", s(34), s(35), s(34))
    if "norot" in dbg:
        k.I("s_mov_b32", s(34), 0)
    k.I("s_mul_i32", s(35), s(34), 64 * 3456)
    k.I("s_add_u32", s(25), s(25), s(35))
    k.I("s_lshl_b32", s(34), s(34), 7)
    k.I("s_or_b32", s(22), s(2), s(3))
    k.I("s_cmp_lg_u32", s(22), 0)
    k.I("s_cbranch_scc1", f"{U}_NN")
    k.I("s_memrealtime", s(22, 2))
    k.wait(lg=0)
    k.I("s_or_b32", s(22), s(22), 1)
    k.I("v_mov_b32", v(248), s(22))
    k.I("v_mov_b32", v(249), s(23))
    k.I("buffer_store_dwordx2", v(248, 2), v(3), s(S_DBG, 4), 0, mods="offen sc1")
    k.vmq.pop()
    k.label(f"{U}_NN")
    prep = Prep(k, U, sc)
    prep.off = "noprep" in dbg
    prep.decode()

    def wo_item(n):
        def f():
            base, lim, off = (0, 38, 4 * n) if n < 10 else ((39, 38, 4 * (n - 10)) if n < 20 else (78, 2, 0))
            if off + 3 > lim:
                k.I("s_add_u32", s(29), s(3), off)
                k.I("s_min_u32", s(29), s(29), lim)
                k.I("s_add_u32", s(29), s(29), base)
                k.I("s_lshl_b32", "m0", s(29), 10)
                k.I("s_lshl_b32", s(29), s(29), 6)
                k.I("v_add_u32", v(250), s(29), v(2))
            else:
                k.I("v_add_u32", v(250), 64 * (base + off), v(0))
                k.I("s_lshl_b32", s(29), s(3), 10)
                k.I("s_add_u32", "m0", s(29), (base + off) * 1024)
            k.I("v_mul_u32_u24", v(251), 7282, v(250))
            k.I("v_lshrrev_b32", v(251), 16, v(251))
            k.I("v_mul_u32_u24", v(251), 1152 - 144, v(251))
            k.I("v_lshl_add_u32", v(251), v(250), 4, v(251))
            k.I("buffer_load_dwordx4", v(251), s(S_WO, 4), s(26), mods="offen lds")
        return f
    wo_items = [wo_item(n) for n in range(21)]

    def touch_w(n):
        def f():
            k.I("v_add_u32", v(250), 256 * n, v(0))
            k.I("v_min_u32", v(250), 431, v(250))
            k.I("v_mul_u32_u24", v(251), 10923, v(250))
            k.I("v_lshrrev_b32", v(251), 16, v(251))
            k.I("v_mul_u32_u24", v(252), 6, v(251))
            k.I("v_sub_u32", v(250), v(250), v(252))
            k.I("v_mul_u32_u24", v(251), 8 * 3456, v(251))
            k.I("v_lshrrev_b32", v(252), 1, v(250))
            k.I("v_mul_u32_u24", v(252), 1152, v(252))
            k.I("v_add_u32", v(251), v(251), v(252))
            k.I("v_and_b32", v(250), 1, v(250))
            k.I("v_mul_u32_u24", v(250), 140, v(250))
            k.I("v_add_u32", v(251), v(251), v(250))
            k.I("s_and_b32", s(29), s(20), 7)
            k.I("s_mul_i32", s(29), s(29), 3456)
            k.I("s_add_u32", s(29), s(29), s(26))
            k.I("buffer_load_dword", v(194 + n), v(251), s(S_QKV, 4), s(29), mods="offen")
        return f

    def touch_x():
        k.I("v_mul_u32_u24", v(251), 1152, v(2))
        k.I("s_and_b32", s(29), s(21), 3)
        k.I("s_lshl_b32", s(38), s(3), 2)
        k.I("s_add_u32", s(29), s(29), s(38))
        k.I("s_min_u32", s(29), s(29), 8)
        k.I("s_lshl_b32", s(29), s(29), 7)
        k.I("s_mul_i32", s(38), s(20), 64 * 1152)
        k.I("s_add_u32", s(29), s(29), s(38))
        k.I("buffer_load_dword", v(196), v(251), s(S_X, 4), s(29), mods="offen")

    def touch_wo():
        k.I("v_min_u32", v(250), 143, v(0))
        k.I("v_lshrrev_b32", v(251), 1, v(250))
        k.I("v_mul_u32_u24", v(251), 8 * 1152, v(251))
        k.I("v_and_b32", v(250), 1, v(250))
        k.I("v_mul_u32_u24", v(250), 140, v(250))
        k.I("v_add_u32", v(251), v(251), v(250))
        k.I("s_and_b32", s(29), s(20), 7)
        k.I("s_mul_i32", s(29), s(29), 1152)
        k.I("s_add_u32", s(29), s(29), s(26))
        k.I("buffer_load_dword", v(197), v(251), s(S_WO, 4), s(29), mods="offen")
    touch_items = [touch_w(0), touch_x, touch_w(1), touch_wo] if "touch" in dbg else []
    k.I("v_lshrrev_b32", v(52), 4, v(2))
    k.I("v_lshlrev_b32", v(52), 3, v(52))
    k.I("v_bfe_u32", v(53), v(2), 2, 2)
    k.I("v_add_u32", v(52), v(52), v(53))
    k.I("v_mul_u32_u24", v(52), 144, v(52))
    k.I("v_and_b32", v(53), 3, v(2))
    k.I("v_lshl_add_u32", v(192), v(53), 3, v(52))
    k.I("v_add_u32", v(193), 9 * 4608, v(192))

    def wo(kb, r, h=None):
        n = 5 * kb + r
        vg = list(range(88, 160, 4)) + list(range(168, 184, 4)) + list(range(232, 248, 4))
        f, b = ("a", 4 * n) if n < 64 else ("v", vg[n - 64])
        return R(f, b, 4) if h is None else R(f, b + 2 * h, 2)
    wofrag = [lambda kb=kb, r=r, h=h: k.I("ds_read_b64_tr_b16", wo(kb, r, h), v(192 + kb // 9),
                                          mods=f"offset:{(kb % 9) * 4608 + h * 576 + r * 32}")
              for kb in range(18) for r in range(5) for h in range(2)]
    LS.stamp("setup")
    n0 = LS.n
    k.I("s_cmp_lg_u32", s(28), 0)
    k.I("s_cbranch_scc1", f"{U}_A1")
    for cls in range(2):
        if cls == 1:
            k.label(f"{U}_A1")
            k.vmq, k.dsq = [], []
        if cls == 1:
            LS.n, LS.names = n0, LS.names[:n0]
        gemm(k, U, cls, ST if cls == 0 else ST.clone(), prep, wo_items, touch_items, wofrag, dbg, LS)
        if cls == 0:
            k.I("s_branch", f"{U}_AJ")
    k.label(f"{U}_AJ")
    k.dsq = [(-2, set())]
    k.wait(lg=0)
    k.I("s_barrier")
    ST.stamp()
    k.I("buffer_load_dwordx2", v(248, 2), v(3), s(S_DBG, 4), 0, mods="offen sc1")
    attention(k, wofrag[0:128])
    ST.stamp()
    k.wait(vm=0)
    k.I("s_barrier")
    k.I("s_mov_b32", s(33), 20000)
    k.label(f"{U}_NL")
    k.I("v_readfirstlane_b32", s(22), v(248))
    k.I("s_cmp_lg_u32", s(22), 0)
    k.I("s_cbranch_scc1", f"{U}_NOK")
    k.I("s_sub_u32", s(33), s(33), 1)
    k.I("s_cmp_eq_u32", s(33), 0)
    k.I("s_cbranch_scc1", f"{U}_NOK")
    k.I("buffer_load_dwordx2", v(248, 2), v(3), s(S_DBG, 4), 0, mods="offen sc1")
    k.wait(vm=0)
    k.I("s_branch", f"{U}_NL")
    k.label(f"{U}_NOK")
    k.I("s_lshl_b32", s(24), s(20), 7)
    k.I("s_add_u32", s(24), s(24), hex(WS_F0))
    k.I("s_cmp_lg_u32", s(3), 0)
    k.I("s_cbranch_scc1", f"{U}_NF")
    k.I("s_lshl_b32", s(23), s(21), 3)
    k.I("s_add_u32", s(23), s(23), s(24))
    k.I("buffer_store_dwordx2", v(248, 2), v(3), s(S_WS, 4), s(23), mods="offen sc1")
    k.vmq.pop()
    k.label(f"{U}_NF")
    ST.stamp()
    k.I("s_lshl_b32", s(22), s(20), 2)
    k.I("s_add_u32", s(22), s(22), s(3))
    k.I("v_and_b32", v(8), 15, v(2))
    k.I("v_lshrrev_b32", v(9), 4, v(2))
    k.I("v_mul_u32_u24", v(10), 1152, v(8))
    k.I("v_lshl_add_u32", v(10), v(9), 3, v(10))
    k.I("s_mul_i32", s(23), s(22), 16 * 1152)
    k.I("s_add_u32", s(23), s(23), s(26))
    RES = 200
    for r in range(5):
        k.I("buffer_load_dwordx2", v(RES + 2 * r, 2), v(10), s(S_X, 4), s(23), mods=f"offen offset:{32 * r}")
    LS.stamp("flag")

    for f in wofrag[128:]:
        f()
    k.I("v_and_b32", v(11), 7, v(2))
    k.I("v_lshlrev_b32", v(11), 3, v(11))
    k.I("s_mov_b32", s(33), 40000)
    k.label(f"{U}_PL")
    k.I("buffer_load_dwordx2", v(6, 2), v(11), s(S_WS, 4), s(24), mods="offen sc1")
    k.wait(vm=0)
    k.I("v_cmp_eq_u64", "vcc", v(248, 2), v(6, 2))
    k.I("s_cmp_eq_u64", "vcc", -1)
    k.I("s_cbranch_scc1", f"{U}_POK")
    k.I("s_sub_u32", s(33), s(33), 1)
    k.I("s_cmp_eq_u32", s(33), 0)
    k.I("s_cbranch_scc1", f"{U}_POK")
    k.I("s_sleep", 1)
    k.I("s_branch", f"{U}_PL")
    k.label(f"{U}_POK")
    ST.stamp()
    OF = 16
    k.I("v_lshlrev_b32", v(11), 4, v(2))
    k.I("s_mul_i32", s(24), s(22), 18 * 1024)
    k.I("s_add_u32", s(24), s(24), hex(WS_O))
    for kb in range(18):
        if kb % 4 == 0 and kb:
            k.I("s_add_u32", s(24), s(24), 4096)
        k.I("buffer_load_dwordx4", v(OF + 4 * kb, 4), v(11), s(S_WS, 4), s(24), mods=f"offen offset:{(kb % 4) * 1024} sc1")
    k.I("v_lshlrev_b32", v(10), 4, v(8))
    k.I("v_lshrrev_b32", v(11), 1, v(9))
    k.I("v_lshl_add_u32", v(10), v(11), 8, v(10))
    k.I("v_and_b32", v(11), 1, v(9))
    k.I("v_lshl_add_u32", v(10), v(11), 3, v(10))
    k.I("s_mul_i32", s(23), s(22), 72 * 256)
    k.I("s_mul_i32", s(24), s(21), 9 * 256)
    k.I("s_add_u32", s(23), s(23), s(24))
    k.I("s_add_u32", s(23), s(23), hex(WS_H))
    k.I("v_cmp_gt_u32", s(40, 2), 32, v(2))
    k.I("v_mov_b32", v(4), 0)
    k.I("v_mov_b32", v(5), 0)
    k.I("v_mov_b32", v(6), "0x3f803f80")
    BACC = 212
    for kb in range(18):
        for r in range(5):
            ac = v(BACC + 4 * r, 4)
            k.I(MF, ac, wo(kb, r), v(OF + 4 * kb, 4), ac if kb else 0)
    ST.stamp()
    for r in range(5):
        x = BACC + 4 * r
        t = 16 + 4 * (r % 2)
        for i in range(2):
            k.I("v_lshlrev_b32", v(t + 2 * i), 16, v(RES + 2 * r + i))
            k.I("v_and_b32", v(t + 2 * i + 1), "0xffff0000", v(RES + 2 * r + i))
        for i in range(4):
            k.I("v_add_f32", v(x + i), v(x + i), v(t + i))
        k.I("v_cvt_pk_bf16_f32", v(x), v(x), v(x + 1))
        k.I("v_cvt_pk_bf16_f32", v(x + 1), v(x + 2), v(x + 3))
        if r == 4:
            k.I("s_mov_b64", "exec", s(40, 2))
        k.I("buffer_store_dwordx2", v(x, 2), v(10), s(S_WS, 4), s(23), mods=f"offen offset:{r * 512} {sc}")
        for i in range(2):
            k.I("v_dot2c_f32_bf16", v(4), v(x + i), v(6))
            k.I("v_dot2c_f32_bf16", v(5), v(x + i), v(x + i))
        if r == 4:
            k.I("s_mov_b64", "exec", -1)
    reduce_groups(k, [4, 5], 24)
    k.I("v_lshlrev_b32", v(10), 6, v(8))
    k.I("s_lshl_b32", s(23), s(22), 10)
    k.I("s_lshl_b32", s(24), s(21), 3)
    k.I("s_add_u32", s(23), s(23), s(24))
    k.I("s_add_u32", s(23), s(23), hex(WS_ST))
    k.I("buffer_store_dwordx2", v(4, 2), v(10), s(S_WS, 4), s(23), mods=f"offen {sc}")
    LS.stamp("B done")
    LS.dump(S_WS, 254, 1)


def build_ab(dbg=""):
    k = Kern("kab_kernel")
    ST = Stamps(k, 64, "stamp" in dbg)
    k.I("s_cmp_ge_u32", s(2), 256)
    k.I("s_cbranch_scc1", "KAB_END")
    ST.stamp()
    emit_ab(k, "KAB", ST, dbg)
    k.I("v_lshlrev_b32", v(8), 2, v(2))
    k.I("s_lshl_b32", s(22), s(2), 7)
    k.I("s_add_u32", s(22), s(22), hex(WS_F1))
    k.I("s_add_u32", s(23), s(22), hex(WS_F2 - WS_F1))
    k.I("v_cmp_gt_u32", "vcc", 32, v(2))
    k.I("s_and_saveexec_b64", s(30, 2), "vcc")
    k.I("buffer_store_dword", v(3), v(8), s(S_WS, 4), s(22), mods="offen")
    k.I("buffer_store_dword", v(3), v(8), s(S_WS, 4), s(23), mods="offen")
    k.I("s_mov_b64", "exec", s(30, 2))
    ST.stamp()
    ST.dump(S_WS, 100, 3)
    k.label("KAB_END")
    k.I("s_endpgm")
    return k, "grid=(256,1,1) block=(256,1,1) lds=%d" % LDS_TOTAL
```

```python
from common import *
from k_frag import f32bits
from collections import deque

RING = 5
STAGE = 16384
NSTG = 19
LDS_WD = RING * STAGE
LDS_CS = LDS_WD + 4 * NSTG * 1024
LDS_TOTAL = LDS_CS + 2304
BUF = 73728
MF = "v_mfma_f32_16x16x32_bf16"
LOG2E = 1.4426950408889634
NSTAT = 8


class Pool:
    def __init__(self, vlo, vhi, alo, ahi):
        self.v = deque(range(vlo, vhi, 4))
        self.a = deque(range(alo, ahi, 4))

    def get(self, kind="any"):
        if kind == "v" or (kind == "any" and not self.a):
            return ("v", self.v.popleft())
        return ("a", self.a.popleft())

    def put(self, r):
        (self.v if r[0] == "v" else self.a).append(r[1])

    def n(self):
        return len(self.v) + len(self.a)


def r4(r):
    return R(r[0], r[1], 4)


def build_cd(dbg="", NA=7):
    k = Kern("kcd_kernel")
    ST = Stamps(k, 64, "stamp" in dbg)
    if "stC" in dbg or "stD" in dbg:
        ST2 = Stamps(k, 64, True)
    else:
        ST2 = Stamps(k, 64, False)
    SC = "sc1" if "nosc" not in dbg else ""
    SCI = ""
    k.I("s_cmp_ge_u32", s(2), 256)
    k.I("s_cbranch_scc1", "KCD_END")
    ST.stamp()
    k.I("s_load_dwordx2", s(4, 2), s(0, 2), KA_WS)
    k.I("s_load_dwordx2", s(6, 2), s(0, 2), KA_OUT)
    k.I("v_lshrrev_b32", v(1), 6, v(0))
    k.I("v_and_b32", v(2), 63, v(0))
    k.I("v_readfirstlane_b32", s(3), v(1))
    k.I("s_bfe_u32", s(16), s(2), hex((2 << 16) | 1))
    k.I("s_bfe_u32", s(17), s(2), hex((2 << 16) | 3))
    k.I("s_and_b32", s(21), s(2), 1)
    k.I("s_lshl_b32", s(21), s(21), 3)
    k.I("s_lshr_b32", s(20), s(2), 5)
    k.I("s_add_u32", s(21), s(21), s(20))
    k.I("s_lshl_b32", s(20), s(16), 2)
    k.I("s_add_u32", s(20), s(20), s(17))
    k.I("v_lshlrev_b32", v(3), 4, v(2))
    k.I("s_lshl_b32", s(22), s(21), 3)
    k.I("s_lshl_b32", s(23), s(3), 1)
    k.I("s_add_u32", s(22), s(22), s(23))
    k.I("s_mul_i32", s(24), s(20), 9 * 18 * 4096)
    k.I("s_add_u32", s(24), s(24), hex(WS_WGU))
    k.I("s_lshl_b32", s(25), s(3), 12)
    k.I("s_add_u32", s(30), s(24), s(25))
    k.I("s_add_u32", s(30), s(30), 72 * 4096)
    k.I("s_mul_i32", s(31), s(3), 18 * 4096)
    k.I("s_add_u32", s(24), s(24), s(31))
    k.I("s_mul_i32", s(26), s(22), 18 * 1024)
    k.I("s_add_u32", s(26), s(26), hex(WS_H))
    k.I("s_add_u32", s(27), s(26), 18 * 1024)
    k.wait(lg=0)
    srd(k, 8, 4, WS_SIZE)
    srd(k, 12, 6, S * D * 2)

    P = Pool(28, 256, 0, 256)
    X = {(tt, kb): P.get("a") for kb in range(18) for tt in range(2)}
    ACC = {(c, tile, tt): P.get("v") for c in range(4) for tile in range(4) for tt in range(2)}
    CS = [P.get("v") for _ in range(4)]
    WF = {(b, tile): P.get("a") for b in range(3) for tile in range(4)}

    dma_tok = {}
    wtok = {}

    NSTAGE = 18 + 23

    def dma_items(st):
        slot = st % RING

        def one(i):
            def f():
                if i == 0:
                    k.I("s_add_u32", "m0", s(25), slot * STAGE)
                    if st == NSTAGE - 1:
                        k.I("s_and_b32", s(59), s(3), 2)
                        k.I("s_lshl_b32", s(59), s(59), 12)
                        k.I("s_sub_u32", s(30), s(30), s(59))
                sr = 24 if st < 18 else 30
                t = k.I("buffer_load_dwordx4", v(3), s(8, 4), s(sr), mods=f"offen offset:{i * 1024} lds")
                if i == 3:
                    dma_tok[st] = t
                    k.I("s_add_u32", s(sr), s(sr), 4096 if st < 18 else STAGE)
            return f
        return [one(i) for i in range(4)]

    def x_items(kb0, kb1):
        L = []
        for kb in range(kb0, kb1):
            for tt in range(2):
                def f(kb=kb, tt=tt):
                    if kb % 4 == 0 and kb:
                        k.I("s_add_u32", s(26 + tt), s(26 + tt), 4096)
                    k.I("buffer_load_dwordx4", r4(X[(tt, kb)]), v(3), s(8, 4), s(26 + tt), mods=f"offen offset:{(kb % 4) * 1024}")
                L.append(f)
        return L

    for st in range(3):
        for f in dma_items(st) + x_items(st, st + 1):
            f()
    k.I("v_add_u32", v(4), 3 * STAGE, v(3))
    k.I("s_mul_i32", s(61), s(3), NSTG * 1024)
    k.I("s_add_u32", s(61), s(61), LDS_WD)
    k.I("v_add_u32", v(5), s(61), v(3))
    k.I("v_add_u32", v(14), 144 * 1024, v(3))
    k.I("v_mov_b32", v(15), 0)
    k.I("s_mul_i32", s(28), s(22), 144 * 1024)
    k.I("s_mul_i32", s(29), s(20), 9 * 1024)
    k.I("s_add_u32", s(28), s(28), s(29))
    k.I("s_add_u32", s(28), s(28), hex(WS_HH))
    k.I("s_mul_i32", s(53), s(16), 36)
    k.I("s_mul_i32", s(54), s(3), 9)
    k.I("s_add_u32", s(53), s(53), s(54))
    k.I("s_mul_i32", s(32), s(53), 36864)
    k.I("s_mul_i32", s(54), s(17), 9216)
    k.I("s_add_u32", s(32), s(32), s(54))
    k.I("s_add_u32", s(32), s(32), hex(WS_WD))
    k.I("s_lshl_b32", s(54), s(21), 2)
    k.I("s_add_u32", s(55), s(54), s(16))
    k.I("s_lshl_b32", s(55), s(55), 2)
    k.I("s_add_u32", s(40), s(55), s(3))
    k.I("s_lshl_b32", s(40), s(40), 7)
    k.I("s_add_u32", s(40), s(40), hex(WS_F1))
    k.I("s_add_u32", s(44), s(55), s(17))
    k.I("s_lshl_b32", s(44), s(44), 7)
    k.I("s_lshl_b32", s(56), s(3), 2)
    k.I("s_add_u32", s(44), s(44), s(56))
    k.I("s_add_u32", s(44), s(44), hex(WS_F1))
    k.I("s_add_u32", s(55), s(54), s(17))
    k.I("s_lshl_b32", s(55), s(55), 2)
    for p in range(4):
        k.I("s_add_u32", s(56), s(16), p + 1)
        k.I("s_and_b32", s(56), s(56), 3)
        k.I("s_lshl_b32", s(57), s(21), 2)
        k.I("s_add_u32", s(57), s(57), s(56))
        k.I("s_mul_i32", s(57), s(57), 288)
        k.I("s_add_u32", s(57), s(57), s(53))
        k.I("s_lshl_b32", s(57), s(57), 10)
        k.I("s_add_u32", s(36 + p), s(57), hex(WS_HH))
        k.I("s_add_u32", s(57), s(55), s(56))
        if p < 3:
            k.I("s_lshl_b32", s(58), s(57), 2)
            k.I("s_add_u32", s(58), s(58), s(16))
            k.I("s_mul_i32", s(58), s(58), 18432)
            k.I("s_add_u32", s(45 + p), s(58), hex(WS_PART))
            k.I("s_lshl_b32", s(58), s(57), 5)
            k.I("s_lshl_b32", s(59), s(3), 2)
            k.I("s_add_u32", s(58), s(58), s(59))
            k.I("s_add_u32", s(58), s(58), s(16))
            k.I("s_lshl_b32", s(58), s(58), 2)
            k.I("s_add_u32", s(48 + p), s(58), hex(WS_F2))
        else:
            k.I("s_mul_i32", s(51), s(57), 4 * 18432)
            k.I("s_add_u32", s(51), s(51), hex(WS_PART))
            k.I("s_lshl_b32", s(52), s(57), 7)
            k.I("s_lshl_b32", s(59), s(3), 4)
            k.I("s_add_u32", s(52), s(52), s(59))
            k.I("s_add_u32", s(52), s(52), hex(WS_F2))

    tS = [P.get("v") for _ in range(8)]
    tC = [P.get("v") for _ in range(9)]

    def stat_loads(tS, sbase_reg, ntt=2):
        L = []
        for tt in range(ntt):
            for i in range(4):
                L.append(lambda tt=tt, i=i: k.I("buffer_load_dwordx4", r4(tS[4 * tt + i]), v(7), s(8, 4), s(sbase_reg),
                                                mods=f"offen offset:{tt * 1024 + 16 * i} {SCI}"))
        return L

    def stat_math(t4, dmean, drstd):
        b = [g[1] for g in t4]
        L = []
        for (x, y) in ((0, 1), (2, 3), (0, 2)):
            for i in range(4):
                L.append(lambda x=x, y=y, i=i: k.I("v_add_f32", v(b[x] + i), v(b[x] + i), v(b[y] + i)))
        L.append(lambda: k.I("v_add_f32", v(b[0]), v(b[0]), v(b[0] + 2)))
        L.append(lambda: k.I("v_add_f32", v(b[0] + 1), v(b[0] + 1), v(b[0] + 3)))
        L.append(lambda: k.I("v_mul_f32", v(b[0]), hex(f32bits(-1.0 / 576)), v(b[0])))
        L.append(lambda: k.I("v_mul_f32", v(b[0] + 1), hex(f32bits(1.0 / 576)), v(b[0] + 1)))
        L.append(lambda: k.I("v_fma_f32", v(b[0] + 1), f"-{v(b[0])}", v(b[0]), v(b[0] + 1)))
        L.append(lambda: k.I("v_max_f32", v(b[0] + 1), 0, v(b[0] + 1)))
        L.append(lambda: k.I("v_add_f32", v(b[0] + 1), hex(f32bits(1e-5)), v(b[0] + 1)))
        L.append(lambda: k.I("v_rsq_f32", v(drstd), v(b[0] + 1)))
        if dmean is not None:
            L.append(lambda: k.I("v_mov_b32", v(dmean), v(b[0])))
        return L

    k.I("v_and_b32", v(7), 15, v(2))
    k.I("v_lshlrev_b32", v(7), 6, v(7))
    k.I("s_lshl_b32", s(23), s(22), 10)
    k.I("s_add_u32", s(23), s(23), hex(WS_ST))
    k.I("v_min_u32", v(24), 143, v(0))
    k.I("v_lshlrev_b32", v(24), 4, v(24))
    k.I("s_mul_i32", s(31), s(20), 2304)
    k.I("s_add_u32", s(31), s(31), hex(WS_CS))
    k.I("v_lshrrev_b32", v(6), 4, v(2))
    k.I("v_lshlrev_b32", v(6), 4, v(6))
    k.I("v_add_u32", v(6), LDS_CS, v(6))

    def cs_loads():
        L = []
        for p in range(9):
            def f(p=p):
                k.I("buffer_load_dwordx4", r4(tC[p]), v(24), s(8, 4), s(31), mods="offen")
                if p < 8:
                    k.I("s_add_u32", s(31), s(31), 36864)
            L.append(f)
        return L

    def startup_math():
        L = []
        for tt in range(2):
            L += stat_math(tS[4 * tt:4 * tt + 4], 8 + tt, 10 + tt)
            L.append(lambda tt=tt: k.I("v_mul_f32", v(10 + tt), hex(f32bits(-LOG2E)), v(10 + tt)))
            L.append(lambda tt=tt: k.I("v_mul_f32", v(12 + tt), v(10 + tt), v(8 + tt)))
        for p in range(1, 9):
            for i in range(4):
                L.append(lambda p=p, i=i: k.I("v_add_f32", v(tC[0][1] + i), v(tC[0][1] + i), v(tC[p][1] + i)))
        L.append(lambda: k.I("v_add_u32", v(24), LDS_CS, v(24)))
        L.append(lambda: k.I("ds_write_b128", v(24), r4(tC[0])))

        def rel():
            for g in tS + tC:
                P.put(g)
        L.append(rel)
        return L

    def w_read(q, tile):
        st, r = divmod(q, 4)
        slot = st % RING
        wtok[(q, tile)] = k.I("ds_read_b128", r4(WF[(q % 3, tile)]), v(3 + slot // 3),
                              mods=f"offset:{(slot % 3) * STAGE + r * 4096 + tile * 1024}")

    hh_store_tok = {}

    def epi_items(c):
        L = []
        st = c
        for tile in range(4):
            L.append(lambda tile=tile: k.I("ds_read_b128", r4(CS[tile]), v(6), mods=f"offset:{c * 256 + tile * 64}"))
        for tt in range(2):
            g = [ACC[(st, e // 4, tt)][1] + e % 4 for e in range(8)]
            u = [ACC[(st, 2 + e // 4, tt)][1] + e % 4 for e in range(8)]
            cg = [CS[e // 4][1] + e % 4 for e in range(8)]
            cu = [CS[2 + e // 4][1] + e % 4 for e in range(8)]
            for e in range(8):
                L.append(lambda e=e, g=g, tt=tt: k.I("v_mul_f32", v(g[e]), v(10 + tt), v(g[e])))
            for e in range(8):
                L.append(lambda e=e, g=g, cg=cg, tt=tt: k.I("v_fmac_f32", v(g[e]), v(12 + tt), v(cg[e])))
            for e in range(8):
                L.append(lambda e=e, g=g: k.I("v_exp_f32", v(g[e]), v(g[e])))
                L.append(lambda e=e, u=u, cu=cu, tt=tt: k.I("v_fmac_f32", v(u[e]), v(8 + tt), v(cu[e])))
            for e in range(8):
                L.append(lambda e=e, g=g: k.I("v_add_f32", v(g[e]), 1.0, v(g[e])))
            for e in range(8):
                L.append(lambda e=e, g=g: k.I("v_rcp_f32", v(g[e]), v(g[e])))
            for e in range(8):
                L.append(lambda e=e, g=g, u=u: k.I("v_mul_f32", v(u[e]), v(g[e]), v(u[e])))
            for i in range(4):
                L.append(lambda i=i, u=u, tt=tt: k.I("v_cvt_pk_bf16_f32", v(16 + 4 * tt + i), v(u[2 * i]), v(u[2 * i + 1])))

            def stf(tt=tt):
                if c % 4 == 0 and c and tt == 0:
                    k.I("s_add_u32", s(28), s(28), 4096)
                tk = k.I("buffer_store_dwordx4", v(16 + 4 * tt, 4), v(3 if tt == 0 else 14), s(8, 4), s(28),
                         mods=f"offen offset:{(c % 4) * 1024} {SC}")
                if tt == 1:
                    hh_store_tok[c] = tk
            L.append(stf)

        def rel():
            for tile in range(4):
                for tt in range(2):
                    P.put(ACC.pop((c, tile, tt)))
        L.append(rel)
        return L

    def flag_store(tokfn, sreg, val):
        def f():
            k.wait_vm(tokfn())
            k.I("v_mov_b32", v(25), val)
            k.I("buffer_store_dword", v(25), v(15), s(8, 4), s(sreg), mods=f"offen {SC}")
        return f

    npoll = [0]

    def poll_issue(sreg, dst):
        return k.I("buffer_load_dwordx4", r4(dst), v(15), s(8, 4), s(sreg), mods=f"offen {SC}")

    def poll_check(sreg, dst, level, skip_reg=None):
        npoll[0] += 1
        n = npoll[0]
        b = dst[1]

        def test():
            if skip_reg is not None:
                for i in range(4):
                    k.I("s_cmp_eq_u32", s(skip_reg), i)
                    k.I("s_cselect_b32", s(59), level, 0)
                    k.I("v_max_u32", v(b + i), s(59), v(b + i))
            k.I("v_min_u32", v(b), v(b), v(b + 1))
            k.I("v_min_u32", v(b + 2), v(b + 2), v(b + 3))
            k.I("v_min_u32", v(b), v(b), v(b + 2))
            k.I("v_readfirstlane_b32", s(59), v(b))
            k.I("s_cmp_ge_u32", s(59), level)
        test()
        k.I("s_cbranch_scc1", f"KCD_PD{n}")
        k.I("s_mov_b32", s(60), 20000)
        k.label(f"KCD_PL{n}")
        save = (list(k.vmq), list(k.dsq))
        k.I("s_sub_u32", s(60), s(60), 1)
        k.I("s_cmp_eq_u32", s(60), 0)
        k.I("s_cbranch_scc1", f"KCD_PD{n}")
        k.I("s_sleep", 1)
        poll_issue(sreg, dst)
        k.wait(vm=0)
        test()
        k.I("s_cbranch_scc0", f"KCD_PL{n}")
        k.vmq, k.dsq = save
        k.label(f"KCD_PD{n}")

    WD = {}
    HH = {}

    def wd_load(i, r):
        def f():
            WD[(i, r)] = P.get()
            k.I("s_add_u32", s(59), s(32), i * 36864 + (r // 4) * 4096)
            k.I("buffer_load_dwordx4", r4(WD[(i, r)]), v(3), s(8, 4), s(59), mods=f"offen offset:{(r % 4) * 1024}")
        return f

    def hh_load(p, i, tt):
        def f():
            HH[(p, i, tt)] = P.get()
            if i >= 4:
                k.I("s_add_u32", s(59), s(36 + p), (i // 4) * 4096)
            k.I("buffer_load_dwordx4", r4(HH[(p, i, tt)]), v(3 if tt == 0 else 14), s(8, 4), s(59) if i >= 4 else s(36 + p),
                mods=f"offen offset:{(i % 4) * 1024} {SC}")
        return f

    def sync(st):
        k.wait_vm(dma_tok[st])
        k.I("s_barrier")

    staged = [(5, r) for r in range(9)] + [(6, r) for r in range(9)] + [(7, 0)]
    staged.sort(key=lambda x: (x[1], x[0]))
    stg_tok = {}

    def wd_stage(n):
        i, r = staged[n]

        def f():
            k.I("s_add_u32", "m0", s(61), n * 1024)
            k.I("s_add_u32", s(59), s(32), i * 36864 + r * 1024)
            stg_tok[n] = k.I("buffer_load_dwordx4", v(3), s(8, 4), s(59), mods="offen lds")
        return f

    def wd_unstage(n):
        def f():
            WD[staged[n]] = P.get()
            k.wait_vm(stg_tok[n])
            k.I("ds_read_b128", r4(WD[staged[n]]), v(5), mods=f"offset:{n * 1024}")
        return f

    seq = [(c, kb) for kb in range(18) for c in range(4)] + [(c, kb) for c in range(4, 9) for kb in range(18)]
    NU = len(seq)
    vq = deque()
    sync(0)
    ST.stamp()
    for q in range(2):
        for tile in range(4):
            w_read(q, tile)
    vq += dma_items(3) + x_items(3, 4)
    pollreg = None
    lateq = deque()
    side = deque()
    wdq = deque()
    pace = 1.0
    credit = 0.0
    allw = deque([wd_load(i, r) for r in range(9) for i in range(5)])
    for q, (c, kb) in enumerate(seq):
        if q == 24:
            vq += stat_loads(tS, 23) + cs_loads()
        if q == 48:
            side += startup_math()
            pace = 1.0
        if q >= 72 and kb == 0:
            if "stC" in dbg:
                ST2.stamp()
            while side:
                it = side.popleft()
                if it is not None:
                    it()
            for tile in range(4):
                for tt in range(2):
                    ACC[(c, tile, tt)] = P.get("v")
            drain = {4: [0, 1], 5: [2, 3], 6: [4, 5], 7: [6], 8: [7]}[c]
            first_gap = True
            for d in drain:
                side += epi_items(d)
            pace = len(side) / (130.0 if len(drain) > 1 else 90.0)
            if c == 4:
                wdq += [wd_stage(n) for n in range(NSTG)]
        un = q + 2
        for m in range(8):
            tile, tt = divmod(m, 2)
            if m == 0:
                k.wait_ds(wtok[(q, 3)])
            ac = r4(ACC[(c, tile, tt)])
            k.I(MF, ac, r4(WF[(q % 3, tile)]), r4(X[(tt, kb)]), ac if kb else 0)
            nf = 0
            if un < NU and m % 2 == 0:
                if m == 0 and un % 4 == 0:
                    stn = un // 4
                    if stn == 17:
                        while side:
                            side.popleft()()
                        k.wait(lg=0)
                    sync(stn)
                    if stn + RING - 2 < NSTAGE:
                        vq += dma_items(stn + RING - 2)
                        if stn + RING - 2 < 18:
                            vq += x_items(stn + RING - 2, stn + RING - 1)
                w_read(un, m // 2)
                nf += 1
            elif vq:
                vq.popleft()()
                nf += 1
            elif wdq and m == 3:
                wdq.popleft()()
                nf += 1
            elif allw and q >= 72 and m == 5 and P.n() > (17 if c < 6 else 9):
                allw.popleft()()
                nf += 1
            elif lateq and P.n() > 0:
                lateq.popleft()()
                nf += 1
            credit += pace
            if q >= 72 and kb == 0 and m < 3:
                credit = 0.0
            while side and credit >= 1.0 and nf < 3:
                side.popleft()()
                credit -= 1.0
                nf += 1
            if not side:
                credit = 0.0
        if c == NA and kb == 16:
            assert not side
            flag_store(lambda: hh_store_tok[NA - 1], 44, 1)()
        if c == 8:
            for tt in range(2):
                P.put(X[(tt, kb)])
            if kb == 0:
                assert not allw and not wdq, (len(allw), len(wdq))
                pollreg = P.get("v")
                lateq += [wd_unstage(n) for n in range(6)]
            if kb == 6:
                poll_issue(40, pollreg)
            if kb == 8:
                poll_check(40, pollreg, 1)
                lateq.extendleft(reversed([hh_load(0, i, tt) for i in range(NA) for tt in range(2)]))
                lateq += [wd_unstage(n) for n in range(6, NSTG)]
    while side:
        side.popleft()()
    ST.stamp()
    for g in WF.values():
        P.put(g)
    while lateq:
        lateq.popleft()()

    k.I("v_mul_u32_u24", v(4), 18432, v(1))
    k.I("v_add_u32", v(4), v(4), v(3))
    k.I("v_add_u32", v(5), BUF, v(4))
    k.I("v_lshl_add_u32", v(26), v(1), 10, v(3))
    k.I("v_and_b32", v(27), 1, v(1))
    k.I("v_lshl_add_u32", v(27), v(27), 10, v(3))
    k.I("v_add_u32", v(27), 16384, v(27))
    lateq += [hh_load(1, i, tt) for i in range(NA) for tt in range(2)]
    lateq += [wd_load(i, r) for r in range(9) for i in range(NA, 9) if (i, r) not in staged]
    lateq += [hh_load(2, i, tt) for i in range(NA) for tt in range(2)]

    side = deque(epi_items(8))

    def rel_c():
        for g in CS:
            P.put(g)
    side.append(rel_c)

    red_tok = {}
    red_done = {}

    def reduce_items(p):
        L = []
        buf = (p % 2) * BUF
        T = [("v", 16), ("v", 20)]
        extra = []

        def start():
            extra.append(P.get("v"))
            extra.append(P.get("v"))
        L.append(start)
        for n in range(5):
            def rd(n=n):
                regs = T + extra
                k.I("v_add_u32", v(24), buf + (n * 4096 if n < 4 else 0), v(26 if n < 4 else 27))
                for w2 in range(4):
                    k.I("ds_read_b128", r4(regs[w2]), v(24), mods=f"offset:{w2 * 18432}")
            L.append(rd)
            L.append(None)
            for (x, y) in ((0, 1), (2, 3), (0, 2)):
                for i in range(4):
                    L.append(lambda x=x, y=y, i=i: k.I("v_add_f32", v((T + extra)[x][1] + i), v((T + extra)[x][1] + i), v((T + extra)[y][1] + i)))

            def stf(n=n):
                if n < 4 and n:
                    k.I("s_add_u32", s(59), s(45 + p), n * 4096)
                red_tok[p] = k.I("buffer_store_dwordx4", r4(T[0]), v(26 if n < 4 else 27), s(8, 4),
                                 s(59) if 0 < n < 4 else s(45 + p), mods=f"offen {SC}")
            L.append(stf)

        def fin():
            P.put(extra[0])
            P.put(extra[1])
            red_done[p] = red_tok[p]
        L.append(fin)
        return L

    passes = [(0, list(range(NA)), True), (1, list(range(NA)), True), (0, list(range(NA, 9)), False),
              (1, list(range(NA, 9)), False), (2, list(range(9)), True), (3, list(range(9)), True)]
    pend_w = deque()
    events = {}

    def at(pi, mi, fn):
        events.setdefault((pi, mi), []).append(fn)

    def barrier():
        k.wait(lg=0)
        k.I("s_barrier")

    at(0, 2, barrier)
    at(0, 90, flag_store(lambda: hh_store_tok[8], 44, 2))
    nA = 18 * NA
    at(1, nA - 60, lambda: poll_issue(40, pollreg))

    def lvl2():
        poll_check(40, pollreg, 2)
        P.put(pollreg)
        lateq.extendleft(reversed([hh_load(p, i, tt) for p in range(2) for i in range(NA, 9) for tt in range(2)]))
        lateq.extend([hh_load(2, i, tt) for i in range(NA, 9) for tt in range(2)])
        lateq.extend([hh_load(3, i, tt) for i in range(9) for tt in range(2)])
    at(1, nA - 36, lvl2)

    def b_red(p):
        def f():
            while side:
                it = side.popleft()
                if it is not None:
                    it()
            barrier()
            side.extend(reduce_items(p))
        return f
    at(3, 4, b_red(0))
    at(4, 4, b_red(1))
    at(4, 30, flag_store(lambda: red_done[0], 48, 1))
    at(4, 130, flag_store(lambda: red_done[1], 49, 1))
    at(5, 4, b_red(2))
    at(5, 90, flag_store(lambda: red_done[2], 50, 1))

    fin = {}

    def fin_setup():
        k.I("s_lshl_b32", s(53), s(21), 3)
        k.I("s_lshl_b32", s(54), s(16), 1)
        k.I("s_add_u32", s(53), s(53), s(54))
        k.I("s_and_b32", s(54), s(3), 1)
        k.I("s_add_u32", s(53), s(53), s(54))
        k.I("s_lshl_b32", s(23), s(53), 10)
        k.I("s_add_u32", s(23), s(23), hex(WS_ST))
        fin["st"] = [P.get("v") for _ in range(4)]
        for f in stat_loads(fin["st"], 23, 1):
            f()
        k.I("s_mul_i32", s(54), s(53), 72 * 256)
        k.I("s_mul_i32", s(55), s(17), 18 * 256)
        k.I("s_add_u32", s(54), s(54), s(55))
        k.I("s_add_u32", s(54), s(54), hex(WS_H))
        k.I("s_lshr_b32", s(56), s(3), 1)
        k.I("s_lshl_b32", s(55), s(56), 9)
        k.I("s_add_u32", s(55), s(55), s(54))
        k.I("s_add_u32", s(54), s(54), 4096)
        k.I("v_and_b32", v(8), 15, v(2))
        k.I("v_lshlrev_b32", v(9), 4, v(8))
        k.I("v_lshrrev_b32", v(10), 5, v(2))
        k.I("v_lshl_add_u32", v(9), v(10), 8, v(9))
        k.I("v_bfe_u32", v(10), v(2), 4, 1)
        k.I("v_lshl_add_u32", v(9), v(10), 3, v(9))
        fin["res"] = [P.get("v") for _ in range(3)]
        for n in range(5):
            g = fin["res"][n // 2]
            k.I("buffer_load_dwordx2", v(g[1] + 2 * (n % 2), 2), v(9), s(8, 4), s(55) if n < 4 else s(54),
                mods=f"offen offset:{n * 1024 if n < 4 else 0}")
        k.I("v_mul_u32_u24", v(9), 1152, v(8))
        k.I("v_lshrrev_b32", v(10), 4, v(2))
        k.I("v_lshl_add_u32", v(9), v(10), 3, v(9))
        k.I("s_mul_i32", s(53), s(53), 16 * 1152)
        k.I("s_mul_i32", s(54), s(17), 288)
        k.I("s_add_u32", s(53), s(53), s(54))
        k.I("s_lshl_b32", s(54), s(56), 5)
        k.I("s_add_u32", s(54), s(54), s(53))
        fin["poll"] = P.get("v")
    at(5, 40, fin_setup)
    at(5, 100, lambda: side.extend(stat_math(fin["st"], None, 11)))
    at(5, 120, lambda: poll_issue(52, fin["poll"]))

    def fin_loads():
        poll_check(52, fin["poll"], 1, skip_reg=16)
        fin["rp"] = {}
        for d in range(1, 4):
            k.I("s_add_u32", s(57), s(16), d)
            k.I("s_and_b32", s(57), s(57), 3)
            k.I("s_mul_i32", s(57), s(57), 18432)
            k.I("s_add_u32", s(57), s(57), s(51))
            for n in range(5):
                g = P.get("v")
                fin["rp"][(d, n)] = g
                if 0 < n < 4:
                    k.I("s_add_u32", s(58), s(57), n * 4096)
                k.I("buffer_load_dwordx4", r4(g), v(26 if n < 4 else 27), s(8, 4), s(58) if 0 < n < 4 else s(57), mods=f"offen {SC}")

    for pi, (p, il, first) in enumerate(passes):
        wbase = 4 + p % 2
        accs = {}
        if "stD" in dbg:
            ST2.stamp()

        def acc_get(r):
            accs[r] = [P.get(), P.get()]
            if not first:
                for tt in range(2):
                    k.I("ds_read_b128", r4(accs[r][tt]), v(wbase), mods=f"offset:{(2 * r + tt) * 1024}")
        ahead = 1 if first else 4
        for r in range(ahead):
            acc_get(r)
        mi = 0
        for r in range(9):
            for n_i, i in enumerate(il):
                for tt in range(2):
                    while (i, r) not in WD or (p, i, tt) not in HH:
                        lateq.popleft()()
                    ac = r4(accs[r][tt])
                    k.I(MF, ac, r4(WD[(i, r)]), r4(HH[(p, i, tt)]), 0 if (first and n_i == 0) else ac)
                    nf = 0
                    for fn in events.pop((pi, mi), []):
                        fn()
                        nf += 1
                    if pend_w and pend_w[0][0] <= 0:
                        pend_w.popleft()[1]()
                        nf += 1
                    pend_w = deque((cd - 1, fn) for cd, fn in pend_w)
                    if lateq and P.n() > 6 and nf < 2 and mi % 2 == 1:
                        lateq.popleft()()
                        nf += 1
                    while side and nf < 2:
                        it = side.popleft()
                        if it is None:
                            break
                        it()
                        nf += 1
                    if r == 8:
                        P.put(HH.pop((p, i, tt)))
                    if pi == 5 and tt == 1:
                        P.put(WD.pop((i, r)))
                    mi += 1
            for tt in range(2):
                def wr(r=r, tt=tt, g=accs[r][tt], wbase=wbase):
                    k.I("ds_write_b128", v(wbase), r4(g), mods=f"offset:{(2 * r + tt) * 1024}")
                    P.put(g)
                pend_w.append((1 + tt, wr))
            if r + ahead < 9:
                acc_get(r + ahead)
        if pi == 1 or pi == 2:
            pass
    assert not events, events.keys()
    ST.stamp()
    if "stD" in dbg:
        ST2.stamp()
    while pend_w:
        pend_w.popleft()[1]()
    while side:
        it = side.popleft()
        if it is not None:
            it()
    fin_loads()
    if "stD" in dbg:
        ST2.stamp()
    barrier()
    ST.stamp()
    for n in range(5):
        regs = [P.get("v") for _ in range(4)]
        k.I("v_add_u32", v(24), BUF + (n * 4096 if n < 4 else 0), v(26 if n < 4 else 27))
        for w2 in range(4):
            k.I("ds_read_b128", r4(regs[w2]), v(24), mods=f"offset:{w2 * 18432}")
        fin[("own", n)] = regs
    for n in range(5):
        b = [g[1] for g in fin[("own", n)]]
        rp = [fin["rp"][(d, n)][1] for d in range(1, 4)]
        for i in range(4):
            k.I("v_add_f32", v(b[0] + i), v(b[0] + i), v(b[1] + i))
            k.I("v_add_f32", v(b[2] + i), v(b[2] + i), v(b[3] + i))
            k.I("v_add_f32", v(rp[0] + i), v(rp[0] + i), v(rp[1] + i))
        for i in range(4):
            k.I("v_add_f32", v(b[0] + i), v(b[0] + i), v(b[2] + i))
            k.I("v_add_f32", v(rp[0] + i), v(rp[0] + i), v(rp[2] + i))
        for i in range(4):
            k.I("v_add_f32", v(b[0] + i), v(b[0] + i), v(rp[0] + i))
        rs = fin["res"][n // 2][1] + 2 * (n % 2)
        for i in range(2):
            k.I("v_lshlrev_b32", v(b[1] + 2 * i), 16, v(rs + i))
            k.I("v_and_b32", v(b[1] + 2 * i + 1), "0xffff0000", v(rs + i))
        for i in range(4):
            k.I("v_fma_f32", v(b[0] + i), v(b[0] + i), v(11), v(b[1] + i))
        k.I("v_cvt_pk_bf16_f32", v(b[2]), v(b[0]), v(b[0] + 1))
        k.I("v_cvt_pk_bf16_f32", v(b[2] + 1), v(b[0] + 2), v(b[0] + 3))
        k.I("buffer_store_dwordx2", v(b[2], 2), v(9), s(12, 4), s(54) if n < 4 else s(53),
            mods=f"offen offset:{n * 64 if n < 4 else 256}")
    ST.stamp()
    ST.dump(8, 16, 2)
    if "stD" in dbg:
        ST2.stamp()
    ST2.dump(8, 16, 2)
    k.label("KCD_END")
    k.I("s_endpgm")
    return k, "grid=(256,1,1) block=(256,1,1) lds=%d" % LDS_TOTAL
```

```python
from common import *

PREP_LDS_PER_WAVE = 9216


class PrepRegs:
    def __init__(self, sb, vb, srd_ws, srd_g=None, srd_u=None, srd_w=None, lane=None):
        self.sb, self.vb = sb, vb
        self.srd_ws, self.srd_g, self.srd_u, self.srd_w = srd_ws, srd_g, srd_u, srd_w
        self.lane = lane
        self.sc = ""
        self.ld = ""


def g_setup(k, P, sLB):
    vb, L = P.vb, P.lane
    k.I("v_lshrrev_b32", v(vb + 1), 3, v(L))
    k.I("v_mul_u32_u24", v(vb), 9216, v(vb + 1))
    k.I("v_and_b32", v(vb + 1), 7, v(L))
    k.I("v_lshl_add_u32", v(vb), v(vb + 1), 4, v(vb))
    t = vb + 2
    k.I("v_lshrrev_b32", v(t), 4, v(L))
    k.I("v_lshlrev_b32", v(vb + 1), 10, v(t))
    k.I("v_bfe_u32", v(t), v(L), 2, 2)
    k.I("v_lshl_add_u32", v(vb + 1), v(t), 7, v(vb + 1))
    k.I("v_and_b32", v(t), 3, v(L))
    k.I("v_lshl_add_u32", v(vb + 1), v(t), 4, v(vb + 1))
    k.I("v_add_u32", v(vb + 1), s(sLB), v(vb + 1))
    k.I("v_lshlrev_b32", v(vb + 2), 4, v(L))
    k.I("v_lshlrev_b32", v(vb + 3), 2, v(L))
    k.I("v_mov_b32", v(vb + 4), "0x3f803f80")
    for i in range(8):
        k.I("v_mov_b32", v(vb + 24 + i), 0)


def g_load(k, P, sLB, sG, sKB, half):
    sb, vb = P.sb, P.vb
    k.I("s_mul_i32", s(sb), s(sKB), 64 * 9216)
    k.I("s_lshl_b32", s(sb + 1), s(sG), 7)
    k.I("s_add_u32", s(sb), s(sb), s(sb + 1))
    if half:
        k.I("s_add_u32", s(sb), s(sb), 32 * 9216)
    tok = None
    for i in range(4):
        for m, sr in enumerate((P.srd_g, P.srd_u)):
            k.I("s_add_u32", "m0", s(sLB), m * 4096 + i * 1024)
            tok = k.I("buffer_load_dwordx4", v(vb), s(sr, 4), s(sb), mods=f"offen {P.ld} lds")
        if i < 3:
            k.I("s_add_u32", s(sb), s(sb), 8 * 9216)
    return tok


def g_process(k, P, sG, sKB, half, tok):
    sb, vb = P.sb, P.vb
    k.I("s_mul_i32", s(sb), s(sG), 2 * 18 * 4096)
    k.I("s_lshl_b32", s(sb + 1), s(sKB), 13)
    k.I("s_add_u32", s(sb), s(sb), s(sb + 1))
    k.I("s_add_u32", s(sb), s(sb), hex(WS_WGU + half * 4096))
    k.I("s_add_u32", s(sb + 1), s(sb), 18 * 4096)
    if tok is not None:
        k.wait_vm(tok)
    d0 = vb + 8
    for cc in range(2):
        for tile in range(4):
            m, b = tile // 2, tile % 2
            d = d0 + 4 * tile
            for h in range(2):
                k.I("ds_read_b64_tr_b16", v(d + 2 * h, 2), v(vb + 1),
                    mods=f"offset:{m * 4096 + 4 * h * 128 + cc * 64 + b * 8}")
        for tile in range(4):
            d = d0 + 4 * tile
            k.I("buffer_store_dwordx4", v(d, 4), v(vb + 2), s(P.srd_ws, 4), s(sb + cc), mods=f"offen offset:{tile * 1024} {P.sc}")
            for j in range(4):
                k.I("v_dot2c_f32_bf16", v(vb + 24 + 4 * cc + tile), v(d + j), v(vb + 4))


def g_finish(k, P, sG, sKB):
    sb, vb, L = P.sb, P.vb, P.lane
    for i in range(8):
        x, t = vb + 24 + i, vb + 8 + i
        k.I("v_mov_b32", v(t), v(x))
    for i in range(8):
        x, t = vb + 24 + i, vb + 8 + i
        k.I("v_permlane32_swap_b32", v(x), v(t))
    for i in range(8):
        x, t = vb + 24 + i, vb + 8 + i
        k.I("v_add_f32", v(x), v(x), v(t))
    for i in range(8):
        x, t = vb + 24 + i, vb + 8 + i
        k.I("v_mov_b32", v(t), v(x))
    for i in range(8):
        x, t = vb + 24 + i, vb + 8 + i
        k.I("v_permlane16_swap_b32", v(x), v(t))
    for i in range(8):
        x, t = vb + 24 + i, vb + 8 + i
        k.I("v_add_f32", v(x), v(x), v(t))
    k.I("v_lshrrev_b32", v(vb + 8), 4, v(L))
    for tile in range(1, 4):
        k.I("v_cmp_eq_u32", "vcc", tile, v(vb + 8))
        for cc in range(2):
            k.I("v_cndmask_b32", v(vb + 24 + 4 * cc), v(vb + 24 + 4 * cc), v(vb + 24 + 4 * cc + tile), "vcc")
    k.I("s_mul_i32", s(sb), s(sKB), 144 * 256)
    k.I("s_lshl_b32", s(sb + 1), s(sG), 9)
    k.I("s_add_u32", s(sb), s(sb), s(sb + 1))
    k.I("s_add_u32", s(sb), s(sb), hex(WS_CS))
    for cc in range(2):
        k.I("buffer_store_dword", v(vb + 24 + 4 * cc), v(vb + 3), s(P.srd_ws, 4), s(sb), mods=f"offen offset:{cc * 256} {P.sc}")


def w_setup(k, P, sLB):
    vb, L = P.vb, P.lane
    k.I("v_lshlrev_b32", v(vb), 4, v(L))
    t = vb + 2
    k.I("v_bfe_u32", v(t), v(L), 2, 2)
    k.I("v_mul_u32_u24", v(vb + 1), 1152, v(t))
    k.I("v_lshrrev_b32", v(t), 4, v(L))
    k.I("v_lshl_add_u32", v(vb + 1), v(t), 5, v(vb + 1))
    k.I("v_and_b32", v(t), 3, v(L))
    k.I("v_lshl_add_u32", v(vb + 1), v(t), 3, v(vb + 1))
    k.I("v_add_u32", v(vb + 1), s(sLB), v(vb + 1))


def w_load(k, P, sLB, sO, srd_w):
    sb, vb = P.sb, P.vb
    k.I("s_mul_i32", s(sb), s(sO), 9216)
    tok = None
    for i in range(9):
        if i % 4 == 0:
            k.I("s_add_u32", "m0", s(sLB), i * 1024)
            if i:
                k.I("s_add_u32", s(sb), s(sb), 4096)
        tok = k.I("buffer_load_dwordx4", v(vb), s(srd_w, 4), s(sb), mods=f"offen offset:{(i % 4) * 1024} {P.ld} lds")
    return tok


def w_process(k, P, sO, noct, region, tok):
    sb, vb, L = P.sb, P.vb, P.lane
    k.I("s_mul_i32", s(sb), s(sO), 1152)
    k.I("s_add_u32", s(sb), s(sb), hex(region))
    k.I("s_mov_b32", s(sb + 1), noct * 1152 - 72 * 16)
    if tok is not None:
        k.wait_vm(tok)
    d0 = vb + 8
    for q in range(9):
        d = d0 + 4 * (q % 4)
        for h in range(2):
            k.I("ds_read_b64_tr_b16", v(d + 2 * h, 2), v(vb + 1), mods=f"offset:{h * 4608 + q * 128}")
        ta = vb + 2 + (q % 2) * 2
        k.I("v_add_u32", v(ta), 64 * q, v(L))
        k.I("v_mul_u32_u24", v(ta + 1), 911, v(ta))
        k.I("v_lshrrev_b32", v(ta + 1), 16, v(ta + 1))
        k.I("v_mul_lo_u32", v(ta + 1), v(ta + 1), s(sb + 1))
        k.I("v_lshl_add_u32", v(ta), v(ta), 4, v(ta + 1))
        k.I("buffer_store_dwordx4", v(d, 4), v(ta), s(P.srd_ws, 4), s(sb), mods="offen")


def w_process16(k, P, sO, region, tok):
    sb, vb, L = P.sb, P.vb, P.lane
    k.I("s_lshr_b32", s(sb), s(sO), 2)
    k.I("s_mul_i32", s(sb), s(sb), 36864)
    k.I("s_and_b32", s(sb + 1), s(sO), 3)
    k.I("s_lshl_b32", s(sb + 1), s(sb + 1), 8)
    k.I("s_add_u32", s(sb), s(sb), s(sb + 1))
    k.I("s_add_u32", s(sb), s(sb), hex(region))
    k.I("v_lshrrev_b32", v(vb + 2), 4, v(L))
    k.I("v_lshlrev_b32", v(vb + 2), 10, v(vb + 2))
    k.I("v_and_b32", v(vb + 3), 15, v(L))
    k.I("v_lshl_add_u32", v(vb + 2), v(vb + 3), 4, v(vb + 2))
    if tok is not None:
        k.wait_vm(tok)
    d0 = vb + 8
    for q in range(9):
        d = d0 + 4 * (q % 4)
        for h in range(2):
            k.I("ds_read_b64_tr_b16", v(d + 2 * h, 2), v(vb + 1), mods=f"offset:{h * 4608 + q * 128}")
        k.I("buffer_store_dwordx4", v(d, 4), v(vb + 2), s(P.srd_ws, 4), s(sb), mods=f"offen {P.sc}")
        if q < 8:
            k.I("s_add_u32", s(sb), s(sb), 4096)


def build_k0(wd16=True):
    k = Kern("k0_kernel")
    k.I("s_cmp_ge_u32", s(2), 324)
    k.I("s_cbranch_scc1", "K0_END")
    k.I("s_load_dwordx2", s(4, 2), s(0, 2), KA_WO)
    k.I("s_load_dwordx4", s(8, 4), s(0, 2), KA_WG)
    k.I("s_load_dwordx2", s(6, 2), s(0, 2), KA_WD)
    k.I("s_load_dwordx2", s(12, 2), s(0, 2), KA_WS)
    k.I("v_lshrrev_b32", v(1), 6, v(0))
    k.I("v_and_b32", v(2), 63, v(0))
    k.I("v_readfirstlane_b32", s(3), v(1))
    k.wait(lg=0)
    srd(k, 16, 12, WS_SIZE)
    srd(k, 20, 8, D * F * 2)
    srd(k, 24, 10, D * F * 2)
    srd(k, 28, 6, D * F * 2)
    srd(k, 32, 4, D * D * 2)
    k.I("s_cmp_ge_u32", s(2), 32)
    k.I("s_cbranch_scc1", "K0_NZ")
    k.I("v_lshlrev_b32", v(3), 4, v(0))
    k.I("s_lshl_b32", s(40), s(2), 12)
    k.I("s_add_u32", s(40), s(40), hex(WS_F1))
    for i in range(4):
        k.I("v_mov_b32", v(4 + i), 0)
    k.I("buffer_store_dwordx4", v(4, 4), v(3), s(16, 4), s(40), mods="offen")
    k.vmq.pop()
    k.label("K0_NZ")
    k.I("s_mul_i32", s(40), s(3), PREP_LDS_PER_WAVE)
    k.I("s_lshl_b32", s(41), s(2), 2)
    k.I("s_add_u32", s(41), s(41), s(3))
    P = PrepRegs(sb=50, vb=8, srd_ws=16, srd_g=20, srd_u=24, lane=2)
    k.I("s_cmp_ge_u32", s(41), 648)
    k.I("s_cbranch_scc1", "K0_W")
    k.I("s_mul_i32", s(42), s(41), 911)
    k.I("s_lshr_b32", s(42), s(42), 16)
    k.I("s_mul_i32", s(43), s(42), 72)
    k.I("s_sub_u32", s(43), s(41), s(43))
    g_setup(k, P, 40)
    for half in range(2):
        tok = g_load(k, P, 40, 43, 42, half)
        g_process(k, P, 43, 42, half, tok)
        k.wait(lg=0)
    g_finish(k, P, 43, 42)
    k.I("s_endpgm")
    k.label("K0_W")
    k.vmq, k.dsq = [], []
    w_setup(k, P, 40)
    k.I("s_cmp_ge_u32", s(41), 648 + 576)
    k.I("s_cbranch_scc1", "K0_WO")
    k.I("s_sub_u32", s(42), s(41), 648)
    tok = w_load(k, P, 40, 42, 28)
    if wd16:
        w_process16(k, P, 42, WS_WD, tok)
    else:
        w_process(k, P, 42, 576, WS_WD, tok)
    k.I("s_endpgm")
    k.label("K0_WO")
    k.vmq, k.dsq = [], []
    k.I("s_sub_u32", s(42), s(41), 648 + 576)
    tok = w_load(k, P, 40, 42, 32)
    w_process(k, P, 42, 72, WS_WO, tok)
    k.label("K0_END")
    k.I("s_endpgm")
    return k, "grid=(324,1,1) block=(256,1,1) lds=%d" % (4 * PREP_LDS_PER_WAVE)
```

```python
from common import *
from k_frag import f32bits
import k_prep
from k_prep import PrepRegs
from k_a2 import reduce_groups

MF = "v_mfma_f32_16x16x32_bf16"
XB = 10240
WBLK = 3616
STG = XB + 29 * 1024
L_PREP = 122880
PQ = 440
L_WO = 0
L_QKV = 83968
L_ST = 119808
L_CS = 120576
LDS_TOTAL = 162048
LOG2E = 1.4426950408889634
NEG = -1e30
BC, B0, QM, ONES, AQ, AV, AKP, AVP, AO = 216, 224, 228, 236, 240, 241, 242, 243, 244
PVB = 160
S_WS, S_X, S_QKV, S_WO, S_DBG, S_WG, S_WU, S_WD = 8, 12, 16, 44, 48, 52, 56, 60


def att_setup(k):
    k.I("v_and_b32", v(14), 15, v(2))
    k.I("v_lshrrev_b32", v(15), 4, v(2))
    k.I("v_mul_u32_u24", v(AQ), PQ, v(14))
    k.I("v_lshl_add_u32", v(AQ), v(15), 4, v(AQ))
    k.I("v_lshrrev_b32", v(AV), 2, v(2))
    k.I("v_mul_u32_u24", v(AV), PQ, v(AV))
    k.I("v_and_b32", v(16), 3, v(2))
    k.I("v_lshl_add_u32", v(AV), v(16), 3, v(AV))
    k.I("s_mul_i32", s(23), s(3), s(27))
    k.I("s_mul_i32", s(23), s(23), 16 * PQ)
    k.I("s_add_u32", s(23), s(23), L_QKV)
    k.I("s_add_u32", s(22), s(3), 1)
    k.I("s_mul_i32", s(22), s(22), 16 * PQ)
    k.I("s_add_u32", s(22), s(22), L_QKV)
    k.I("v_add_u32", v(AKP), s(23), v(AQ))
    k.I("v_add_u32", v(AVP), s(23), v(AV))
    k.I("v_add_u32", v(AQ), s(22), v(AQ))
    k.I("v_add_u32", v(AV), s(22), v(AV))
    k.I("v_mov_b32", v(16), hex(f32bits(NEG)))
    k.I("v_lshlrev_b32", v(17), 2, v(15))
    k.I("v_sub_u32", v(17), v(14), v(17))
    k.I("s_cmp_eq_u32", s(3), 0)
    k.I("s_cselect_b32", s(22), 8, 0)
    k.I("s_cselect_b32", s(23), 8, 16)
    k.I("s_or_b32", s(38), s(20), s(27))
    k.I("s_cmp_eq_u32", s(38), 0)
    k.I("s_cselect_b32", s(23), 0, s(23))
    for r in range(4):
        k.I("v_subrev_u32", v(246), r, v(17))
        k.I("v_cmp_gt_u32", "vcc", 8, v(246))
        k.I("v_cndmask_b32", v(BC + r), v(16), 0, "vcc")
        k.I("v_subrev_u32", v(247), s(22), v(246))
        k.I("v_cmp_gt_i32", "vcc", -8, v(247))
        k.I("v_lshl_add_u32", v(247), v(15), 2, r)
        k.I("v_cmp_gt_u32", s(40, 2), s(23), v(247))
        k.I("s_and_b64", "vcc", "vcc", s(40, 2))
        k.I("v_cndmask_b32", v(B0 + r), v(16), 0, "vcc")
        k.I("v_cmp_gt_u32", "vcc", 9, v(247))
        k.I("v_cndmask_b32", v(QM + r), 0, -1, "vcc")
        k.I("v_subrev_u32", v(247), 1, v(247))
        k.I("v_cmp_gt_u32", "vcc", 9, v(247))
        k.I("v_cndmask_b32", v(QM + 4 + r), 0, -1, "vcc")
        k.I("v_mov_b32", v(ONES + r), "0x3f803f80")
    k.I("v_lshlrev_b32", v(246), 1, v(14))
    k.I("v_add_u32", v(246), s(28), v(246))
    k.I("v_lshrrev_b32", v(247), 4, v(246))
    k.I("v_mul_u32_u24", v(247), 72 * 256, v(247))
    k.I("v_and_b32", v(246), 15, v(246))
    k.I("v_lshl_add_u32", v(247), v(246), 4, v(247))
    k.I("v_lshrrev_b32", v(246), 1, v(15))
    k.I("v_lshl_add_u32", v(AO), v(246), 8, v(247))
    k.I("v_and_b32", v(246), 1, v(15))
    k.I("v_lshl_add_u32", v(AO), v(246), 3, v(AO))
    k.I("v_add_u32", v(16), 1, v(15))
    k.I("v_lshrrev_b32", v(246), 1, v(16))
    k.I("v_lshl_add_u32", v(AO + 1), v(246), 8, v(247))
    k.I("v_and_b32", v(246), 1, v(16))
    k.I("v_lshl_add_u32", v(AO + 1), v(246), 3, v(AO + 1))


class Prep:
    NSL = 6

    def __init__(self, k, U, sc):
        self.k, self.U, self.sc = k, U, sc
        self.tok = {}

    def decode(self):
        k = self.k
        k.I("s_lshl_b32", s(42), s(2), 2)
        k.I("s_add_u32", s(42), s(42), s(3))
        k.I("s_mul_i32", s(7), s(3), self.NSL * 1024)
        k.I("s_add_u32", s(7), s(7), L_PREP)
        k.I("v_lshrrev_b32", v(168), 3, v(2))
        k.I("v_and_b32", v(169), 7, v(2))
        k.I("v_lshrrev_b32", v(170), 4, v(2))
        k.I("v_bfe_u32", v(171), v(2), 2, 2)
        k.I("v_and_b32", v(172), 3, v(2))
        k.I("v_and_b32", v(173), 15, v(2))
        k.I("v_lshlrev_b32", v(161), 7, v(171))
        k.I("v_add_u32", v(161), s(7), v(161))
        k.I("v_mov_b32", v(164), 0)
        k.I("v_mov_b32", v(165), 0)
        k.I("v_mov_b32", v(166), "0x3f803f80")
        k.I("s_cmp_ge_u32", s(42), 648)
        k.I("s_cbranch_scc1", f"{self.U}_PW")
        k.I("s_mov_b32", s(4), 1)
        k.I("s_mul_i32", s(43), s(42), 911)
        k.I("s_lshr_b32", s(43), s(43), 16)
        k.I("s_mul_i32", s(5), s(43), 72)
        k.I("s_sub_u32", s(42), s(42), s(5))
        k.I("s_mul_i32", s(5), s(43), 64 * 9216)
        k.I("s_lshl_b32", s(6), s(42), 7)
        k.I("s_add_u32", s(5), s(5), s(6))
        k.I("s_mul_i32", s(6), s(42), 147456)
        k.I("s_lshl_b32", s(41), s(43), 13)
        k.I("s_add_u32", s(6), s(6), s(41))
        k.I("s_add_u32", s(6), s(6), hex(WS_WGU))
        k.I("s_mul_i32", s(43), s(43), 36864)
        k.I("s_lshl_b32", s(42), s(42), 9)
        k.I("s_add_u32", s(43), s(43), s(42))
        k.I("s_add_u32", s(43), s(43), hex(WS_CS))
        k.I("v_mov_b32", v(163), s(43))
        k.I("v_mul_u32_u24", v(160), 9216, v(168))
        k.I("v_lshrrev_b32", v(174), 1, v(170))
        k.I("v_and_b32", v(175), 1, v(170))
        k.I("v_lshl_add_u32", v(161), v(174), 6, v(161))
        k.I("v_lshl_add_u32", v(161), v(172), 4, v(161))
        k.I("v_lshl_add_u32", v(161), v(175), 3, v(161))
        k.I("v_mul_u32_u24", v(162), 73728, v(174))
        k.I("v_lshl_add_u32", v(162), v(175), 10, v(162))
        k.I("v_lshl_add_u32", v(163), v(174), 8, v(163))
        k.I("v_lshl_add_u32", v(163), v(175), 6, v(163))
        k.I("v_lshl_add_u32", v(163), v(173), 2, v(163))
        k.I("s_branch", f"{self.U}_PD")
        k.label(f"{self.U}_PW")
        k.I("s_mov_b32", s(4), 0)
        k.I("s_sub_u32", s(42), s(42), 648)
        k.I("s_mul_i32", s(43), s(42), 7282)
        k.I("s_lshr_b32", s(43), s(43), 16)
        k.I("s_mul_i32", s(5), s(43), 9)
        k.I("s_sub_u32", s(41), s(42), s(5))
        k.I("s_cmp_ge_u32", s(42), 324)
        k.I("s_cselect_b32", s(43), "0x1000", s(43))
        k.I("s_mul_i32", s(5), s(43), 16 * 9216)
        k.I("s_lshl_b32", s(6), s(41), 7)
        k.I("s_add_u32", s(5), s(5), s(6))
        k.I("s_mul_i32", s(6), s(43), 4 * 36864)
        k.I("s_lshl_b32", s(41), s(41), 12)
        k.I("s_add_u32", s(6), s(6), s(41))
        k.I("s_add_u32", s(6), s(6), hex(WS_WD))
        k.I("v_mov_b32", v(163), "0x7fffff00")
        k.I("v_mul_u32_u24", v(160), 1152, v(168))
        k.I("v_lshl_add_u32", v(161), v(170), 5, v(161))
        k.I("v_lshl_add_u32", v(161), v(172), 3, v(161))
        k.I("v_lshlrev_b32", v(162), 10, v(170))
        for sr in (S_WG, S_WU):
            k.I("s_mov_b32", s(sr), s(S_WD))
            k.I("s_mov_b32", s(sr + 1), s(S_WD + 1))
        k.label(f"{self.U}_PD")
        k.I("v_lshl_add_u32", v(160), v(169), 4, v(160))
        k.I("v_lshl_add_u32", v(162), v(173), 4, v(162))

    def _off(self, base, cg, cw):
        k = self.k
        k.I("s_mul_i32", s(42), s(4), cg - cw)
        k.I("s_add_u32", s(42), s(42), s(base))
        if cw:
            k.I("s_add_u32", s(42), s(42), cw)

    def load(self, t):
        def f():
            k = self.k
            self._off(5, (t // 2) * 73728, t * 9216)
            k.I("s_add_u32", "m0", s(7), (t % self.NSL) * 1024)
            self.tok[t] = k.I("buffer_load_dwordx4", v(160), s(S_WG if t % 2 == 0 else S_WU, 4), s(42), mods="offen lds")
        return f

    def read(self, t):
        def f():
            k = self.k
            k.wait_vm(self.tok[t])
            d = 168 + 4 * (t % 4)
            for h in range(2):
                k.I("ds_read_b64_tr_b16", v(d + 2 * h, 2), v(161), mods=f"offset:{(t % self.NSL) * 1024 + h * 512}")
        return f

    def store(self, t):
        def f():
            k = self.k
            d = 168 + 4 * (t % 4)
            self._off(6, (t // 8) * 4096 + (t % 2) * 2048 + ((t // 2) % 4) * 256, (t // 4) * 36864 + (t % 4) * 256)
            k.I("buffer_store_dwordx4", v(d, 4), v(162), s(S_WS, 4), s(42), mods=f"offen {self.sc}")
            for j in range(4):
                k.I("v_dot2c_f32_bf16", v(164 + t % 2), v(d + j), v(166))
        return f

    def finish(self):
        k = self.k
        for m in range(2):
            k.I("buffer_store_dword", v(164 + m), v(163), s(S_WS, 4), 0, mods=f"offen offset:{m * 128} {self.sc}")


def gemm(k, U, cls, ST, prep, wo_items, touch_items, wofrag, dbg, LS):
    VX, VW = 4, 6
    L = f"{U}_G{cls}"
    xt = [0, 1, 2] if cls == 0 else [3, 4]
    tconst = lambda t: 32 * ((t - 1) & 1) + ((t - 1) >> 1)
    nW = 7 if cls == 0 else 8
    tok = {}

    def wvoff(n):
        k.I("v_add_u32", v(14), 128 * n, v(18))
        if n == 7:
            k.I("v_add_u32", v(15), 28 * 64, v(2))
            k.I("v_min_u32", v(14), v(14), v(15))
            k.I("v_min_u32", v(14), 1807, v(14))
        k.I("v_mul_u32_u24", v(15), 18559, v(14))
        k.I("v_lshrrev_b32", v(15), 22, v(15))
        k.I("v_mul_u32_u24", v(16), 226, v(15))
        k.I("v_sub_u32", v(14), v(14), v(16))
        k.I("v_mul_u32_u24", v(16), 2341, v(14))
        k.I("v_lshrrev_b32", v(16), 16, v(16))
        k.I("v_min_u32", v(16), 7, v(16))
        k.I("v_lshl_add_u32", v(15), v(15), 3, v(16))
        k.I("v_mul_u32_u24", v(16), 28, v(16))
        k.I("v_sub_u32", v(14), v(14), v(16))
        k.I("v_min_u32", v(14), 26, v(14))
        k.I("v_mul_u32_u24", v(16), 57, v(14))
        k.I("v_lshrrev_b32", v(16), 9, v(16))
        k.I("v_mul_u32_u24", v(15), 3456, v(15))
        k.I("v_lshl_add_u32", v(15), v(14), 4, v(15))
        k.I("v_mul_u32_u24", v(16), 1152 - 144, v(16))
        k.I("v_add_u32", v(VW + n), v(15), v(16))

    def dma_items(st):
        base = (st % 3) * STG
        I = []
        for t in xt:
            def f(t=t):
                k.I("s_add_u32", "m0", s(37), base + t * 2048)
                k.I("s_add_u32", s(38), s(34), (tconst(t) * 1152 if t else 0))
                k.I("buffer_load_dwordx4", v(VX + (t == 0)), s(S_X, 4), s(38), mods="offen lds")
            I.append(f)
        for n in range(nW):
            def f(n=n):
                if st == 0:
                    wvoff(n)
                if n < 7:
                    k.I("s_add_u32", "m0", s(24), base + n * 2048)
                else:
                    k.I("s_mov_b32", "m0", base + XB + 28 * 1024)
                tok[st] = k.I("buffer_load_dwordx4", v(VW + n), s(S_QKV, 4), s(25), mods="offen lds")
                if n == nW - 1:
                    k.I("s_add_u32", s(25), s(25), 64 * 3456)
                    k.I("s_add_u32", s(34), s(34), 128)
                    k.I("s_cmp_ge_u32", s(34), 1152)
                    k.I("s_cselect_b32", s(34), 0, s(34))
                    k.I("s_cselect_b32", s(25), s(26), s(25))
            I.append(f)
        return I

    for f in dma_items(0):
        f()
    LS.stamp("S0 issued")
    for f in touch_items:
        f()
    for f in dma_items(1):
        f()
    LS.stamp("S1 issued")
    AX, AP, AW = 20, 26, 38
    k.I("v_and_b32", v(14), 15, v(2))
    k.I("v_lshrrev_b32", v(15), 1, v(14))
    k.I("v_lshrrev_b32", v(16), 4, v(2))
    k.I("v_xor_b32", v(15), v(15), v(16))
    k.I("v_lshlrev_b32", v(14), 7, v(14))
    k.I("v_lshl_add_u32", v(AX), v(15), 4, v(14))
    k.I("v_xor_b32", v(AX + 1), 64, v(AX))
    for sl in range(1, 3):
        k.I("v_add_u32", v(AX + 2 * sl), sl * STG, v(AX))
        k.I("v_add_u32", v(AX + 2 * sl + 1), sl * STG, v(AX + 1))
    k.I("s_add_u32", s(39), s(27), 1 + 2 * cls)
    k.I("s_xor_b32", s(36), s(27), 1)
    k.I("s_add_u32", s(36), s(36), 1 + 2 * cls)
    for pr, sr in enumerate((39, 36)):
        k.I("s_lshl_b32", s(22), s(sr), 11)
        for i in range(6):
            k.I("v_add_u32", v(AP + 6 * pr + i), s(22), v(AX + i))
    k.I("v_lshrrev_b32", v(14), 4, v(2))
    k.I("v_mul_u32_u24", v(14), WBLK, v(14))
    k.I("v_bfe_u32", v(15), v(2), 2, 2)
    k.I("v_mul_u32_u24", v(15), 448, v(15))
    k.I("v_add_u32", v(14), v(14), v(15))
    k.I("v_and_b32", v(15), 3, v(2))
    k.I("v_lshl_add_u32", v(14), v(15), 3, v(14))
    k.I("s_mul_i32", s(22), s(27), 7 * 32)
    k.I("s_add_u32", s(22), s(22), XB)
    k.I("v_add_u32", v(AW), s(22), v(14))
    for sl in range(1, 3):
        k.I("v_add_u32", v(AW + sl), sl * STG, v(AW))
    k.I("v_and_b32", v(14), 15, v(2))
    k.I("v_cmp_eq_u32", s(30, 2), 0, v(14))
    k.I("s_lshl_b32", s(22), s(27), 3)
    k.I("v_add_u32", v(14), s(22), v(14))
    k.I("v_cmp_le_u32", s(32, 2), 16, v(14))
    for f in dma_items(2):
        f()
    att_setup(k)
    hs = list(range(0, 4)) if cls == 0 else list(range(4, 7))
    tiles = [(s_, t) for s_ in range(7) for t in range(2)] + [(s_, "h") for s_ in hs]
    ACC = {t: 72 + 4 * n for n, t in enumerate(tiles)}
    SA = 44
    HF, W6 = 144, 200

    def xf(p, t):
        return v(HF + 4 * p, 4) if t == "h" else a(32 * p + 4 * t, 4)

    def wf(p, s_, h=None):
        if s_ == 6:
            return v(W6 + 4 * p, 4) if h is None else v(W6 + 4 * p + 2 * h, 2)
        return a(32 * p + 8 + 4 * s_, 4) if h is None else a(32 * p + 8 + 4 * s_ + 2 * h, 2)

    def read_items(st):
        I = []
        sl = st % 3
        for ks in range(2):
            p = (2 * st + ks) % 4
            for t in range(2):
                I.append(lambda t=t, p=p, ks=ks: k.I("ds_read_b128", xf(p, t), v(AP + 6 * t + 2 * sl + ks)))
            I.append(lambda p=p, ks=ks: k.I("ds_read_b128", xf(p, "h"), v(AX + 2 * sl + ks)))
            for s_ in range(7):
                for h in range(2):
                    I.append(lambda s_=s_, h=h, p=p, ks=ks: k.I("ds_read_b64_tr_b16", wf(p, s_, h), v(AW + sl),
                                                                mods=f"offset:{ks * 4 * WBLK + h * 4 * 448 + s_ * 32}"))
        return I

    def compute(kb, fill, per):
        p = kb % 4
        z = kb == 0
        mm = [(v(SA, 4), xf(p, 0), xf(p, 0))]
        if cls == 1:
            mm.append((v(SA + 4, 4), xf(p, "h"), xf(p, "h")))
        pre = [lambda: [k.I("v_cndmask_b32", v(HF + 4 * p + j), v(HF + 4 * p + j), v(ONES), s(30, 2)) for j in range(4)],
               lambda: [k.I("v_cndmask_b32", v(W6 + 4 * p + j), v(W6 + 4 * p + j), v(ONES), s(32, 2)) for j in range(4)]]
        fill2 = [None, None] + pre
        for t in tiles:
            mm.append((v(ACC[t], 4), wf(p, t[0]), xf(p, t[1])))
        n = n2 = 0
        for (ac, A_, B_) in mm:
            k.I(MF, ac, A_, B_, 0 if z else ac)
            for _ in range(per):
                if n < len(fill):
                    fill[n]()
                    n += 1
            if n2 < len(fill2):
                if fill2[n2] is not None:
                    fill2[n2]()
                n2 += 1
        while n < len(fill):
            fill[n]()
            n += 1

    def later(st):
        if st < 9:
            return dma_items(st)
        if st == 9:
            return wo_items[0:10]
        if st == 10:
            return wo_items[10:20]
        return []

    LS.stamp("S2 issued")
    k.wait_vm(tok[0])
    k.I("s_barrier")
    LS.stamp("S0 landed")
    ST.stamp()
    for f in read_items(0):
        f()
    k.wait(lg=0)
    k.I("s_barrier")
    for f in later(3):
        f()
    def pl(st):
        return [prep.load(2 * st), prep.load(2 * st + 1)] if (0 <= st < 8 and not prep.off) else []

    def pr(st):
        return [prep.read(2 * st), prep.read(2 * st + 1)] if (0 <= st < 8 and not prep.off) else []

    def ps(st):
        return [prep.store(2 * st), prep.store(2 * st + 1)] if (0 <= st < 8 and not prep.off) else []
    for f in pl(0) + pl(1):
        f()
    for st in range(9):
        if st < 8:
            k.wait_vm(tok[st + 1])
            k.I("s_barrier")
            compute(2 * st, read_items(st + 1) + pr(st - 1), 2)
            k.wait(lg=0)
            k.I("s_barrier")
            compute(2 * st + 1, later(st + 4) + ps(st - 1) + pl(st + 2), 2)
        else:
            compute(2 * st, pr(st - 1), 2)
            compute(2 * st + 1, ps(st - 1), 1)
        LS.stamp(f"st{st}")
    ST.stamp()
    nt = 1 if cls == 0 else 2
    k.I("v_and_b32", v(14), 15, v(2))
    k.I("v_lshrrev_b32", v(17), 4, v(2))
    k.I("v_lshlrev_b32", v(15), 3, v(14))
    k.I("v_add_u32", v(15), L_ST, v(15))
    k.I("s_lshl_b32", s(22), s(39), 7)
    k.I("v_add_u32", v(20), s(22), v(15))
    k.I("s_lshl_b32", s(22), s(36), 7)
    k.I("v_add_u32", v(21), s(22), v(15))
    k.I("v_and_b32", v(18), 3, v(14))
    for r in range(1, 4):
        k.I("v_cmp_eq_u32", "vcc", r, v(18))
        for t in range(nt):
            k.I("v_cndmask_b32", v(SA + 4 * t), v(SA + 4 * t), v(SA + 4 * t + r), "vcc")
    k.I("v_lshrrev_b32", v(18), 2, v(14))
    k.I("v_cmp_eq_u32", s(34, 2), v(18), v(17))
    k.I("v_lshlrev_b32", v(18), 4, v(17))
    k.I("s_mul_i32", s(22), s(27), 7 * 64)
    k.I("s_add_u32", s(22), s(22), L_CS)
    k.I("v_add_u32", v(18), s(22), v(18))
    k.I("s_lshl_b32", s(22), s(27), 2)
    k.I("v_add_u32", v(25), s(22), v(17))
    k.I("v_cmp_eq_u32", s(40, 2), 6, v(25))
    k.I("s_lshl_b32", s(22), s(27), 1)
    k.I("v_add_u32", v(25), s(22), v(17))
    k.I("v_cmp_gt_u32", s(32, 2), 4, v(25))
    k.I("s_mov_b64", "exec", s(34, 2))
    k.I("ds_write_b32", v(20), v(SA), mods="offset:4")
    if cls == 1:
        k.I("ds_write_b32", v(15), v(SA + 4), mods="offset:4")
    k.I("s_mov_b64", "exec", s(30, 2))
    for s_ in hs:
        k.I("ds_write_b128", v(18), v(ACC[(s_, "h")], 4), mods=f"offset:{64 * s_}")
    k.I("s_cmp_eq_u32", s(27), 0)
    k.I("s_cbranch_scc1", f"{L}_NS")
    k.I("s_mov_b64", "exec", s(40, 2))
    for t in range(2):
        k.I("ds_write_b32", v(20 + t), v(ACC[(6, t)]))
    if cls == 1:
        k.I("ds_write_b32", v(15), v(ACC[(6, "h")]))
    k.label(f"{L}_NS")
    k.I("s_mov_b64", "exec", -1)
    wo_tok = wo_items[20]()
    if not prep.off:
        prep.finish()
    k.I("v_mov_b32", v(26), hex(f32bits(1.0 / 576)))
    k.I("v_mov_b32", v(27), hex(f32bits(1.0 / 576)))
    k.I("v_mul_u32_u24", v(22), PQ, v(14))
    k.I("v_lshl_add_u32", v(22), v(17), 3, v(22))
    k.I("s_mul_i32", s(22), s(27), 7 * 32)
    k.I("s_add_u32", s(22), s(22), L_QKV)
    k.I("v_add_u32", v(22), s(22), v(22))
    k.I("s_mul_i32", s(22), s(39), 16 * PQ)
    k.I("v_add_u32", v(23), s(22), v(22))
    k.I("s_mul_i32", s(22), s(36), 16 * PQ)
    k.I("v_add_u32", v(24), s(22), v(22))
    k.dsq.append((-2, set()))
    k.wait(lg=0)
    k.I("s_barrier")
    STT = {0: 28, 1: 30, "h": 32}
    CSR = 40
    for t in range(2):
        k.I("ds_read_b64", v(STT[t], 2), v(20 + t))
    k.I("ds_read_b64", v(STT["h"], 2), v(15))
    for s_ in range(7):
        k.I("ds_read_b128", v(CSR + 4 * s_, 4), v(18), mods=f"offset:{64 * s_}")
    B = list(STT.values())
    for b in B:
        k.I("v_pk_mul_f32", v(b, 2), v(b, 2), v(26, 2))
    for b in B:
        k.I("v_fma_f32", v(b + 1), f"-{v(b)}", v(b), v(b + 1))
    for b in B:
        k.I("v_max_f32", v(b + 1), 0, v(b + 1))
    for b in B:
        k.I("v_add_f32", v(b + 1), hex(f32bits(1e-5)), v(b + 1))
    for b in B:
        k.I("v_rsq_f32", v(b + 1), v(b + 1))
    for b in B:
        k.I("v_mul_f32", v(b), f"-{v(b)}", v(b + 1))
    for n, t in enumerate(tiles):
        s_, T = t
        x = ACC[t]
        cs = CSR + 4 * s_
        for hh in range(2):
            k.I("v_pk_mul_f32", v(x + 2 * hh, 2), v(x + 2 * hh, 2), v(STT[T], 2), mods="op_sel:[0,1] op_sel_hi:[1,1]")
        for hh in range(2):
            k.I("v_pk_fma_f32", v(x + 2 * hh, 2), v(cs + 2 * hh, 2), v(STT[T], 2), v(x + 2 * hh, 2),
                mods="op_sel:[0,0,0] op_sel_hi:[1,0,1]")
        k.I("v_cvt_pk_bf16_f32", v(x), v(x), v(x + 1))
        k.I("v_cvt_pk_bf16_f32", v(x + 1), v(x + 2), v(x + 3))
        if s_ == 6:
            k.I("s_mov_b64", "exec", s(32, 2))
        k.I("ds_write_b64", v(22 if T == "h" else 23 + T), v(x, 2), mods=f"offset:{s_ * 32}")
        if s_ == 6:
            k.I("s_mov_b64", "exec", -1)
    k.wait(vm=3 if not prep.off else 1)


def attention(k, wo_items):
    QF, KF, VF, SS, MX = 20, 36, 68, 100, 4
    c0 = [4 * (18 * h // 4) for h in range(4)]
    for h in range(4):
        for hf in range(2):
            k.I("ds_read_b64", v(QF + 4 * h + 2 * hf, 2), v(AQ), mods=f"offset:{2 * c0[h] + 8 * hf}")
        for t in range(2):
            for hf in range(2):
                k.I("ds_read_b64", v(KF + 16 * t + 4 * h + 2 * hf, 2), v(AKP if t == 0 else AQ),
                    mods=f"offset:{144 + 2 * c0[h] + 8 * hf}")
    k.I("s_lshl_b32", s(22), s(20), 2)
    k.I("s_lshl_b32", s(23), s(27), 1)
    k.I("s_add_u32", s(22), s(22), s(23))
    k.I("s_mul_i32", s(22), s(22), 72 * 256)
    k.I("s_mul_i32", s(23), s(21), 9 * 256)
    k.I("s_add_u32", s(22), s(22), s(23))
    k.I("s_add_u32", s(22), s(22), hex(WS_O))
    k.I("v_cmp_gt_u32", s(40, 2), 16, v(2))
    k.I("s_mov_b32", s(24), hex(f32bits(LOG2E * 18 ** -0.5)))
    k.bgq = list(wo_items)
    k.bg_period = 1
    for h in range(4):
        for e in range(4):
            x = QF + 4 * h + e
            k.I("v_and_b32", v(x), v(QM + 4 * (h % 2) + e), v(x))
        k.I(MF, v(SS + 8 * h, 4), v(KF + 4 * h, 4), v(QF + 4 * h, 4), v(B0, 4))
        k.I(MF, v(SS + 8 * h + 4, 4), v(KF + 16 + 4 * h, 4), v(QF + 4 * h, 4), v(BC, 4))
    for h in range(4):
        for rt in range(2):
            for kt in range(2):
                k.I("ds_read_b64_tr_b16", v(VF + 8 * h + 4 * rt + 2 * kt, 2), v(AVP if kt == 0 else AV),
                    mods=f"offset:{288 + 2 * c0[h] + 32 * rt}")
    for h in range(4):
        b = SS + 8 * h
        k.I("v_max3_f32", v(MX + h), v(b), v(b + 1), v(b + 2))
    for h in range(4):
        b = SS + 8 * h
        k.I("v_max3_f32", v(MX + h), v(MX + h), v(b + 3), v(b + 4))
    for h in range(4):
        b = SS + 8 * h
        k.I("v_max3_f32", v(MX + 4 + h), v(b + 5), v(b + 6), v(b + 7))
    for h in range(4):
        k.I("v_max_f32", v(MX + h), v(MX + h), v(MX + 4 + h))
    reduce_groups(k, [MX + h for h in range(4)], MX + 4, op="v_max_f32")
    for h in range(4):
        k.I("v_mul_f32", v(MX + h), s(24), v(MX + h))
    OA, OB = QF, KF

    def pv(hp):
        k.I(MF, v(SS + 8 * hp + 4, 4), v(ONES, 4), v(SS + 8 * hp, 4), 0)
        k.I(MF, v(OA + 4 * hp, 4), v(VF + 8 * hp, 4), v(SS + 8 * hp, 4), 0)
        k.I(MF, v(OB + 4 * hp, 4), v(VF + 8 * hp + 4, 4), v(SS + 8 * hp, 4), 0)
    for h in range(4):
        for e in range(8):
            k.I("v_fma_f32", v(SS + 8 * h + e), v(SS + 8 * h + e), s(24), f"-{v(MX + h)}")
        for e in range(8):
            k.I("v_exp_f32", v(SS + 8 * h + e), v(SS + 8 * h + e))
        for e in range(4):
            k.I("v_cvt_pk_bf16_f32", v(SS + 8 * h + e), v(SS + 8 * h + 2 * e), v(SS + 8 * h + 2 * e + 1))
        if h > 0:
            pv(h - 1)
    pv(3)
    while k.bgq:
        k.bgq.pop(0)()

    def scale(g):
        for r in range(4):
            k.I("v_mul_f32", v(OA + 4 * g + r), v(MX + g), v(OA + 4 * g + r))
        for r in range(2 if g % 2 == 0 else 4):
            k.I("v_mul_f32", v(OB + 4 * g + r), v(MX + g), v(OB + 4 * g + r))
    for h in range(4):
        k.I("v_rcp_f32", v(MX + h), v(SS + 8 * h + 4))
        if h:
            scale(h - 1)
    scale(3)
    for hp in range(2):
        e_, o_ = 2 * hp, 2 * hp + 1
        for r in range(2):
            k.I("v_cndmask_b32", v(OA + 4 * o_ + r), v(OA + 4 * o_ + r), v(OB + 4 * e_ + r), s(40, 2))
        for (reg, G) in ((OA + 4 * e_, 9 * hp), (OA + 4 * o_, 9 * hp + 4), (OB + 4 * o_, 9 * hp + 8)):
            k.I("v_cvt_pk_bf16_f32", v(reg), v(reg), v(reg + 1))
            k.I("v_cvt_pk_bf16_f32", v(reg + 1), v(reg + 2), v(reg + 3))
            last = G % 9 == 8
            if last:
                k.I("s_mov_b64", "exec", s(40, 2))
            k.I("buffer_store_dwordx2", v(reg, 2), v(AO + G % 2), s(S_WS, 4), s(22), mods=f"offen offset:{(G // 2) * 256} sc1")
            if last:
                k.I("s_mov_b64", "exec", -1)


def emit_ab(k, U, ST, dbg="", sc="", early=None):
    LS = LStamps(k, 255, 100, "lst" in dbg)
    LS.stamp("start")
    k.I("s_load_dwordx4", s(20, 4), s(0, 2), KA_X)
    k.I("s_load_dwordx4", s(24, 4), s(0, 2), KA_DBG)
    k.I("s_load_dwordx2", s(28, 2), s(0, 2), KA_WO)
    k.I("s_load_dwordx4", s(32, 4), s(0, 2), KA_WG)
    k.I("s_load_dwordx2", s(30, 2), s(0, 2), KA_WD)
    k.I("v_lshrrev_b32", v(1), 6, v(0))
    k.I("v_and_b32", v(2), 63, v(0))
    k.I("v_readfirstlane_b32", s(3), v(1))
    k.I("v_mov_b32", v(3), 0)
    k.I("v_lshrrev_b32", v(14), 3, v(2))
    k.I("v_lshrrev_b32", v(15), 1, v(14))
    k.I("v_and_b32", v(16), 7, v(2))
    k.wait(lg=0)
    LS.stamp("kernarg")
    srd(k, S_X, 20, S * D * 2)
    srd(k, S_QKV, 22, D * 3 * D * 2)
    srd(k, S_WS, 26, WS_SIZE)
    srd(k, S_DBG, 24, 256)
    srd(k, S_WO, 28, D * D * 2)
    srd(k, S_WG, 32, D * F * 2)
    srd(k, S_WU, 34, D * F * 2)
    srd(k, S_WD, 30, D * F * 2)
    k.I("s_bfe_u32", s(20), s(2), hex((2 << 16) | 1))
    k.I("s_lshl_b32", s(20), s(20), 3)
    k.I("s_bfe_u32", s(21), s(2), hex((3 << 16) | 3))
    k.I("s_add_u32", s(20), s(20), s(21))
    k.I("s_and_b32", s(21), s(2), 1)
    k.I("s_lshl_b32", s(21), s(21), 2)
    k.I("s_lshr_b32", s(22), s(2), 6)
    k.I("s_add_u32", s(21), s(21), s(22))
    k.I("s_and_b32", s(27), s(3), 1)
    k.I("s_lshr_b32", s(28), s(3), 1)
    VX = 4
    k.I("s_mov_b32", s(23), 1152)
    k.I("s_lshl_b32", s(22), s(27), 2)
    k.I("v_add_u32", v(15), s(22), v(15))
    k.I("v_xor_b32", v(15), v(15), v(16))
    k.I("s_lshl_b32", s(22), s(20), 6)
    k.I("s_lshl_b32", s(24), s(27), 4)
    k.I("s_add_u32", s(24), s(24), s(22))
    k.I("v_lshl_add_u32", v(16), v(14), 1, s(24))
    k.I("v_mul_lo_u32", v(16), v(16), s(23))
    k.I("v_lshl_add_u32", v(VX), v(15), 4, v(16))
    k.I("s_add_u32", s(24), s(22), s(27))
    k.I("s_sub_u32", s(24), s(24), 16)
    k.I("v_lshl_add_u32", v(16), v(14), 1, s(24))
    k.I("v_mul_lo_u32", v(16), v(16), s(23))
    k.I("v_lshl_add_u32", v(VX + 1), v(15), 4, v(16))
    k.I("s_mul_i32", s(22), s(28), 14)
    k.I("s_add_u32", s(22), s(22), s(27))
    k.I("s_lshl_b32", s(24), s(22), 6)
    k.I("v_add_u32", v(18), s(24), v(2))
    k.I("s_lshl_b32", s(24), s(22), 10)
    k.I("s_add_u32", s(24), s(24), XB)
    k.I("s_lshl_b32", s(37), s(27), 10)
    k.I("s_mul_i32", s(25), s(21), 144)
    k.I("s_mov_b32", s(26), s(25))
    k.I("s_and_b32", s(34), s(20), 7)
    k.I("s_and_b32", s(35), s(21), 3)
    k.I("s_lshl_b32", s(35), s(35), 1)
    k.I("s_add_u32", s(34), s(34), s(35))
    k.I("s_sub_u32", s(35), s(34), 9)
    k.I("s_cmp_ge_u32", s(34), 9)
    k.I("s_cselect_b32", s(34), s(35), s(34))
    if "norot" in dbg:
        k.I("s_mov_b32", s(34), 0)
    k.I("s_mul_i32", s(35), s(34), 64 * 3456)
    k.I("s_add_u32", s(25), s(25), s(35))
    k.I("s_lshl_b32", s(34), s(34), 7)
    k.I("s_or_b32", s(22), s(2), s(3))
    k.I("s_cmp_lg_u32", s(22), 0)
    k.I("s_cbranch_scc1", f"{U}_NN")
    k.I("s_memrealtime", s(22, 2))
    k.wait(lg=0)
    k.I("s_or_b32", s(22), s(22), 1)
    k.I("v_mov_b32", v(248), s(22))
    k.I("v_mov_b32", v(249), s(23))
    k.I("buffer_store_dwordx2", v(248, 2), v(3), s(S_DBG, 4), 0, mods="offen sc1")
    k.vmq.pop()
    k.label(f"{U}_NN")
    if early is not None:
        early()
    prep = Prep(k, U, sc)
    prep.off = "noprep" in dbg
    prep.decode()

    def wo_item(n):
        def f():
            base, lim, off = (0, 38, 4 * n) if n < 10 else ((39, 38, 4 * (n - 10)) if n < 20 else (78, 2, 0))
            if off + 3 > lim:
                k.I("s_add_u32", s(29), s(3), off)
                k.I("s_min_u32", s(29), s(29), lim)
                k.I("s_add_u32", s(29), s(29), base)
                k.I("s_lshl_b32", "m0", s(29), 10)
                k.I("s_lshl_b32", s(29), s(29), 6)
                k.I("v_add_u32", v(250), s(29), v(2))
            else:
                k.I("v_add_u32", v(250), 64 * (base + off), v(0))
                k.I("s_lshl_b32", s(29), s(3), 10)
                k.I("s_add_u32", "m0", s(29), (base + off) * 1024)
            k.I("v_mul_u32_u24", v(251), 7282, v(250))
            k.I("v_lshrrev_b32", v(251), 16, v(251))
            k.I("v_mul_u32_u24", v(251), 1152 - 144, v(251))
            k.I("v_lshl_add_u32", v(251), v(250), 4, v(251))
            k.I("buffer_load_dwordx4", v(251), s(S_WO, 4), s(26), mods="offen lds")
        return f
    wo_items = [wo_item(n) for n in range(21)]

    def touch_w(n):
        def f():
            k.I("v_add_u32", v(250), 256 * n, v(0))
            k.I("v_min_u32", v(250), 431, v(250))
            k.I("v_mul_u32_u24", v(251), 10923, v(250))
            k.I("v_lshrrev_b32", v(251), 16, v(251))
            k.I("v_mul_u32_u24", v(252), 6, v(251))
            k.I("v_sub_u32", v(250), v(250), v(252))
            k.I("v_mul_u32_u24", v(251), 8 * 3456, v(251))
            k.I("v_lshrrev_b32", v(252), 1, v(250))
            k.I("v_mul_u32_u24", v(252), 1152, v(252))
            k.I("v_add_u32", v(251), v(251), v(252))
            k.I("v_and_b32", v(250), 1, v(250))
            k.I("v_mul_u32_u24", v(250), 140, v(250))
            k.I("v_add_u32", v(251), v(251), v(250))
            k.I("s_and_b32", s(29), s(20), 7)
            k.I("s_mul_i32", s(29), s(29), 3456)
            k.I("s_add_u32", s(29), s(29), s(26))
            k.I("buffer_load_dword", v(194 + n), v(251), s(S_QKV, 4), s(29), mods="offen")
        return f

    def touch_x():
        k.I("v_mul_u32_u24", v(251), 1152, v(2))
        k.I("s_and_b32", s(29), s(21), 3)
        k.I("s_lshl_b32", s(38), s(3), 2)
        k.I("s_add_u32", s(29), s(29), s(38))
        k.I("s_min_u32", s(29), s(29), 8)
        k.I("s_lshl_b32", s(29), s(29), 7)
        k.I("s_mul_i32", s(38), s(20), 64 * 1152)
        k.I("s_add_u32", s(29), s(29), s(38))
        k.I("buffer_load_dword", v(196), v(251), s(S_X, 4), s(29), mods="offen")

    def touch_wo():
        k.I("v_min_u32", v(250), 143, v(0))
        k.I("v_lshrrev_b32", v(251), 1, v(250))
        k.I("v_mul_u32_u24", v(251), 8 * 1152, v(251))
        k.I("v_and_b32", v(250), 1, v(250))
        k.I("v_mul_u32_u24", v(250), 140, v(250))
        k.I("v_add_u32", v(251), v(251), v(250))
        k.I("s_and_b32", s(29), s(20), 7)
        k.I("s_mul_i32", s(29), s(29), 1152)
        k.I("s_add_u32", s(29), s(29), s(26))
        k.I("buffer_load_dword", v(197), v(251), s(S_WO, 4), s(29), mods="offen")
    touch_items = [touch_w(0), touch_x, touch_w(1), touch_wo] if "touch" in dbg else []
    k.I("v_lshrrev_b32", v(52), 4, v(2))
    k.I("v_lshlrev_b32", v(52), 3, v(52))
    k.I("v_bfe_u32", v(53), v(2), 2, 2)
    k.I("v_add_u32", v(52), v(52), v(53))
    k.I("v_mul_u32_u24", v(52), 144, v(52))
    k.I("v_and_b32", v(53), 3, v(2))
    k.I("v_lshl_add_u32", v(192), v(53), 3, v(52))
    k.I("v_add_u32", v(193), 9 * 4608, v(192))

    def wo(kb, r, h=None):
        n = 5 * kb + r
        vg = list(range(88, 160, 4)) + list(range(168, 184, 4)) + list(range(232, 248, 4))
        f, b = ("a", 4 * n) if n < 64 else ("v", vg[n - 64])
        return R(f, b, 4) if h is None else R(f, b + 2 * h, 2)
    wofrag = [lambda kb=kb, r=r, h=h: k.I("ds_read_b64_tr_b16", wo(kb, r, h), v(192 + kb // 9),
                                          mods=f"offset:{(kb % 9) * 4608 + h * 576 + r * 32}")
              for kb in range(18) for r in range(5) for h in range(2)]
    LS.stamp("setup")
    n0 = LS.n
    k.I("s_cmp_lg_u32", s(28), 0)
    k.I("s_cbranch_scc1", f"{U}_A1")
    for cls in range(2):
        if cls == 1:
            k.label(f"{U}_A1")
            k.vmq, k.dsq = [], []
        if cls == 1:
            LS.n, LS.names = n0, LS.names[:n0]
        gemm(k, U, cls, ST if cls == 0 else ST.clone(), prep, wo_items, touch_items, wofrag, dbg, LS)
        if cls == 0:
            k.I("s_branch", f"{U}_AJ")
    k.label(f"{U}_AJ")
    k.dsq = [(-2, set())]
    k.wait(lg=0)
    k.I("s_barrier")
    ST.stamp()
    k.I("buffer_load_dwordx2", v(248, 2), v(3), s(S_DBG, 4), 0, mods="offen sc1")
    attention(k, wofrag[0:128])
    ST.stamp()
    k.wait(vm=0)
    k.I("s_barrier")
    k.I("s_mov_b32", s(33), 20000)
    k.label(f"{U}_NL")
    k.I("v_readfirstlane_b32", s(22), v(248))
    k.I("s_cmp_lg_u32", s(22), 0)
    k.I("s_cbranch_scc1", f"{U}_NOK")
    k.I("s_sub_u32", s(33), s(33), 1)
    k.I("s_cmp_eq_u32", s(33), 0)
    k.I("s_cbranch_scc1", f"{U}_NOK")
    k.I("buffer_load_dwordx2", v(248, 2), v(3), s(S_DBG, 4), 0, mods="offen sc1")
    k.wait(vm=0)
    k.I("s_branch", f"{U}_NL")
    k.label(f"{U}_NOK")
    k.I("s_lshl_b32", s(24), s(20), 6)
    k.I("s_add_u32", s(24), s(24), hex(WS_F0))
    k.I("s_cmp_lg_u32", s(3), 0)
    k.I("s_cbranch_scc1", f"{U}_NF")
    k.I("s_lshl_b32", s(23), s(21), 3)
    k.I("s_add_u32", s(23), s(23), s(24))
    k.I("buffer_store_dwordx2", v(248, 2), v(3), s(S_WS, 4), s(23), mods="offen sc1")
    k.vmq.pop()
    k.label(f"{U}_NF")
    ST.stamp()
    k.I("s_lshl_b32", s(22), s(20), 2)
    k.I("s_add_u32", s(22), s(22), s(3))
    k.I("v_and_b32", v(8), 15, v(2))
    k.I("v_lshrrev_b32", v(9), 4, v(2))
    k.I("v_mul_u32_u24", v(10), 1152, v(8))
    k.I("v_lshl_add_u32", v(10), v(9), 3, v(10))
    k.I("s_mul_i32", s(23), s(22), 16 * 1152)
    k.I("s_add_u32", s(23), s(23), s(26))
    RES = 200
    for r in range(5):
        k.I("buffer_load_dwordx2", v(RES + 2 * r, 2), v(10), s(S_X, 4), s(23), mods=f"offen offset:{32 * r}")
    LS.stamp("flag")

    for f in wofrag[128:]:
        f()
    k.I("v_and_b32", v(11), 7, v(2))
    k.I("v_lshlrev_b32", v(11), 3, v(11))
    k.I("s_mov_b32", s(33), 40000)
    k.label(f"{U}_PL")
    k.I("buffer_load_dwordx2", v(6, 2), v(11), s(S_WS, 4), s(24), mods="offen sc1")
    k.wait(vm=0)
    k.I("v_cmp_eq_u64", "vcc", v(248, 2), v(6, 2))
    k.I("s_cmp_eq_u64", "vcc", -1)
    k.I("s_cbranch_scc1", f"{U}_POK")
    k.I("s_sub_u32", s(33), s(33), 1)
    k.I("s_cmp_eq_u32", s(33), 0)
    k.I("s_cbranch_scc1", f"{U}_POK")
    k.I("s_sleep", 1)
    k.I("s_branch", f"{U}_PL")
    k.label(f"{U}_POK")
    ST.stamp()
    OF = 16
    k.I("v_lshlrev_b32", v(11), 4, v(2))
    k.I("s_mul_i32", s(24), s(22), 18 * 1024)
    k.I("s_add_u32", s(24), s(24), hex(WS_O))
    for kb in range(18):
        if kb % 4 == 0 and kb:
            k.I("s_add_u32", s(24), s(24), 4096)
        k.I("buffer_load_dwordx4", v(OF + 4 * kb, 4), v(11), s(S_WS, 4), s(24), mods=f"offen offset:{(kb % 4) * 1024} sc1")
    k.I("v_lshlrev_b32", v(10), 4, v(8))
    k.I("v_lshrrev_b32", v(11), 1, v(9))
    k.I("v_lshl_add_u32", v(10), v(11), 8, v(10))
    k.I("v_and_b32", v(11), 1, v(9))
    k.I("v_lshl_add_u32", v(10), v(11), 3, v(10))
    k.I("s_mul_i32", s(23), s(22), 72 * 256)
    k.I("s_mul_i32", s(24), s(21), 9 * 256)
    k.I("s_add_u32", s(23), s(23), s(24))
    k.I("s_add_u32", s(23), s(23), hex(WS_H))
    k.I("v_cmp_gt_u32", s(40, 2), 32, v(2))
    k.I("v_mov_b32", v(4), 0)
    k.I("v_mov_b32", v(5), 0)
    k.I("v_mov_b32", v(6), "0x3f803f80")
    BACC = 212
    for kb in range(18):
        for r in range(5):
            ac = v(BACC + 4 * r, 4)
            k.I(MF, ac, wo(kb, r), v(OF + 4 * kb, 4), ac if kb else 0)
    ST.stamp()
    for r in range(5):
        x = BACC + 4 * r
        t = 16 + 4 * (r % 2)
        for i in range(2):
            k.I("v_lshlrev_b32", v(t + 2 * i), 16, v(RES + 2 * r + i))
            k.I("v_and_b32", v(t + 2 * i + 1), "0xffff0000", v(RES + 2 * r + i))
        for i in range(4):
            k.I("v_add_f32", v(x + i), v(x + i), v(t + i))
        k.I("v_cvt_pk_bf16_f32", v(x), v(x), v(x + 1))
        k.I("v_cvt_pk_bf16_f32", v(x + 1), v(x + 2), v(x + 3))
        if r == 4:
            k.I("s_mov_b64", "exec", s(40, 2))
        k.I("buffer_store_dwordx2", v(x, 2), v(10), s(S_WS, 4), s(23), mods=f"offen offset:{r * 512} {sc}")
        for i in range(2):
            k.I("v_dot2c_f32_bf16", v(4), v(x + i), v(6))
            k.I("v_dot2c_f32_bf16", v(5), v(x + i), v(x + i))
        if r == 4:
            k.I("s_mov_b64", "exec", -1)
    reduce_groups(k, [4, 5], 24)
    k.I("v_lshlrev_b32", v(10), 6, v(8))
    k.I("s_lshl_b32", s(23), s(22), 10)
    k.I("s_lshl_b32", s(24), s(21), 3)
    k.I("s_add_u32", s(23), s(23), s(24))
    k.I("s_add_u32", s(23), s(23), hex(WS_ST))
    k.I("buffer_store_dwordx2", v(4, 2), v(10), s(S_WS, 4), s(23), mods=f"offen {sc}")
    LS.stamp("B done")
    LS.dump(S_WS, 254, 1)


def build_ab(dbg=""):
    k = Kern("kab_kernel")
    ST = Stamps(k, 64, "stamp" in dbg)
    k.I("s_cmp_ge_u32", s(2), 256)
    k.I("s_cbranch_scc1", "KAB_END")
    ST.stamp()
    emit_ab(k, "KAB", ST, dbg)
    k.I("v_lshlrev_b32", v(8), 2, v(2))
    k.I("s_lshl_b32", s(22), s(2), 7)
    k.I("s_add_u32", s(22), s(22), hex(WS_F1))
    k.I("s_add_u32", s(23), s(22), hex(WS_F2 - WS_F1))
    k.I("v_cmp_gt_u32", "vcc", 32, v(2))
    k.I("s_and_saveexec_b64", s(30, 2), "vcc")
    k.I("buffer_store_dword", v(3), v(8), s(S_WS, 4), s(22), mods="offen")
    k.I("buffer_store_dword", v(3), v(8), s(S_WS, 4), s(23), mods="offen")
    k.I("s_mov_b64", "exec", s(30, 2))
    ST.stamp()
    ST.dump(S_WS, 100, 3)
    k.label("KAB_END")
    k.I("s_endpgm")
    return k, "grid=(256,1,1) block=(256,1,1) lds=%d" % LDS_TOTAL
```

```python
from common import *
from k_frag import f32bits
from collections import deque

RING = 5
STAGE = 16384
NSTG = 19
LDS_WD = RING * STAGE
LDS_CS = LDS_WD + 4 * NSTG * 1024
LDS_TOTAL = LDS_CS + 2304
BUF = 73728
MF = "v_mfma_f32_16x16x32_bf16"
LOG2E = 1.4426950408889634
NSTAT = 8


class Pool:
    def __init__(self, vlo, vhi, alo, ahi):
        self.v = deque(range(vlo, vhi, 4))
        self.a = deque(range(alo, ahi, 4))

    def get(self, kind="any"):
        if kind == "v" or (kind == "any" and not self.a):
            return ("v", self.v.popleft())
        return ("a", self.a.popleft())

    def put(self, r):
        (self.v if r[0] == "v" else self.a).append(r[1])

    def n(self):
        return len(self.v) + len(self.a)


def r4(r):
    return R(r[0], r[1], 4)


def build_cd(dbg="", NA=7):
    k = Kern("kcd_kernel")
    ST = Stamps(k, 64, "stamp" in dbg)
    k.I("s_cmp_ge_u32", s(2), 256)
    k.I("s_cbranch_scc1", "KCD_END")
    ST.stamp()
    emit_cd(k, ST, dbg, NA, False)
    k.label("KCD_END")
    k.I("s_endpgm")
    return k, "grid=(256,1,1) block=(256,1,1) lds=%d" % LDS_TOTAL


def emit_cd(k, ST, dbg, NA, fused):
    if "stC" in dbg or "stD" in dbg:
        ST2 = Stamps(k, 64, True)
    else:
        ST2 = Stamps(k, 64, False)
    SC = "sc1" if "nosc" not in dbg else ""
    SCI = "sc1" if fused else ""
    if not fused:
        k.I("s_load_dwordx2", s(4, 2), s(0, 2), KA_WS)
        k.I("v_lshrrev_b32", v(1), 6, v(0))
        k.I("v_and_b32", v(2), 63, v(0))
        k.I("v_readfirstlane_b32", s(3), v(1))
    k.I("s_load_dwordx2", s(6, 2), s(0, 2), KA_OUT)
    k.I("s_bfe_u32", s(16), s(2), hex((2 << 16) | 1))
    k.I("s_bfe_u32", s(17), s(2), hex((2 << 16) | 3))
    k.I("s_and_b32", s(21), s(2), 1)
    k.I("s_lshl_b32", s(21), s(21), 3)
    k.I("s_lshr_b32", s(20), s(2), 5)
    k.I("s_add_u32", s(21), s(21), s(20))
    k.I("s_lshl_b32", s(20), s(16), 2)
    k.I("s_add_u32", s(20), s(20), s(17))
    k.I("v_lshlrev_b32", v(3), 4, v(2))
    k.I("s_lshl_b32", s(22), s(21), 3)
    k.I("s_lshl_b32", s(23), s(3), 1)
    k.I("s_add_u32", s(22), s(22), s(23))
    k.I("s_mul_i32", s(24), s(20), 9 * 18 * 4096)
    k.I("s_add_u32", s(24), s(24), hex(WS_WGU))
    k.I("s_lshl_b32", s(25), s(3), 12)
    k.I("s_add_u32", s(30), s(24), s(25))
    k.I("s_add_u32", s(30), s(30), 72 * 4096)
    k.I("s_mul_i32", s(31), s(3), 18 * 4096)
    k.I("s_add_u32", s(24), s(24), s(31))
    k.I("s_mul_i32", s(26), s(22), 18 * 1024)
    k.I("s_add_u32", s(26), s(26), hex(WS_H))
    k.I("s_add_u32", s(27), s(26), 18 * 1024)
    k.wait(lg=0)
    if not fused:
        srd(k, 8, 4, WS_SIZE)
    srd(k, 12, 6, S * D * 2)

    def nonce_poll(tag, vo, sreg, nld):
        k.I("s_mov_b32", s(60), 40000)
        k.label(f"KCD_Q{tag}")
        for i in range(nld):
            k.I("buffer_load_dwordx4", v(28 + 4 * i, 4), v(vo), s(8, 4), s(sreg), mods=f"offen offset:{16 * i} sc1")
        k.wait(vm=0)
        for i in range(2 * nld):
            k.I("v_cmp_eq_u64", "vcc" if i == 0 else s(56, 2), v(248, 2), v(28 + 2 * i, 2))
            if i:
                k.I("s_and_b64", "vcc", "vcc", s(56, 2))
        k.I("s_cmp_eq_u64", "vcc", -1)
        k.I("s_cbranch_scc1", f"KCD_R{tag}")
        k.I("s_sub_u32", s(60), s(60), 1)
        k.I("s_cmp_eq_u32", s(60), 0)
        k.I("s_cbranch_scc1", f"KCD_R{tag}")
        k.I("s_sleep", 1)
        k.I("s_branch", f"KCD_Q{tag}")
        k.label(f"KCD_R{tag}")

    P = Pool(28, 256, 0, 256)
    X = {(tt, kb): P.get("a") for kb in range(18) for tt in range(2)}
    ACC = {(c, tile, tt): P.get("v") for c in range(4) for tile in range(4) for tt in range(2)}
    CS = [P.get("v") for _ in range(4)]
    WF = {(b, tile): P.get("a") for b in range(3) for tile in range(4)}

    dma_tok = {}
    wtok = {}

    NSTAGE = 18 + 23

    def dma_items(st):
        slot = st % RING

        def one(i):
            def f():
                if i == 0:
                    k.I("s_add_u32", "m0", s(25), slot * STAGE)
                    if st == NSTAGE - 1:
                        k.I("s_and_b32", s(59), s(3), 2)
                        k.I("s_lshl_b32", s(59), s(59), 12)
                        k.I("s_sub_u32", s(30), s(30), s(59))
                sr = 24 if st < 18 else 30
                t = k.I("buffer_load_dwordx4", v(3), s(8, 4), s(sr), mods=f"offen offset:{i * 1024} {SCI} lds")
                if i == 3:
                    dma_tok[st] = t
                    k.I("s_add_u32", s(sr), s(sr), 4096 if st < 18 else STAGE)
            return f
        return [one(i) for i in range(4)]

    def x_items(kb0, kb1):
        L = []
        for kb in range(kb0, kb1):
            for tt in range(2):
                def f(kb=kb, tt=tt):
                    if kb % 4 == 0 and kb:
                        k.I("s_add_u32", s(26 + tt), s(26 + tt), 4096)
                    k.I("buffer_load_dwordx4", r4(X[(tt, kb)]), v(3), s(8, 4), s(26 + tt), mods=f"offen offset:{(kb % 4) * 1024} {SCI}")
                L.append(f)
        return L

    if fused:
        k.I("v_lshlrev_b32", v(4), 5, v(2))
        k.I("s_mov_b32", s(59), hex(WS_F0))
        nonce_poll("a", 4, 59, 2)
        for st in range(3):
            for f in dma_items(st):
                f()
        k.I("v_and_b32", v(4), 7, v(2))
        k.I("v_lshlrev_b32", v(4), 4, v(4))
        k.I("s_lshl_b32", s(59), s(21), 7)
        k.I("s_add_u32", s(59), s(59), hex(WS_FH))
        nonce_poll("b", 4, 59, 1)
        ST.stamp()
        for f in x_items(0, 3):
            f()
    else:
        for st in range(3):
            for f in dma_items(st) + x_items(st, st + 1):
                f()
    k.I("v_add_u32", v(4), 3 * STAGE, v(3))
    k.I("s_mul_i32", s(61), s(3), NSTG * 1024)
    k.I("s_add_u32", s(61), s(61), LDS_WD)
    k.I("v_add_u32", v(5), s(61), v(3))
    k.I("v_add_u32", v(14), 144 * 1024, v(3))
    k.I("v_mov_b32", v(15), 0)
    k.I("s_mul_i32", s(28), s(22), 144 * 1024)
    k.I("s_mul_i32", s(29), s(20), 9 * 1024)
    k.I("s_add_u32", s(28), s(28), s(29))
    k.I("s_add_u32", s(28), s(28), hex(WS_HH))
    k.I("s_mul_i32", s(53), s(16), 36)
    k.I("s_mul_i32", s(54), s(3), 9)
    k.I("s_add_u32", s(53), s(53), s(54))
    k.I("s_mul_i32", s(32), s(53), 36864)
    k.I("s_mul_i32", s(54), s(17), 9216)
    k.I("s_add_u32", s(32), s(32), s(54))
    k.I("s_add_u32", s(32), s(32), hex(WS_WD))
    k.I("s_lshl_b32", s(54), s(21), 2)
    k.I("s_add_u32", s(55), s(54), s(16))
    k.I("s_lshl_b32", s(55), s(55), 2)
    k.I("s_add_u32", s(40), s(55), s(3))
    k.I("s_lshl_b32", s(40), s(40), 7)
    k.I("s_add_u32", s(40), s(40), hex(WS_F1))
    k.I("s_add_u32", s(44), s(55), s(17))
    k.I("s_lshl_b32", s(44), s(44), 7)
    k.I("s_lshl_b32", s(56), s(3), 2)
    k.I("s_add_u32", s(44), s(44), s(56))
    k.I("s_add_u32", s(44), s(44), hex(WS_F1))
    k.I("s_add_u32", s(55), s(54), s(17))
    k.I("s_lshl_b32", s(55), s(55), 2)
    for p in range(4):
        k.I("s_add_u32", s(56), s(16), p + 1)
        k.I("s_and_b32", s(56), s(56), 3)
        k.I("s_lshl_b32", s(57), s(21), 2)
        k.I("s_add_u32", s(57), s(57), s(56))
        k.I("s_mul_i32", s(57), s(57), 288)
        k.I("s_add_u32", s(57), s(57), s(53))
        k.I("s_lshl_b32", s(57), s(57), 10)
        k.I("s_add_u32", s(36 + p), s(57), hex(WS_HH))
        k.I("s_add_u32", s(57), s(55), s(56))
        if p < 3:
            k.I("s_lshl_b32", s(58), s(57), 2)
            k.I("s_add_u32", s(58), s(58), s(16))
            k.I("s_mul_i32", s(58), s(58), 18432)
            k.I("s_add_u32", s(45 + p), s(58), hex(WS_PART))
            k.I("s_lshl_b32", s(58), s(57), 5)
            k.I("s_lshl_b32", s(59), s(3), 2)
            k.I("s_add_u32", s(58), s(58), s(59))
            k.I("s_add_u32", s(58), s(58), s(16))
            k.I("s_lshl_b32", s(58), s(58), 2)
            k.I("s_add_u32", s(48 + p), s(58), hex(WS_F2))
        else:
            k.I("s_mul_i32", s(51), s(57), 4 * 18432)
            k.I("s_add_u32", s(51), s(51), hex(WS_PART))
            k.I("s_lshl_b32", s(52), s(57), 7)
            k.I("s_lshl_b32", s(59), s(3), 4)
            k.I("s_add_u32", s(52), s(52), s(59))
            k.I("s_add_u32", s(52), s(52), hex(WS_F2))

    tS = [P.get("v") for _ in range(8)]
    tC = [P.get("v") for _ in range(9)]

    def stat_loads(tS, sbase_reg, ntt=2):
        L = []
        for tt in range(ntt):
            for i in range(4):
                L.append(lambda tt=tt, i=i: k.I("buffer_load_dwordx4", r4(tS[4 * tt + i]), v(7), s(8, 4), s(sbase_reg),
                                                mods=f"offen offset:{tt * 1024 + 16 * i} {SCI}"))
        return L

    def stat_math(t4, dmean, drstd):
        b = [g[1] for g in t4]
        L = []
        for (x, y) in ((0, 1), (2, 3), (0, 2)):
            for i in range(4):
                L.append(lambda x=x, y=y, i=i: k.I("v_add_f32", v(b[x] + i), v(b[x] + i), v(b[y] + i)))
        L.append(lambda: k.I("v_add_f32", v(b[0]), v(b[0]), v(b[0] + 2)))
        L.append(lambda: k.I("v_add_f32", v(b[0] + 1), v(b[0] + 1), v(b[0] + 3)))
        L.append(lambda: k.I("v_mul_f32", v(b[0]), hex(f32bits(-1.0 / 576)), v(b[0])))
        L.append(lambda: k.I("v_mul_f32", v(b[0] + 1), hex(f32bits(1.0 / 576)), v(b[0] + 1)))
        L.append(lambda: k.I("v_fma_f32", v(b[0] + 1), f"-{v(b[0])}", v(b[0]), v(b[0] + 1)))
        L.append(lambda: k.I("v_max_f32", v(b[0] + 1), 0, v(b[0] + 1)))
        L.append(lambda: k.I("v_add_f32", v(b[0] + 1), hex(f32bits(1e-5)), v(b[0] + 1)))
        L.append(lambda: k.I("v_rsq_f32", v(drstd), v(b[0] + 1)))
        if dmean is not None:
            L.append(lambda: k.I("v_mov_b32", v(dmean), v(b[0])))
        return L

    k.I("v_and_b32", v(7), 15, v(2))
    k.I("v_lshlrev_b32", v(7), 6, v(7))
    k.I("s_lshl_b32", s(23), s(22), 10)
    k.I("s_add_u32", s(23), s(23), hex(WS_ST))
    k.I("v_min_u32", v(24), 143, v(0))
    k.I("v_lshlrev_b32", v(24), 4, v(24))
    k.I("s_mul_i32", s(31), s(20), 2304)
    k.I("s_add_u32", s(31), s(31), hex(WS_CS))
    k.I("v_lshrrev_b32", v(6), 4, v(2))
    k.I("v_lshlrev_b32", v(6), 4, v(6))
    k.I("v_add_u32", v(6), LDS_CS, v(6))

    def cs_loads():
        L = []
        for p in range(9):
            def f(p=p):
                k.I("buffer_load_dwordx4", r4(tC[p]), v(24), s(8, 4), s(31), mods=f"offen {SCI}")
                if p < 8:
                    k.I("s_add_u32", s(31), s(31), 36864)
            L.append(f)
        return L

    def startup_math():
        L = []
        for tt in range(2):
            L += stat_math(tS[4 * tt:4 * tt + 4], 8 + tt, 10 + tt)
            L.append(lambda tt=tt: k.I("v_mul_f32", v(10 + tt), hex(f32bits(-LOG2E)), v(10 + tt)))
            L.append(lambda tt=tt: k.I("v_mul_f32", v(12 + tt), v(10 + tt), v(8 + tt)))
        for p in range(1, 9):
            for i in range(4):
                L.append(lambda p=p, i=i: k.I("v_add_f32", v(tC[0][1] + i), v(tC[0][1] + i), v(tC[p][1] + i)))
        L.append(lambda: k.I("v_add_u32", v(24), LDS_CS, v(24)))
        L.append(lambda: k.I("ds_write_b128", v(24), r4(tC[0])))

        def rel():
            for g in tS + tC:
                P.put(g)
        L.append(rel)
        return L

    def w_read(q, tile):
        st, r = divmod(q, 4)
        slot = st % RING
        wtok[(q, tile)] = k.I("ds_read_b128", r4(WF[(q % 3, tile)]), v(3 + slot // 3),
                              mods=f"offset:{(slot % 3) * STAGE + r * 4096 + tile * 1024}")

    hh_store_tok = {}

    def epi_items(c):
        L = []
        st = c
        for tile in range(4):
            L.append(lambda tile=tile: k.I("ds_read_b128", r4(CS[tile]), v(6), mods=f"offset:{c * 256 + tile * 64}"))
        for tt in range(2):
            g = [ACC[(st, e // 4, tt)][1] + e % 4 for e in range(8)]
            u = [ACC[(st, 2 + e // 4, tt)][1] + e % 4 for e in range(8)]
            cg = [CS[e // 4][1] + e % 4 for e in range(8)]
            cu = [CS[2 + e // 4][1] + e % 4 for e in range(8)]
            for e in range(8):
                L.append(lambda e=e, g=g, tt=tt: k.I("v_mul_f32", v(g[e]), v(10 + tt), v(g[e])))
            for e in range(8):
                L.append(lambda e=e, g=g, cg=cg, tt=tt: k.I("v_fmac_f32", v(g[e]), v(12 + tt), v(cg[e])))
            for e in range(8):
                L.append(lambda e=e, g=g: k.I("v_exp_f32", v(g[e]), v(g[e])))
                L.append(lambda e=e, u=u, cu=cu, tt=tt: k.I("v_fmac_f32", v(u[e]), v(8 + tt), v(cu[e])))
            for e in range(8):
                L.append(lambda e=e, g=g: k.I("v_add_f32", v(g[e]), 1.0, v(g[e])))
            for e in range(8):
                L.append(lambda e=e, g=g: k.I("v_rcp_f32", v(g[e]), v(g[e])))
            for e in range(8):
                L.append(lambda e=e, g=g, u=u: k.I("v_mul_f32", v(u[e]), v(g[e]), v(u[e])))
            for i in range(4):
                L.append(lambda i=i, u=u, tt=tt: k.I("v_cvt_pk_bf16_f32", v(16 + 4 * tt + i), v(u[2 * i]), v(u[2 * i + 1])))

            def stf(tt=tt):
                if c % 4 == 0 and c and tt == 0:
                    k.I("s_add_u32", s(28), s(28), 4096)
                tk = k.I("buffer_store_dwordx4", v(16 + 4 * tt, 4), v(3 if tt == 0 else 14), s(8, 4), s(28),
                         mods=f"offen offset:{(c % 4) * 1024} {SC}")
                if tt == 1:
                    hh_store_tok[c] = tk
            L.append(stf)

        def rel():
            for tile in range(4):
                for tt in range(2):
                    P.put(ACC.pop((c, tile, tt)))
        L.append(rel)
        return L

    def flag_store(tokfn, sreg, val):
        def f():
            k.wait_vm(tokfn())
            k.I("v_mov_b32", v(25), val)
            k.I("buffer_store_dword", v(25), v(15), s(8, 4), s(sreg), mods=f"offen {SC}")
        return f

    npoll = [0]

    def poll_issue(sreg, dst):
        return k.I("buffer_load_dwordx4", r4(dst), v(15), s(8, 4), s(sreg), mods=f"offen {SC}")

    def poll_check(sreg, dst, level, skip_reg=None):
        npoll[0] += 1
        n = npoll[0]
        b = dst[1]

        def test():
            if skip_reg is not None:
                for i in range(4):
                    k.I("s_cmp_eq_u32", s(skip_reg), i)
                    k.I("s_cselect_b32", s(59), level, 0)
                    k.I("v_max_u32", v(b + i), s(59), v(b + i))
            k.I("v_min_u32", v(b), v(b), v(b + 1))
            k.I("v_min_u32", v(b + 2), v(b + 2), v(b + 3))
            k.I("v_min_u32", v(b), v(b), v(b + 2))
            k.I("v_readfirstlane_b32", s(59), v(b))
            k.I("s_cmp_ge_u32", s(59), level)
        test()
        k.I("s_cbranch_scc1", f"KCD_PD{n}")
        k.I("s_mov_b32", s(60), 20000)
        k.label(f"KCD_PL{n}")
        save = (list(k.vmq), list(k.dsq))
        k.I("s_sub_u32", s(60), s(60), 1)
        k.I("s_cmp_eq_u32", s(60), 0)
        k.I("s_cbranch_scc1", f"KCD_PD{n}")
        k.I("s_sleep", 1)
        poll_issue(sreg, dst)
        k.wait(vm=0)
        test()
        k.I("s_cbranch_scc0", f"KCD_PL{n}")
        k.vmq, k.dsq = save
        k.label(f"KCD_PD{n}")

    WD = {}
    HH = {}

    def wd_load(i, r):
        def f():
            WD[(i, r)] = P.get()
            k.I("s_add_u32", s(59), s(32), i * 36864 + (r // 4) * 4096)
            k.I("buffer_load_dwordx4", r4(WD[(i, r)]), v(3), s(8, 4), s(59), mods=f"offen offset:{(r % 4) * 1024} {SCI}")
        return f

    def hh_load(p, i, tt):
        def f():
            HH[(p, i, tt)] = P.get()
            if i >= 4:
                k.I("s_add_u32", s(59), s(36 + p), (i // 4) * 4096)
            k.I("buffer_load_dwordx4", r4(HH[(p, i, tt)]), v(3 if tt == 0 else 14), s(8, 4), s(59) if i >= 4 else s(36 + p),
                mods=f"offen offset:{(i % 4) * 1024} {SC}")
        return f

    def sync(st):
        k.wait_vm(dma_tok[st])
        k.I("s_barrier")

    staged = [(5, r) for r in range(9)] + [(6, r) for r in range(9)] + [(7, 0)]
    staged.sort(key=lambda x: (x[1], x[0]))
    stg_tok = {}

    def wd_stage(n):
        i, r = staged[n]

        def f():
            k.I("s_add_u32", "m0", s(61), n * 1024)
            k.I("s_add_u32", s(59), s(32), i * 36864 + r * 1024)
            stg_tok[n] = k.I("buffer_load_dwordx4", v(3), s(8, 4), s(59), mods=f"offen {SCI} lds")
        return f

    def wd_unstage(n):
        def f():
            WD[staged[n]] = P.get()
            k.wait_vm(stg_tok[n])
            k.I("ds_read_b128", r4(WD[staged[n]]), v(5), mods=f"offset:{n * 1024}")
        return f

    seq = [(c, kb) for kb in range(18) for c in range(4)] + [(c, kb) for c in range(4, 9) for kb in range(18)]
    NU = len(seq)
    vq = deque()
    sync(0)
    ST.stamp()
    for q in range(2):
        for tile in range(4):
            w_read(q, tile)
    vq += dma_items(3) + x_items(3, 4)
    pollreg = None
    lateq = deque()
    side = deque()
    wdq = deque()
    pace = 1.0
    credit = 0.0
    allw = deque([wd_load(i, r) for r in range(9) for i in range(5)])
    for q, (c, kb) in enumerate(seq):
        if q == 24:
            vq += stat_loads(tS, 23) + cs_loads()
        if q == 48:
            side += startup_math()
            pace = 1.0
        if q >= 72 and kb == 0:
            if "stC" in dbg:
                ST2.stamp()
            while side:
                it = side.popleft()
                if it is not None:
                    it()
            for tile in range(4):
                for tt in range(2):
                    ACC[(c, tile, tt)] = P.get("v")
            drain = {4: [0, 1], 5: [2, 3], 6: [4, 5], 7: [6], 8: [7]}[c]
            first_gap = True
            for d in drain:
                side += epi_items(d)
            pace = len(side) / (130.0 if len(drain) > 1 else 90.0)
            if c == 4:
                wdq += [wd_stage(n) for n in range(NSTG)]
        un = q + 2
        for m in range(8):
            tile, tt = divmod(m, 2)
            if m == 0:
                k.wait_ds(wtok[(q, 3)])
            ac = r4(ACC[(c, tile, tt)])
            k.I(MF, ac, r4(WF[(q % 3, tile)]), r4(X[(tt, kb)]), ac if kb else 0)
            nf = 0
            if un < NU and m % 2 == 0:
                if m == 0 and un % 4 == 0:
                    stn = un // 4
                    if stn == 17:
                        while side:
                            side.popleft()()
                        k.wait(lg=0)
                    sync(stn)
                    if stn + RING - 2 < NSTAGE:
                        vq += dma_items(stn + RING - 2)
                        if stn + RING - 2 < 18:
                            vq += x_items(stn + RING - 2, stn + RING - 1)
                w_read(un, m // 2)
                nf += 1
            elif vq:
                vq.popleft()()
                nf += 1
            elif wdq and m == 3:
                wdq.popleft()()
                nf += 1
            elif allw and q >= 72 and m == 5 and P.n() > (17 if c < 6 else 9):
                allw.popleft()()
                nf += 1
            elif lateq and P.n() > 0:
                lateq.popleft()()
                nf += 1
            credit += pace
            if q >= 72 and kb == 0 and m < 3:
                credit = 0.0
            while side and credit >= 1.0 and nf < 3:
                side.popleft()()
                credit -= 1.0
                nf += 1
            if not side:
                credit = 0.0
        if c == NA and kb == 16:
            assert not side
            flag_store(lambda: hh_store_tok[NA - 1], 44, 1)()
        if c == 8:
            for tt in range(2):
                P.put(X[(tt, kb)])
            if kb == 0:
                assert not allw and not wdq, (len(allw), len(wdq))
                pollreg = P.get("v")
                lateq += [wd_unstage(n) for n in range(6)]
            if kb == 6:
                poll_issue(40, pollreg)
            if kb == 8:
                poll_check(40, pollreg, 1)
                lateq.extendleft(reversed([hh_load(0, i, tt) for i in range(NA) for tt in range(2)]))
                lateq += [wd_unstage(n) for n in range(6, NSTG)]
    while side:
        side.popleft()()
    ST.stamp()
    for g in WF.values():
        P.put(g)
    while lateq:
        lateq.popleft()()

    k.I("v_mul_u32_u24", v(4), 18432, v(1))
    k.I("v_add_u32", v(4), v(4), v(3))
    k.I("v_add_u32", v(5), BUF, v(4))
    k.I("v_lshl_add_u32", v(26), v(1), 10, v(3))
    k.I("v_and_b32", v(27), 1, v(1))
    k.I("v_lshl_add_u32", v(27), v(27), 10, v(3))
    k.I("v_add_u32", v(27), 16384, v(27))
    lateq += [hh_load(1, i, tt) for i in range(NA) for tt in range(2)]
    lateq += [wd_load(i, r) for r in range(9) for i in range(NA, 9) if (i, r) not in staged]
    lateq += [hh_load(2, i, tt) for i in range(NA) for tt in range(2)]

    side = deque(epi_items(8))

    def rel_c():
        for g in CS:
            P.put(g)
    side.append(rel_c)

    red_tok = {}
    red_done = {}

    def reduce_items(p):
        L = []
        buf = (p % 2) * BUF
        T = [("v", 16), ("v", 20)]
        extra = []

        def start():
            extra.append(P.get("v"))
            extra.append(P.get("v"))
        L.append(start)
        for n in range(5):
            def rd(n=n):
                regs = T + extra
                k.I("v_add_u32", v(24), buf + (n * 4096 if n < 4 else 0), v(26 if n < 4 else 27))
                for w2 in range(4):
                    k.I("ds_read_b128", r4(regs[w2]), v(24), mods=f"offset:{w2 * 18432}")
            L.append(rd)
            L.append(None)
            for (x, y) in ((0, 1), (2, 3), (0, 2)):
                for i in range(4):
                    L.append(lambda x=x, y=y, i=i: k.I("v_add_f32", v((T + extra)[x][1] + i), v((T + extra)[x][1] + i), v((T + extra)[y][1] + i)))

            def stf(n=n):
                if n < 4 and n:
                    k.I("s_add_u32", s(59), s(45 + p), n * 4096)
                red_tok[p] = k.I("buffer_store_dwordx4", r4(T[0]), v(26 if n < 4 else 27), s(8, 4),
                                 s(59) if 0 < n < 4 else s(45 + p), mods=f"offen {SC}")
            L.append(stf)

        def fin():
            P.put(extra[0])
            P.put(extra[1])
            red_done[p] = red_tok[p]
        L.append(fin)
        return L

    passes = [(0, list(range(NA)), True), (1, list(range(NA)), True), (0, list(range(NA, 9)), False),
              (1, list(range(NA, 9)), False), (2, list(range(9)), True), (3, list(range(9)), True)]
    pend_w = deque()
    events = {}

    def at(pi, mi, fn):
        events.setdefault((pi, mi), []).append(fn)

    def barrier():
        k.wait(lg=0)
        k.I("s_barrier")

    at(0, 2, barrier)
    at(0, 90, flag_store(lambda: hh_store_tok[8], 44, 2))
    nA = 18 * NA
    at(1, nA - 60, lambda: poll_issue(40, pollreg))

    def lvl2():
        poll_check(40, pollreg, 2)
        P.put(pollreg)
        lateq.extendleft(reversed([hh_load(p, i, tt) for p in range(2) for i in range(NA, 9) for tt in range(2)]))
        lateq.extend([hh_load(2, i, tt) for i in range(NA, 9) for tt in range(2)])
        lateq.extend([hh_load(3, i, tt) for i in range(9) for tt in range(2)])
    at(1, nA - 36, lvl2)

    def b_red(p):
        def f():
            while side:
                it = side.popleft()
                if it is not None:
                    it()
            barrier()
            side.extend(reduce_items(p))
        return f
    at(3, 4, b_red(0))
    at(4, 4, b_red(1))
    at(4, 30, flag_store(lambda: red_done[0], 48, 1))
    at(4, 130, flag_store(lambda: red_done[1], 49, 1))
    at(5, 4, b_red(2))
    at(5, 90, flag_store(lambda: red_done[2], 50, 1))

    fin = {}

    def fin_setup():
        k.I("s_lshl_b32", s(53), s(21), 3)
        k.I("s_lshl_b32", s(54), s(16), 1)
        k.I("s_add_u32", s(53), s(53), s(54))
        k.I("s_and_b32", s(54), s(3), 1)
        k.I("s_add_u32", s(53), s(53), s(54))
        k.I("s_lshl_b32", s(23), s(53), 10)
        k.I("s_add_u32", s(23), s(23), hex(WS_ST))
        fin["st"] = [P.get("v") for _ in range(4)]
        for f in stat_loads(fin["st"], 23, 1):
            f()
        k.I("s_mul_i32", s(54), s(53), 72 * 256)
        k.I("s_mul_i32", s(55), s(17), 18 * 256)
        k.I("s_add_u32", s(54), s(54), s(55))
        k.I("s_add_u32", s(54), s(54), hex(WS_H))
        k.I("s_lshr_b32", s(56), s(3), 1)
        k.I("s_lshl_b32", s(55), s(56), 9)
        k.I("s_add_u32", s(55), s(55), s(54))
        k.I("s_add_u32", s(54), s(54), 4096)
        k.I("v_and_b32", v(8), 15, v(2))
        k.I("v_lshlrev_b32", v(9), 4, v(8))
        k.I("v_lshrrev_b32", v(10), 5, v(2))
        k.I("v_lshl_add_u32", v(9), v(10), 8, v(9))
        k.I("v_bfe_u32", v(10), v(2), 4, 1)
        k.I("v_lshl_add_u32", v(9), v(10), 3, v(9))
        fin["res"] = [P.get("v") for _ in range(3)]
        for n in range(5):
            g = fin["res"][n // 2]
            k.I("buffer_load_dwordx2", v(g[1] + 2 * (n % 2), 2), v(9), s(8, 4), s(55) if n < 4 else s(54),
                mods=f"offen offset:{n * 1024 if n < 4 else 0} {SCI}")
        k.I("v_mul_u32_u24", v(9), 1152, v(8))
        k.I("v_lshrrev_b32", v(10), 4, v(2))
        k.I("v_lshl_add_u32", v(9), v(10), 3, v(9))
        k.I("s_mul_i32", s(53), s(53), 16 * 1152)
        k.I("s_mul_i32", s(54), s(17), 288)
        k.I("s_add_u32", s(53), s(53), s(54))
        k.I("s_lshl_b32", s(54), s(56), 5)
        k.I("s_add_u32", s(54), s(54), s(53))
        fin["poll"] = P.get("v")
    at(5, 40, fin_setup)
    at(5, 100, lambda: side.extend(stat_math(fin["st"], None, 11)))
    at(5, 120, lambda: poll_issue(52, fin["poll"]))

    def fin_loads():
        poll_check(52, fin["poll"], 1, skip_reg=16)
        fin["rp"] = {}
        for d in range(1, 4):
            k.I("s_add_u32", s(57), s(16), d)
            k.I("s_and_b32", s(57), s(57), 3)
            k.I("s_mul_i32", s(57), s(57), 18432)
            k.I("s_add_u32", s(57), s(57), s(51))
            for n in range(5):
                g = P.get("v")
                fin["rp"][(d, n)] = g
                if 0 < n < 4:
                    k.I("s_add_u32", s(58), s(57), n * 4096)
                k.I("buffer_load_dwordx4", r4(g), v(26 if n < 4 else 27), s(8, 4), s(58) if 0 < n < 4 else s(57), mods=f"offen {SC}")

    for pi, (p, il, first) in enumerate(passes):
        wbase = 4 + p % 2
        accs = {}
        if "stD" in dbg:
            ST2.stamp()

        def acc_get(r):
            accs[r] = [P.get(), P.get()]
            if not first:
                for tt in range(2):
                    k.I("ds_read_b128", r4(accs[r][tt]), v(wbase), mods=f"offset:{(2 * r + tt) * 1024}")
        ahead = 1 if first else 4
        for r in range(ahead):
            acc_get(r)
        mi = 0
        for r in range(9):
            for n_i, i in enumerate(il):
                for tt in range(2):
                    while (i, r) not in WD or (p, i, tt) not in HH:
                        lateq.popleft()()
                    ac = r4(accs[r][tt])
                    k.I(MF, ac, r4(WD[(i, r)]), r4(HH[(p, i, tt)]), 0 if (first and n_i == 0) else ac)
                    nf = 0
                    for fn in events.pop((pi, mi), []):
                        fn()
                        nf += 1
                    if pend_w and pend_w[0][0] <= 0:
                        pend_w.popleft()[1]()
                        nf += 1
                    pend_w = deque((cd - 1, fn) for cd, fn in pend_w)
                    if lateq and P.n() > 6 and nf < 2 and mi % 2 == 1:
                        lateq.popleft()()
                        nf += 1
                    while side and nf < 2:
                        it = side.popleft()
                        if it is None:
                            break
                        it()
                        nf += 1
                    if r == 8:
                        P.put(HH.pop((p, i, tt)))
                    if pi == 5 and tt == 1:
                        P.put(WD.pop((i, r)))
                    mi += 1
            for tt in range(2):
                def wr(r=r, tt=tt, g=accs[r][tt], wbase=wbase):
                    k.I("ds_write_b128", v(wbase), r4(g), mods=f"offset:{(2 * r + tt) * 1024}")
                    P.put(g)
                pend_w.append((1 + tt, wr))
            if r + ahead < 9:
                acc_get(r + ahead)
        if pi == 1 or pi == 2:
            pass
    assert not events, events.keys()
    ST.stamp()
    if "stD" in dbg:
        ST2.stamp()
    while pend_w:
        pend_w.popleft()[1]()
    while side:
        it = side.popleft()
        if it is not None:
            it()
    fin_loads()
    if "stD" in dbg:
        ST2.stamp()
    barrier()
    ST.stamp()
    for n in range(5):
        regs = [P.get("v") for _ in range(4)]
        k.I("v_add_u32", v(24), BUF + (n * 4096 if n < 4 else 0), v(26 if n < 4 else 27))
        for w2 in range(4):
            k.I("ds_read_b128", r4(regs[w2]), v(24), mods=f"offset:{w2 * 18432}")
        fin[("own", n)] = regs
    for n in range(5):
        b = [g[1] for g in fin[("own", n)]]
        rp = [fin["rp"][(d, n)][1] for d in range(1, 4)]
        for i in range(4):
            k.I("v_add_f32", v(b[0] + i), v(b[0] + i), v(b[1] + i))
            k.I("v_add_f32", v(b[2] + i), v(b[2] + i), v(b[3] + i))
            k.I("v_add_f32", v(rp[0] + i), v(rp[0] + i), v(rp[1] + i))
        for i in range(4):
            k.I("v_add_f32", v(b[0] + i), v(b[0] + i), v(b[2] + i))
            k.I("v_add_f32", v(rp[0] + i), v(rp[0] + i), v(rp[2] + i))
        for i in range(4):
            k.I("v_add_f32", v(b[0] + i), v(b[0] + i), v(rp[0] + i))
        rs = fin["res"][n // 2][1] + 2 * (n % 2)
        for i in range(2):
            k.I("v_lshlrev_b32", v(b[1] + 2 * i), 16, v(rs + i))
            k.I("v_and_b32", v(b[1] + 2 * i + 1), "0xffff0000", v(rs + i))
        for i in range(4):
            k.I("v_fma_f32", v(b[0] + i), v(b[0] + i), v(11), v(b[1] + i))
        k.I("v_cvt_pk_bf16_f32", v(b[2]), v(b[0]), v(b[0] + 1))
        k.I("v_cvt_pk_bf16_f32", v(b[2] + 1), v(b[0] + 2), v(b[0] + 3))
        k.I("buffer_store_dwordx2", v(b[2], 2), v(9), s(12, 4), s(54) if n < 4 else s(53),
            mods=f"offen offset:{n * 64 if n < 4 else 256}")
    ST.stamp()
    ST.dump(8, 16, 2)
    if "stD" in dbg:
        ST2.stamp()
    ST2.dump(8, 16, 2)
```

```python
from common import *
import k_ab3, k_cd
from k_ab3 import S_WS


def build_f(dbg=""):
    name = NAME + "_kernel"
    k = Kern(name)
    ST = Stamps(k, 64, "stamp" in dbg)
    k.I("s_cmp_ge_u32", s(2), 256)
    k.I("s_cbranch_scc1", "KF_END")
    ST.stamp()
    k.I("s_getpc_b64", s(36, 2))
    k.label("KF_PC")
    k.I("s_lshr_b32", s(38), s(2), 3)
    k.I("s_lshl_b32", s(38), s(38), 12)
    k.I("v_lshlrev_b32", v(4), 4, v(0))
    k.I("v_add_u32", v(4), s(38), v(4))
    k.raw("    v_min_u32 v4, KF_END-KF_PC-16, v4")
    if "nocode" not in dbg:
        k.I("global_load_dwordx4", v(196, 4), v(4), s(36, 2))
    STa = ST if "stA" in dbg else Stamps(k, 64, False)

    def zero_flags():
        k.I("v_lshlrev_b32", v(8), 2, v(2))
        k.I("s_lshl_b32", s(22), s(2), 7)
        k.I("s_add_u32", s(22), s(22), hex(WS_F1))
        k.I("s_add_u32", s(23), s(22), hex(WS_F2 - WS_F1))
        k.I("v_min_u32", v(8), 124, v(8))
        k.I("buffer_store_dword", v(3), v(8), s(S_WS, 4), s(22), mods="offen sc1")
        k.I("buffer_store_dword", v(3), v(8), s(S_WS, 4), s(23), mods="offen sc1")
    k_ab3.emit_ab(k, "KAB", STa, dbg, sc="sc1", early=zero_flags)
    k.wait(vm=0)
    k.I("s_barrier")
    k.I("s_cmp_lg_u32", s(3), 0)
    k.I("s_cbranch_scc1", "KF_NH")
    k.I("s_lshl_b32", s(22), s(20), 6)
    k.I("s_lshl_b32", s(23), s(21), 3)
    k.I("s_add_u32", s(22), s(22), s(23))
    k.I("s_add_u32", s(22), s(22), hex(WS_FH))
    k.I("buffer_store_dwordx2", v(248, 2), v(3), s(S_WS, 4), s(22), mods="offen sc1")
    k.vmq.pop()
    k.label("KF_NH")
    if "stA" in dbg:
        ST.dump(8, 100, 3)
        STc = Stamps(k, 64, False)
    else:
        ST.stamp()
        STc = ST
    k_cd.emit_cd(k, STc, dbg, 7, True)
    k.label("KF_END")
    k.I("s_endpgm")
    return k, "grid=(256,1,1) block=(256,1,1) lds=%d" % k_cd.LDS_TOTAL
```

```python
import sys, os
sys.path.insert(0, os.path.dirname(__file__))
from common import *

HEADER = """; Kernarg layout (80 bytes, ptrs only, base s[0:1]):
"""

def build(kernels, path, reverse_code=False, plain=False):
    launches, codes, descs = [], [], []
    for k, geo in kernels:
        c, d = kernel_text(k)
        launches.append(f"; @launch kernel={k.name} {geo}")
        codes.append(c); descs.append(d)
    if reverse_code:
        codes = codes[::-1]
    if len(kernels) == 1 and kernels[0][0].name == NAME + "_kernel" and plain:
        launches = [f"; @launch {kernels[0][1]}"]
    txt = HEADER + "\n".join(launches) + "\n"
    txt += '.amdgcn_target "amdgcn-amd-amdhsa--gfx950"\n.text\n'
    txt += "\n".join(codes)
    txt += '.section .rodata,"a"\n' + "\n".join(descs)
    open(path, "w").write(txt)
    return txt

if __name__ == "__main__":
    import k_f2 as k_f
    dbg = sys.argv[2] if len(sys.argv) > 2 else ""
    out = sys.argv[1] if len(sys.argv) > 1 else f"cdna_kernels/{NAME}.s"
    build([k_f.build_f(dbg)], out, plain=len(sys.argv) <= 1)
    print("wrote", out)
```

```python
from common import *
from k_frag import f32bits
import k_prep
from k_prep import PrepRegs
from k_a2 import reduce_groups

MF = "v_mfma_f32_16x16x32_bf16"
XB = 10240
WBLK = 3616
STG = XB + 29 * 1024
L_PREP = 122880
PQ = 440
L_WO = 0
L_QKV = 83968
L_ST = 119808
L_CS = 120576
LDS_TOTAL = 162048
LOG2E = 1.4426950408889634
NEG = -1e30
BC, B0, QM, ONES, AQ, AV, AKP, AVP, AO = 216, 224, 228, 236, 240, 241, 242, 243, 244
PVB = 160
S_WS, S_X, S_QKV, S_WO, S_DBG, S_WG, S_WU, S_WD = 8, 12, 16, 44, 48, 52, 56, 60


def att_setup(k):
    k.I("v_and_b32", v(14), 15, v(2))
    k.I("v_lshrrev_b32", v(15), 4, v(2))
    k.I("v_mul_u32_u24", v(AQ), PQ, v(14))
    k.I("v_lshl_add_u32", v(AQ), v(15), 4, v(AQ))
    k.I("v_lshrrev_b32", v(AV), 2, v(2))
    k.I("v_mul_u32_u24", v(AV), PQ, v(AV))
    k.I("v_and_b32", v(16), 3, v(2))
    k.I("v_lshl_add_u32", v(AV), v(16), 3, v(AV))
    k.I("s_mul_i32", s(23), s(3), s(27))
    k.I("s_mul_i32", s(23), s(23), 16 * PQ)
    k.I("s_add_u32", s(23), s(23), L_QKV)
    k.I("s_add_u32", s(22), s(3), 1)
    k.I("s_mul_i32", s(22), s(22), 16 * PQ)
    k.I("s_add_u32", s(22), s(22), L_QKV)
    k.I("v_add_u32", v(AKP), s(23), v(AQ))
    k.I("v_add_u32", v(AVP), s(23), v(AV))
    k.I("v_add_u32", v(AQ), s(22), v(AQ))
    k.I("v_add_u32", v(AV), s(22), v(AV))
    k.I("v_mov_b32", v(16), hex(f32bits(NEG)))
    k.I("v_lshlrev_b32", v(17), 2, v(15))
    k.I("v_sub_u32", v(17), v(14), v(17))
    k.I("s_cmp_eq_u32", s(3), 0)
    k.I("s_cselect_b32", s(22), 8, 0)
    k.I("s_cselect_b32", s(23), 8, 16)
    k.I("s_or_b32", s(38), s(20), s(27))
    k.I("s_cmp_eq_u32", s(38), 0)
    k.I("s_cselect_b32", s(23), 0, s(23))
    for r in range(4):
        k.I("v_subrev_u32", v(246), r, v(17))
        k.I("v_cmp_gt_u32", "vcc", 8, v(246))
        k.I("v_cndmask_b32", v(BC + r), v(16), 0, "vcc")
        k.I("v_subrev_u32", v(247), s(22), v(246))
        k.I("v_cmp_gt_i32", "vcc", -8, v(247))
        k.I("v_lshl_add_u32", v(247), v(15), 2, r)
        k.I("v_cmp_gt_u32", s(40, 2), s(23), v(247))
        k.I("s_and_b64", "vcc", "vcc", s(40, 2))
        k.I("v_cndmask_b32", v(B0 + r), v(16), 0, "vcc")
        k.I("v_cmp_gt_u32", "vcc", 9, v(247))
        k.I("v_cndmask_b32", v(QM + r), 0, -1, "vcc")
        k.I("v_subrev_u32", v(247), 1, v(247))
        k.I("v_cmp_gt_u32", "vcc", 9, v(247))
        k.I("v_cndmask_b32", v(QM + 4 + r), 0, -1, "vcc")
        k.I("v_mov_b32", v(ONES + r), "0x3f803f80")
    k.I("v_lshlrev_b32", v(246), 1, v(14))
    k.I("v_add_u32", v(246), s(28), v(246))
    k.I("v_lshrrev_b32", v(247), 4, v(246))
    k.I("v_mul_u32_u24", v(247), 2304, v(247))
    k.I("v_and_b32", v(246), 15, v(246))
    k.I("v_lshl_add_u32", v(247), v(246), 4, v(247))
    k.I("s_mul_i32", s(22), s(27), 4608)
    k.I("s_add_u32", s(22), s(22), L_PREP)
    k.I("v_add_u32", v(247), s(22), v(247))
    k.I("v_lshrrev_b32", v(246), 1, v(15))
    k.I("v_lshl_add_u32", v(AO), v(246), 8, v(247))
    k.I("v_and_b32", v(246), 1, v(15))
    k.I("v_lshl_add_u32", v(AO), v(246), 3, v(AO))
    k.I("v_add_u32", v(16), 1, v(15))
    k.I("v_lshrrev_b32", v(246), 1, v(16))
    k.I("v_lshl_add_u32", v(AO + 1), v(246), 8, v(247))
    k.I("v_and_b32", v(246), 1, v(16))
    k.I("v_lshl_add_u32", v(AO + 1), v(246), 3, v(AO + 1))


class Prep:
    NSL = 6

    def __init__(self, k, U, sc):
        self.k, self.U, self.sc = k, U, sc
        self.tok = {}

    def decode(self):
        k = self.k
        k.I("s_lshl_b32", s(42), s(2), 2)
        k.I("s_add_u32", s(42), s(42), s(3))
        k.I("s_mul_i32", s(7), s(3), self.NSL * 1024)
        k.I("s_add_u32", s(7), s(7), L_PREP)
        k.I("v_lshrrev_b32", v(168), 3, v(2))
        k.I("v_and_b32", v(169), 7, v(2))
        k.I("v_lshrrev_b32", v(170), 4, v(2))
        k.I("v_bfe_u32", v(171), v(2), 2, 2)
        k.I("v_and_b32", v(172), 3, v(2))
        k.I("v_and_b32", v(173), 15, v(2))
        k.I("v_lshlrev_b32", v(161), 7, v(171))
        k.I("v_add_u32", v(161), s(7), v(161))
        k.I("v_mov_b32", v(164), 0)
        k.I("v_mov_b32", v(165), 0)
        k.I("v_mov_b32", v(166), "0x3f803f80")
        k.I("s_cmp_ge_u32", s(42), 648)
        k.I("s_cbranch_scc1", f"{self.U}_PW")
        k.I("s_mov_b32", s(4), 1)
        k.I("s_mul_i32", s(43), s(42), 911)
        k.I("s_lshr_b32", s(43), s(43), 16)
        k.I("s_mul_i32", s(5), s(43), 72)
        k.I("s_sub_u32", s(42), s(42), s(5))
        k.I("s_mul_i32", s(5), s(43), 64 * 9216)
        k.I("s_lshl_b32", s(6), s(42), 7)
        k.I("s_add_u32", s(5), s(5), s(6))
        k.I("s_mul_i32", s(6), s(42), 147456)
        k.I("s_lshl_b32", s(41), s(43), 13)
        k.I("s_add_u32", s(6), s(6), s(41))
        k.I("s_add_u32", s(6), s(6), hex(WS_WGU))
        k.I("s_mul_i32", s(43), s(43), 36864)
        k.I("s_lshl_b32", s(42), s(42), 9)
        k.I("s_add_u32", s(43), s(43), s(42))
        k.I("s_add_u32", s(43), s(43), hex(WS_CS))
        k.I("v_mov_b32", v(163), s(43))
        k.I("v_mul_u32_u24", v(160), 9216, v(168))
        k.I("v_lshrrev_b32", v(174), 1, v(170))
        k.I("v_and_b32", v(175), 1, v(170))
        k.I("v_lshl_add_u32", v(161), v(174), 6, v(161))
        k.I("v_lshl_add_u32", v(161), v(172), 4, v(161))
        k.I("v_lshl_add_u32", v(161), v(175), 3, v(161))
        k.I("v_mul_u32_u24", v(162), 73728, v(174))
        k.I("v_lshl_add_u32", v(162), v(175), 10, v(162))
        k.I("v_lshl_add_u32", v(163), v(174), 8, v(163))
        k.I("v_lshl_add_u32", v(163), v(175), 6, v(163))
        k.I("v_lshl_add_u32", v(163), v(173), 2, v(163))
        k.I("s_branch", f"{self.U}_PD")
        k.label(f"{self.U}_PW")
        k.I("s_mov_b32", s(4), 0)
        k.I("s_sub_u32", s(42), s(42), 648)
        k.I("s_mul_i32", s(43), s(42), 7282)
        k.I("s_lshr_b32", s(43), s(43), 16)
        k.I("s_mul_i32", s(5), s(43), 9)
        k.I("s_sub_u32", s(41), s(42), s(5))
        k.I("s_cmp_ge_u32", s(42), 324)
        k.I("s_cselect_b32", s(43), "0x1000", s(43))
        k.I("s_mul_i32", s(5), s(43), 16 * 9216)
        k.I("s_lshl_b32", s(6), s(41), 7)
        k.I("s_add_u32", s(5), s(5), s(6))
        k.I("s_mul_i32", s(6), s(43), 4 * 36864)
        k.I("s_lshl_b32", s(41), s(41), 12)
        k.I("s_add_u32", s(6), s(6), s(41))
        k.I("s_add_u32", s(6), s(6), hex(WS_WD))
        k.I("v_mov_b32", v(163), "0x7fffff00")
        k.I("v_mul_u32_u24", v(160), 1152, v(168))
        k.I("v_lshl_add_u32", v(161), v(170), 5, v(161))
        k.I("v_lshl_add_u32", v(161), v(172), 3, v(161))
        k.I("v_lshlrev_b32", v(162), 10, v(170))
        for sr in (S_WG, S_WU):
            k.I("s_mov_b32", s(sr), s(S_WD))
            k.I("s_mov_b32", s(sr + 1), s(S_WD + 1))
        k.label(f"{self.U}_PD")
        k.I("v_lshl_add_u32", v(160), v(169), 4, v(160))
        k.I("v_lshl_add_u32", v(162), v(173), 4, v(162))

    def _off(self, base, cg, cw):
        k = self.k
        k.I("s_mul_i32", s(42), s(4), cg - cw)
        k.I("s_add_u32", s(42), s(42), s(base))
        if cw:
            k.I("s_add_u32", s(42), s(42), cw)

    def load(self, t):
        def f():
            k = self.k
            self._off(5, (t // 2) * 73728, t * 9216)
            k.I("s_add_u32", "m0", s(7), (t % self.NSL) * 1024)
            if "pnold" in self.dbg:
                self.tok[t] = None
                return
            self.tok[t] = k.I("buffer_load_dwordx4", v(160), s(S_WG if t % 2 == 0 else S_WU, 4), s(42),
                              mods="offen nt lds")
        return f

    def read(self, t):
        def f():
            k = self.k
            k.wait_vm(self.tok[t])
            d = 168 + 4 * (t % 4)
            for h in range(2):
                k.I("ds_read_b64_tr_b16", v(d + 2 * h, 2), v(161), mods=f"offset:{(t % self.NSL) * 1024 + h * 512}")
        return f

    def store(self, t):
        def f():
            k = self.k
            d = 168 + 4 * (t % 4)
            self._off(6, (t // 8) * 4096 + (t % 2) * 2048 + ((t // 2) % 4) * 256, (t // 4) * 36864 + (t % 4) * 256)
            if "pnost" not in self.dbg:
                k.I("buffer_store_dwordx4", v(d, 4), v(162), s(S_WS, 4), s(42), mods=f"offen {self.sc}" + (" nt" if "snt" in self.dbg else ""))
            for j in range(4):
                k.I("v_dot2c_f32_bf16", v(164 + t % 2), v(d + j), v(166))
        return f

    def finish(self):
        k = self.k
        for m in range(2):
            k.I("buffer_store_dword", v(164 + m), v(163), s(S_WS, 4), 0, mods=f"offen offset:{m * 128} {self.sc}")


def gemm(k, U, cls, ST, prep, wo_items, touch_items, wofrag, dbg, LS):
    VX, VW = 4, 6
    L = f"{U}_G{cls}"
    xt = [0, 1, 2] if cls == 0 else [3, 4]
    tconst = lambda t: 32 * ((t - 1) & 1) + ((t - 1) >> 1)
    nW = 7 if cls == 0 else 8
    tok = {}

    def wvoff(n):
        k.I("v_add_u32", v(14), 128 * n, v(18))
        if n == 7:
            k.I("v_add_u32", v(15), 28 * 64, v(2))
            k.I("v_min_u32", v(14), v(14), v(15))
            k.I("v_min_u32", v(14), 1807, v(14))
        k.I("v_mul_u32_u24", v(15), 18559, v(14))
        k.I("v_lshrrev_b32", v(15), 22, v(15))
        k.I("v_mul_u32_u24", v(16), 226, v(15))
        k.I("v_sub_u32", v(14), v(14), v(16))
        k.I("v_mul_u32_u24", v(16), 2341, v(14))
        k.I("v_lshrrev_b32", v(16), 16, v(16))
        k.I("v_min_u32", v(16), 7, v(16))
        k.I("v_lshl_add_u32", v(15), v(15), 3, v(16))
        k.I("v_mul_u32_u24", v(16), 28, v(16))
        k.I("v_sub_u32", v(14), v(14), v(16))
        k.I("v_min_u32", v(14), 26, v(14))
        k.I("v_mul_u32_u24", v(16), 57, v(14))
        k.I("v_lshrrev_b32", v(16), 9, v(16))
        k.I("v_mul_u32_u24", v(15), 3456, v(15))
        k.I("v_lshl_add_u32", v(15), v(14), 4, v(15))
        k.I("v_mul_u32_u24", v(16), 1152 - 144, v(16))
        k.I("v_add_u32", v(VW + n), v(15), v(16))

    def dma_items(st):
        base = (st % 3) * STG
        I = []
        for t in xt:
            def f(t=t):
                k.I("s_add_u32", "m0", s(37), base + t * 2048)
                k.I("s_add_u32", s(38), s(34), (tconst(t) * 1152 if t else 0))
                k.I("buffer_load_dwordx4", v(VX + (t == 0)), s(S_X, 4), s(38), mods="offen lds")
            I.append(f)
        for n in range(nW):
            def f(n=n):
                if st == 0:
                    wvoff(n)
                if n < 7:
                    k.I("s_add_u32", "m0", s(24), base + n * 2048)
                else:
                    k.I("s_mov_b32", "m0", base + XB + 28 * 1024)
                tok[st] = k.I("buffer_load_dwordx4", v(VW + n), s(S_QKV, 4), s(25), mods="offen lds")
                if n == nW - 1:
                    k.I("s_add_u32", s(25), s(25), 64 * 3456)
                    k.I("s_add_u32", s(34), s(34), 128)
                    k.I("s_cmp_ge_u32", s(34), 1152)
                    k.I("s_cselect_b32", s(34), 0, s(34))
                    k.I("s_cselect_b32", s(25), s(26), s(25))
            I.append(f)
        return I

    for f in dma_items(0):
        f()
    LS.stamp("S0 issued")
    AX, AP, AW = 20, 26, 38
    k.I("v_and_b32", v(14), 15, v(2))
    k.I("v_lshrrev_b32", v(15), 1, v(14))
    k.I("v_lshrrev_b32", v(16), 4, v(2))
    k.I("v_xor_b32", v(15), v(15), v(16))
    k.I("v_lshlrev_b32", v(14), 7, v(14))
    k.I("v_lshl_add_u32", v(AX), v(15), 4, v(14))
    k.I("v_xor_b32", v(AX + 1), 64, v(AX))
    for sl in range(1, 3):
        k.I("v_add_u32", v(AX + 2 * sl), sl * STG, v(AX))
        k.I("v_add_u32", v(AX + 2 * sl + 1), sl * STG, v(AX + 1))
    k.I("s_add_u32", s(39), s(27), 1 + 2 * cls)
    k.I("s_xor_b32", s(36), s(27), 1)
    k.I("s_add_u32", s(36), s(36), 1 + 2 * cls)
    for pr, sr in enumerate((39, 36)):
        k.I("s_lshl_b32", s(22), s(sr), 11)
        for i in range(6):
            k.I("v_add_u32", v(AP + 6 * pr + i), s(22), v(AX + i))
    k.I("v_lshrrev_b32", v(14), 4, v(2))
    k.I("v_mul_u32_u24", v(14), WBLK, v(14))
    k.I("v_bfe_u32", v(15), v(2), 2, 2)
    k.I("v_mul_u32_u24", v(15), 448, v(15))
    k.I("v_add_u32", v(14), v(14), v(15))
    k.I("v_and_b32", v(15), 3, v(2))
    k.I("v_lshl_add_u32", v(14), v(15), 3, v(14))
    k.I("s_mul_i32", s(22), s(27), 7 * 32)
    k.I("s_add_u32", s(22), s(22), XB)
    k.I("v_add_u32", v(AW), s(22), v(14))
    for sl in range(1, 3):
        k.I("v_add_u32", v(AW + sl), sl * STG, v(AW))
    k.I("v_and_b32", v(14), 15, v(2))
    k.I("v_cmp_eq_u32", s(30, 2), 0, v(14))
    k.I("s_lshl_b32", s(22), s(27), 3)
    k.I("v_add_u32", v(14), s(22), v(14))
    k.I("v_cmp_le_u32", s(32, 2), 16, v(14))
    att_setup(k)
    for f in dma_items(1):
        f()
    hs = list(range(0, 4)) if cls == 0 else list(range(4, 7))
    tiles = [(s_, t) for s_ in range(7) for t in range(2)] + [(s_, "h") for s_ in hs]
    ACC = {t: 72 + 4 * n for n, t in enumerate(tiles)}
    SA = 44
    HF, W6 = 144, 200

    def xf(p, t):
        return v(HF + 4 * p, 4) if t == "h" else a(32 * p + 4 * t, 4)

    def wf(p, s_, h=None):
        if s_ == 6:
            return v(W6 + 4 * p, 4) if h is None else v(W6 + 4 * p + 2 * h, 2)
        return a(32 * p + 8 + 4 * s_, 4) if h is None else a(32 * p + 8 + 4 * s_ + 2 * h, 2)

    def read_items(st):
        I = []
        sl = st % 3
        for ks in range(2):
            p = (2 * st + ks) % 4
            for t in range(2):
                I.append(lambda t=t, p=p, ks=ks: k.I("ds_read_b128", xf(p, t), v(AP + 6 * t + 2 * sl + ks)))
            I.append(lambda p=p, ks=ks: k.I("ds_read_b128", xf(p, "h"), v(AX + 2 * sl + ks)))
            for s_ in range(7):
                for h in range(2):
                    I.append(lambda s_=s_, h=h, p=p, ks=ks: k.I("ds_read_b64_tr_b16", wf(p, s_, h), v(AW + sl),
                                                                mods=f"offset:{ks * 4 * WBLK + h * 4 * 448 + s_ * 32}"))
        return I

    def compute(kb, fill, per):
        p = kb % 4
        z = kb == 0
        mm = [(v(SA, 4), xf(p, 0), xf(p, 0))]
        if cls == 1:
            mm.append((v(SA + 4, 4), xf(p, "h"), xf(p, "h")))
        pre = [lambda: [k.I("v_cndmask_b32", v(HF + 4 * p + j), v(HF + 4 * p + j), v(ONES), s(30, 2)) for j in range(4)],
               lambda: [k.I("v_cndmask_b32", v(W6 + 4 * p + j), v(W6 + 4 * p + j), v(ONES), s(32, 2)) for j in range(4)]]
        fill2 = [None, None] + pre
        for t in tiles:
            mm.append((v(ACC[t], 4), wf(p, t[0]), xf(p, t[1])))
        n = n2 = 0
        for (ac, A_, B_) in mm:
            k.I(MF, ac, A_, B_, 0 if z else ac)
            for _ in range(per):
                if n < len(fill):
                    fill[n]()
                    n += 1
            if n2 < len(fill2):
                if fill2[n2] is not None:
                    fill2[n2]()
                n2 += 1
        while n < len(fill):
            fill[n]()
            n += 1

    def later(st):
        if st < 9:
            return dma_items(st)
        if st == 9:
            return wo_items[0:10]
        if st == 10:
            return wo_items[10:20]
        return []

    LS.stamp("S2 issued")
    k.wait_vm(tok[0])
    k.I("s_barrier")
    LS.stamp("S0 landed")
    ST.stamp()
    for f in read_items(0):
        f()
    for f in dma_items(2):
        f()
    k.wait(lg=0)
    k.I("s_barrier")
    for f in later(3):
        f()
    if prep.early is not None:
        prep.early()
    def pl(st):
        return [prep.load(2 * st), prep.load(2 * st + 1)] if (0 <= st < 8 and not prep.off) else []

    def pr(st):
        return [prep.read(2 * st), prep.read(2 * st + 1)] if (0 <= st < 8 and not prep.off) else []

    def ps(st):
        return [prep.store(2 * st), prep.store(2 * st + 1)] if (0 <= st < 8 and not prep.off) else []
    for f in pl(0) + pl(1):
        f()
    for st in range(9):
        if st < 8:
            k.wait_vm(tok[st + 1])
            k.I("s_barrier")
            compute(2 * st, read_items(st + 1) + pr(st - 1), 2)
            k.wait(lg=0)
            k.I("s_barrier")
            compute(2 * st + 1, later(st + 4) + ps(st - 1) + pl(st + 2), 2)
        else:
            compute(2 * st, pr(st - 1), 2)
            compute(2 * st + 1, ps(st - 1), 1)
        LS.stamp(f"st{st}")
    ST.stamp()
    nt = 1 if cls == 0 else 2
    k.I("v_and_b32", v(14), 15, v(2))
    k.I("v_lshrrev_b32", v(17), 4, v(2))
    k.I("v_lshlrev_b32", v(15), 3, v(14))
    k.I("v_add_u32", v(15), L_ST, v(15))
    k.I("s_lshl_b32", s(22), s(39), 7)
    k.I("v_add_u32", v(20), s(22), v(15))
    k.I("s_lshl_b32", s(22), s(36), 7)
    k.I("v_add_u32", v(21), s(22), v(15))
    k.I("v_and_b32", v(18), 3, v(14))
    for r in range(1, 4):
        k.I("v_cmp_eq_u32", "vcc", r, v(18))
        for t in range(nt):
            k.I("v_cndmask_b32", v(SA + 4 * t), v(SA + 4 * t), v(SA + 4 * t + r), "vcc")
    k.I("v_lshrrev_b32", v(18), 2, v(14))
    k.I("v_cmp_eq_u32", s(34, 2), v(18), v(17))
    k.I("v_lshlrev_b32", v(18), 4, v(17))
    k.I("s_mul_i32", s(22), s(27), 7 * 64)
    k.I("s_add_u32", s(22), s(22), L_CS)
    k.I("v_add_u32", v(18), s(22), v(18))
    k.I("s_lshl_b32", s(22), s(27), 2)
    k.I("v_add_u32", v(25), s(22), v(17))
    k.I("v_cmp_eq_u32", s(40, 2), 6, v(25))
    k.I("s_lshl_b32", s(22), s(27), 1)
    k.I("v_add_u32", v(25), s(22), v(17))
    k.I("v_cmp_gt_u32", s(32, 2), 4, v(25))
    k.I("s_mov_b64", "exec", s(34, 2))
    k.I("ds_write_b32", v(20), v(SA), mods="offset:4")
    if cls == 1:
        k.I("ds_write_b32", v(15), v(SA + 4), mods="offset:4")
    k.I("s_mov_b64", "exec", s(30, 2))
    for s_ in hs:
        k.I("ds_write_b128", v(18), v(ACC[(s_, "h")], 4), mods=f"offset:{64 * s_}")
    k.I("s_cmp_eq_u32", s(27), 0)
    k.I("s_cbranch_scc1", f"{L}_NS")
    k.I("s_mov_b64", "exec", s(40, 2))
    for t in range(2):
        k.I("ds_write_b32", v(20 + t), v(ACC[(6, t)]))
    if cls == 1:
        k.I("ds_write_b32", v(15), v(ACC[(6, "h")]))
    k.label(f"{L}_NS")
    k.I("s_mov_b64", "exec", -1)
    wo_tok = wo_items[20]()
    if not prep.off:
        prep.finish()
    k.I("v_mov_b32", v(26), hex(f32bits(1.0 / 576)))
    k.I("v_mov_b32", v(27), hex(f32bits(1.0 / 576)))
    k.I("v_mul_u32_u24", v(22), PQ, v(14))
    k.I("v_lshl_add_u32", v(22), v(17), 3, v(22))
    k.I("s_mul_i32", s(22), s(27), 7 * 32)
    k.I("s_add_u32", s(22), s(22), L_QKV)
    k.I("v_add_u32", v(22), s(22), v(22))
    k.I("s_mul_i32", s(22), s(39), 16 * PQ)
    k.I("v_add_u32", v(23), s(22), v(22))
    k.I("s_mul_i32", s(22), s(36), 16 * PQ)
    k.I("v_add_u32", v(24), s(22), v(22))
    k.dsq.append((-2, set()))
    k.wait(lg=0)
    k.I("s_barrier")
    STT = {0: 28, 1: 30, "h": 32}
    CSR = 40
    for t in range(2):
        k.I("ds_read_b64", v(STT[t], 2), v(20 + t))
    k.I("ds_read_b64", v(STT["h"], 2), v(15))
    for s_ in range(7):
        k.I("ds_read_b128", v(CSR + 4 * s_, 4), v(18), mods=f"offset:{64 * s_}")
    B = list(STT.values())
    for b in B:
        k.I("v_pk_mul_f32", v(b, 2), v(b, 2), v(26, 2))
    for b in B:
        k.I("v_fma_f32", v(b + 1), f"-{v(b)}", v(b), v(b + 1))
    for b in B:
        k.I("v_max_f32", v(b + 1), 0, v(b + 1))
    for b in B:
        k.I("v_add_f32", v(b + 1), hex(f32bits(1e-5)), v(b + 1))
    for b in B:
        k.I("v_rsq_f32", v(b + 1), v(b + 1))
    for b in B:
        k.I("v_mul_f32", v(b), f"-{v(b)}", v(b + 1))
    for n, t in enumerate(tiles):
        s_, T = t
        x = ACC[t]
        cs = CSR + 4 * s_
        for hh in range(2):
            k.I("v_pk_mul_f32", v(x + 2 * hh, 2), v(x + 2 * hh, 2), v(STT[T], 2), mods="op_sel:[0,1] op_sel_hi:[1,1]")
        for hh in range(2):
            k.I("v_pk_fma_f32", v(x + 2 * hh, 2), v(cs + 2 * hh, 2), v(STT[T], 2), v(x + 2 * hh, 2),
                mods="op_sel:[0,0,0] op_sel_hi:[1,0,1]")
        k.I("v_cvt_pk_bf16_f32", v(x), v(x), v(x + 1))
        k.I("v_cvt_pk_bf16_f32", v(x + 1), v(x + 2), v(x + 3))
        if s_ == 6:
            k.I("s_mov_b64", "exec", s(32, 2))
        k.I("ds_write_b64", v(22 if T == "h" else 23 + T), v(x, 2), mods=f"offset:{s_ * 32}")
        if s_ == 6:
            k.I("s_mov_b64", "exec", -1)
    k.wait(vm=3 if not prep.off else 1)


def attention(k, wo_items):
    QF, KF, VF, SS, MX = 20, 36, 68, 100, 4
    c0 = [4 * (18 * h // 4) for h in range(4)]
    for h in range(4):
        for hf in range(2):
            k.I("ds_read_b64", v(QF + 4 * h + 2 * hf, 2), v(AQ), mods=f"offset:{2 * c0[h] + 8 * hf}")
        for t in range(2):
            for hf in range(2):
                k.I("ds_read_b64", v(KF + 16 * t + 4 * h + 2 * hf, 2), v(AKP if t == 0 else AQ),
                    mods=f"offset:{144 + 2 * c0[h] + 8 * hf}")
    k.I("s_lshl_b32", s(22), s(20), 2)
    k.I("s_add_u32", s(22), s(22), s(3))
    k.I("s_mul_i32", s(22), s(22), 72 * 256)
    k.I("s_mul_i32", s(23), s(21), 9 * 256)
    k.I("s_add_u32", s(22), s(22), s(23))
    k.I("s_add_u32", s(22), s(22), hex(WS_O))
    k.I("v_cmp_gt_u32", s(40, 2), 16, v(2))
    k.I("s_mov_b32", s(24), hex(f32bits(LOG2E * 18 ** -0.5)))
    k.bgq = list(wo_items)
    k.bg_period = 1
    for h in range(4):
        for e in range(4):
            x = QF + 4 * h + e
            k.I("v_and_b32", v(x), v(QM + 4 * (h % 2) + e), v(x))
        k.I(MF, v(SS + 8 * h, 4), v(KF + 4 * h, 4), v(QF + 4 * h, 4), v(B0, 4))
        k.I(MF, v(SS + 8 * h + 4, 4), v(KF + 16 + 4 * h, 4), v(QF + 4 * h, 4), v(BC, 4))
    for h in range(4):
        for rt in range(2):
            for kt in range(2):
                k.I("ds_read_b64_tr_b16", v(VF + 8 * h + 4 * rt + 2 * kt, 2), v(AVP if kt == 0 else AV),
                    mods=f"offset:{288 + 2 * c0[h] + 32 * rt}")
    for h in range(4):
        b = SS + 8 * h
        k.I("v_max3_f32", v(MX + h), v(b), v(b + 1), v(b + 2))
    for h in range(4):
        b = SS + 8 * h
        k.I("v_max3_f32", v(MX + h), v(MX + h), v(b + 3), v(b + 4))
    for h in range(4):
        b = SS + 8 * h
        k.I("v_max3_f32", v(MX + 4 + h), v(b + 5), v(b + 6), v(b + 7))
    for h in range(4):
        k.I("v_max_f32", v(MX + h), v(MX + h), v(MX + 4 + h))
    reduce_groups(k, [MX + h for h in range(4)], MX + 4, op="v_max_f32")
    for h in range(4):
        k.I("v_mul_f32", v(MX + h), s(24), v(MX + h))
    OA, OB = QF, KF

    def pv(hp):
        k.I(MF, v(SS + 8 * hp + 4, 4), v(ONES, 4), v(SS + 8 * hp, 4), 0)
        k.I(MF, v(OA + 4 * hp, 4), v(VF + 8 * hp, 4), v(SS + 8 * hp, 4), 0)
        k.I(MF, v(OB + 4 * hp, 4), v(VF + 8 * hp + 4, 4), v(SS + 8 * hp, 4), 0)
    for h in range(4):
        for e in range(8):
            k.I("v_fma_f32", v(SS + 8 * h + e), v(SS + 8 * h + e), s(24), f"-{v(MX + h)}")
        for e in range(8):
            k.I("v_exp_f32", v(SS + 8 * h + e), v(SS + 8 * h + e))
        for e in range(4):
            k.I("v_cvt_pk_bf16_f32", v(SS + 8 * h + e), v(SS + 8 * h + 2 * e), v(SS + 8 * h + 2 * e + 1))
        if h > 0:
            pv(h - 1)
    pv(3)
    while k.bgq:
        k.bgq.pop(0)()

    def scale(g):
        for r in range(4):
            k.I("v_mul_f32", v(OA + 4 * g + r), v(MX + g), v(OA + 4 * g + r))
        for r in range(2 if g % 2 == 0 else 4):
            k.I("v_mul_f32", v(OB + 4 * g + r), v(MX + g), v(OB + 4 * g + r))
    for h in range(4):
        k.I("v_rcp_f32", v(MX + h), v(SS + 8 * h + 4))
        if h:
            scale(h - 1)
    scale(3)
    for hp in range(2):
        e_, o_ = 2 * hp, 2 * hp + 1
        for r in range(2):
            k.I("v_cndmask_b32", v(OA + 4 * o_ + r), v(OA + 4 * o_ + r), v(OB + 4 * e_ + r), s(40, 2))
        for (reg, G) in ((OA + 4 * e_, 9 * hp), (OA + 4 * o_, 9 * hp + 4), (OB + 4 * o_, 9 * hp + 8)):
            k.I("v_cvt_pk_bf16_f32", v(reg), v(reg), v(reg + 1))
            k.I("v_cvt_pk_bf16_f32", v(reg + 1), v(reg + 2), v(reg + 3))
            last = G % 9 == 8
            if last:
                k.I("s_mov_b64", "exec", s(40, 2))
            k.I("ds_write_b64", v(AO + G % 2), v(reg, 2), mods=f"offset:{(G // 2) * 256}")
            if last:
                k.I("s_mov_b64", "exec", -1)
    k.I("v_lshlrev_b32", v(4), 4, v(2))
    k.I("s_mul_i32", s(23), s(3), 2304)
    k.I("s_add_u32", s(23), s(23), L_PREP)
    k.I("v_add_u32", v(5), s(23), v(4))
    k.wait(lg=0)
    k.I("s_barrier")
    tile_out(k, 5, 4, 22, 20, "sc1")


def tile_out(k, vl, vo, so, tmp, sc):
    for i in range(3):
        k.I("ds_read_b128", v(tmp + 4 * i, 4), v(vl), mods=f"offset:{1024 * i}")
    for i in range(3):
        if i == 2:
            k.I("s_mov_b64", "exec", "0xffff")
        k.I("buffer_store_dwordx4", v(tmp + 4 * i, 4), v(vo), s(S_WS, 4), s(so), mods=f"offen offset:{1024 * i} {sc}")
    k.I("s_mov_b64", "exec", -1)


def emit_ab(k, U, ST, dbg="", sc="", early=None):
    LS = LStamps(k, 255, 100, "lst" in dbg)
    LS.stamp("start")
    k.I("s_load_dwordx4", s(20, 4), s(0, 2), KA_X)
    k.I("s_load_dwordx4", s(24, 4), s(0, 2), KA_DBG)
    k.I("s_load_dwordx2", s(28, 2), s(0, 2), KA_WO)
    k.I("s_load_dwordx4", s(32, 4), s(0, 2), KA_WG)
    k.I("s_load_dwordx2", s(30, 2), s(0, 2), KA_WD)
    k.I("v_lshrrev_b32", v(1), 6, v(0))
    k.I("v_and_b32", v(2), 63, v(0))
    k.I("v_readfirstlane_b32", s(3), v(1))
    k.I("v_mov_b32", v(3), 0)
    k.I("v_lshrrev_b32", v(14), 3, v(2))
    k.I("v_lshrrev_b32", v(15), 1, v(14))
    k.I("v_and_b32", v(16), 7, v(2))
    k.wait(lg=0)
    LS.stamp("kernarg")
    srd(k, S_X, 20, S * D * 2)
    srd(k, S_QKV, 22, D * 3 * D * 2)
    srd(k, S_WS, 26, WS_SIZE)
    srd(k, S_DBG, 24, 256)
    srd(k, S_WO, 28, D * D * 2)
    srd(k, S_WG, 32, D * F * 2)
    srd(k, S_WU, 34, D * F * 2)
    srd(k, S_WD, 30, D * F * 2)
    k.I("s_bfe_u32", s(20), s(2), hex((2 << 16) | 1))
    k.I("s_lshl_b32", s(20), s(20), 3)
    k.I("s_bfe_u32", s(21), s(2), hex((3 << 16) | 3))
    k.I("s_add_u32", s(20), s(20), s(21))
    k.I("s_and_b32", s(21), s(2), 1)
    k.I("s_lshl_b32", s(21), s(21), 2)
    k.I("s_lshr_b32", s(22), s(2), 6)
    k.I("s_add_u32", s(21), s(21), s(22))
    k.I("s_and_b32", s(27), s(3), 1)
    k.I("s_lshr_b32", s(28), s(3), 1)
    VX = 4
    k.I("s_mov_b32", s(23), 1152)
    k.I("s_lshl_b32", s(22), s(27), 2)
    k.I("v_add_u32", v(15), s(22), v(15))
    k.I("v_xor_b32", v(15), v(15), v(16))
    k.I("s_lshl_b32", s(22), s(20), 6)
    k.I("s_lshl_b32", s(24), s(27), 4)
    k.I("s_add_u32", s(24), s(24), s(22))
    k.I("v_lshl_add_u32", v(16), v(14), 1, s(24))
    k.I("v_mul_lo_u32", v(16), v(16), s(23))
    k.I("v_lshl_add_u32", v(VX), v(15), 4, v(16))
    k.I("s_add_u32", s(24), s(22), s(27))
    k.I("s_sub_u32", s(24), s(24), 16)
    k.I("v_lshl_add_u32", v(16), v(14), 1, s(24))
    k.I("v_mul_lo_u32", v(16), v(16), s(23))
    k.I("v_lshl_add_u32", v(VX + 1), v(15), 4, v(16))
    k.I("s_mul_i32", s(22), s(28), 14)
    k.I("s_add_u32", s(22), s(22), s(27))
    k.I("s_lshl_b32", s(24), s(22), 6)
    k.I("v_add_u32", v(18), s(24), v(2))
    k.I("s_lshl_b32", s(24), s(22), 10)
    k.I("s_add_u32", s(24), s(24), XB)
    k.I("s_lshl_b32", s(37), s(27), 10)
    k.I("s_mul_i32", s(25), s(21), 144)
    k.I("s_mov_b32", s(26), s(25))
    k.I("s_and_b32", s(34), s(20), 7)
    k.I("s_and_b32", s(35), s(21), 3)
    k.I("s_lshl_b32", s(35), s(35), 1)
    k.I("s_add_u32", s(34), s(34), s(35))
    k.I("s_sub_u32", s(35), s(34), 9)
    k.I("s_cmp_ge_u32", s(34), 9)
    k.I("s_cselect_b32", s(34), s(35), s(34))
    if "norot" in dbg:
        k.I("s_mov_b32", s(34), 0)
    k.I("s_mul_i32", s(35), s(34), 64 * 3456)
    k.I("s_add_u32", s(25), s(25), s(35))
    k.I("s_lshl_b32", s(34), s(34), 7)
    k.I("s_or_b32", s(22), s(2), s(3))
    k.I("s_cmp_lg_u32", s(22), 0)
    k.I("s_cbranch_scc1", f"{U}_NN")
    k.I("s_memrealtime", s(22, 2))
    k.wait(lg=0)
    k.I("s_or_b32", s(22), s(22), 1)
    k.I("v_mov_b32", v(248), s(22))
    k.I("v_mov_b32", v(249), s(23))
    k.I("buffer_store_dwordx2", v(248, 2), v(3), s(S_DBG, 4), 0, mods="offen sc1")
    k.vmq.pop()
    k.label(f"{U}_NN")
    prep = Prep(k, U, sc)
    prep.early = early
    prep.off = "noprep" in dbg
    prep.dbg = dbg
    prep.decode()

    def wo_item(n):
        def f():
            base, lim, off = (0, 38, 4 * n) if n < 10 else ((39, 38, 4 * (n - 10)) if n < 20 else (78, 2, 0))
            if off + 3 > lim:
                k.I("s_add_u32", s(29), s(3), off)
                k.I("s_min_u32", s(29), s(29), lim)
                k.I("s_add_u32", s(29), s(29), base)
                k.I("s_lshl_b32", "m0", s(29), 10)
                k.I("s_lshl_b32", s(29), s(29), 6)
                k.I("v_add_u32", v(250), s(29), v(2))
            else:
                k.I("v_add_u32", v(250), 64 * (base + off), v(0))
                k.I("s_lshl_b32", s(29), s(3), 10)
                k.I("s_add_u32", "m0", s(29), (base + off) * 1024)
            k.I("v_mul_u32_u24", v(251), 7282, v(250))
            k.I("v_lshrrev_b32", v(251), 16, v(251))
            k.I("v_mul_u32_u24", v(251), 1152 - 144, v(251))
            k.I("v_lshl_add_u32", v(251), v(250), 4, v(251))
            k.I("buffer_load_dwordx4", v(251), s(S_WO, 4), s(26), mods="offen lds")
        return f
    wo_items = [wo_item(n) for n in range(21)]

    def touch_w(n):
        def f():
            k.I("v_add_u32", v(250), 256 * n, v(0))
            k.I("v_min_u32", v(250), 431, v(250))
            k.I("v_mul_u32_u24", v(251), 10923, v(250))
            k.I("v_lshrrev_b32", v(251), 16, v(251))
            k.I("v_mul_u32_u24", v(252), 6, v(251))
            k.I("v_sub_u32", v(250), v(250), v(252))
            k.I("v_mul_u32_u24", v(251), 8 * 3456, v(251))
            k.I("v_lshrrev_b32", v(252), 1, v(250))
            k.I("v_mul_u32_u24", v(252), 1152, v(252))
            k.I("v_add_u32", v(251), v(251), v(252))
            k.I("v_and_b32", v(250), 1, v(250))
            k.I("v_mul_u32_u24", v(250), 140, v(250))
            k.I("v_add_u32", v(251), v(251), v(250))
            k.I("s_and_b32", s(29), s(20), 7)
            k.I("s_mul_i32", s(29), s(29), 3456)
            k.I("s_add_u32", s(29), s(29), s(26))
            k.I("buffer_load_dword", v(194 + n), v(251), s(S_QKV, 4), s(29), mods="offen")
        return f

    def touch_x():
        k.I("v_mul_u32_u24", v(251), 1152, v(2))
        k.I("s_and_b32", s(29), s(21), 3)
        k.I("s_lshl_b32", s(38), s(3), 2)
        k.I("s_add_u32", s(29), s(29), s(38))
        k.I("s_min_u32", s(29), s(29), 8)
        k.I("s_lshl_b32", s(29), s(29), 7)
        k.I("s_mul_i32", s(38), s(20), 64 * 1152)
        k.I("s_add_u32", s(29), s(29), s(38))
        k.I("buffer_load_dword", v(196), v(251), s(S_X, 4), s(29), mods="offen")

    def touch_wo():
        k.I("v_min_u32", v(250), 143, v(0))
        k.I("v_lshrrev_b32", v(251), 1, v(250))
        k.I("v_mul_u32_u24", v(251), 8 * 1152, v(251))
        k.I("v_and_b32", v(250), 1, v(250))
        k.I("v_mul_u32_u24", v(250), 140, v(250))
        k.I("v_add_u32", v(251), v(251), v(250))
        k.I("s_and_b32", s(29), s(20), 7)
        k.I("s_mul_i32", s(29), s(29), 1152)
        k.I("s_add_u32", s(29), s(29), s(26))
        k.I("buffer_load_dword", v(197), v(251), s(S_WO, 4), s(29), mods="offen")
    touch_items = [touch_w(0), touch_x, touch_w(1), touch_wo] if "touch" in dbg else []
    k.I("v_lshrrev_b32", v(52), 4, v(2))
    k.I("v_lshlrev_b32", v(52), 3, v(52))
    k.I("v_bfe_u32", v(53), v(2), 2, 2)
    k.I("v_add_u32", v(52), v(52), v(53))
    k.I("v_mul_u32_u24", v(52), 144, v(52))
    k.I("v_and_b32", v(53), 3, v(2))
    k.I("v_lshl_add_u32", v(192), v(53), 3, v(52))
    k.I("v_add_u32", v(193), 9 * 4608, v(192))

    def wo(kb, r, h=None):
        n = 5 * kb + r
        vg = list(range(88, 160, 4)) + list(range(168, 184, 4)) + list(range(232, 248, 4))
        f, b = ("a", 4 * n) if n < 64 else ("v", vg[n - 64])
        return R(f, b, 4) if h is None else R(f, b + 2 * h, 2)
    wofrag = [lambda kb=kb, r=r, h=h: k.I("ds_read_b64_tr_b16", wo(kb, r, h), v(192 + kb // 9),
                                          mods=f"offset:{(kb % 9) * 4608 + h * 576 + r * 32}")
              for kb in range(18) for r in range(5) for h in range(2)]
    LS.stamp("setup")
    n0 = LS.n
    k.I("s_cmp_lg_u32", s(28), 0)
    k.I("s_cbranch_scc1", f"{U}_A1")
    for cls in range(2):
        if cls == 1:
            k.label(f"{U}_A1")
            k.vmq, k.dsq = [], []
        if cls == 1:
            LS.n, LS.names = n0, LS.names[:n0]
        gemm(k, U, cls, ST if cls == 0 else ST.clone(), prep, wo_items, touch_items, wofrag, dbg, LS)
        if cls == 0:
            k.I("s_branch", f"{U}_AJ")
    k.label(f"{U}_AJ")
    k.dsq = [(-2, set())]
    k.wait(lg=0)
    k.I("s_barrier")
    ST.stamp()
    LS.stamp("norm")
    k.I("buffer_load_dwordx2", v(248, 2), v(3), s(S_DBG, 4), 0, mods="offen sc1")
    attention(k, [])
    ST.stamp()
    LS.stamp("attn")
    k.wait(vm=0)
    LS.stamp("drain")
    k.I("s_barrier")
    k.I("s_mov_b32", s(33), 20000)
    k.label(f"{U}_NL")
    k.I("v_readfirstlane_b32", s(22), v(248))
    k.I("s_cmp_lg_u32", s(22), 0)
    k.I("s_cbranch_scc1", f"{U}_NOK")
    k.I("s_sub_u32", s(33), s(33), 1)
    k.I("s_cmp_eq_u32", s(33), 0)
    k.I("s_cbranch_scc1", f"{U}_NOK")
    k.I("buffer_load_dwordx2", v(248, 2), v(3), s(S_DBG, 4), 0, mods="offen sc1")
    k.wait(vm=0)
    k.I("s_branch", f"{U}_NL")
    k.label(f"{U}_NOK")
    k.I("s_lshl_b32", s(24), s(20), 6)
    k.I("s_add_u32", s(24), s(24), hex(WS_F0))
    k.I("s_cmp_lg_u32", s(3), 0)
    k.I("s_cbranch_scc1", f"{U}_NF")
    k.I("s_lshl_b32", s(23), s(21), 3)
    k.I("s_add_u32", s(23), s(23), s(24))
    k.I("buffer_store_dwordx2", v(248, 2), v(3), s(S_WS, 4), s(23), mods="offen sc1")
    k.vmq.pop()
    k.label(f"{U}_NF")
    ST.stamp()
    k.I("s_lshl_b32", s(22), s(20), 2)
    k.I("s_add_u32", s(22), s(22), s(3))
    k.I("v_and_b32", v(8), 15, v(2))
    k.I("v_lshrrev_b32", v(9), 4, v(2))
    k.I("v_mul_u32_u24", v(10), 1152, v(8))
    k.I("v_lshl_add_u32", v(10), v(9), 3, v(10))
    k.I("s_mul_i32", s(23), s(22), 16 * 1152)
    k.I("s_add_u32", s(23), s(23), s(26))
    RES = 200
    for r in range(5):
        k.I("buffer_load_dwordx2", v(RES + 2 * r, 2), v(10), s(S_X, 4), s(23), mods=f"offen offset:{32 * r}")
    LS.stamp("flag")

    for f in wofrag:
        f()
    k.I("v_and_b32", v(11), 7, v(2))
    k.I("v_lshlrev_b32", v(11), 3, v(11))
    k.I("s_mov_b32", s(33), 40000)
    k.label(f"{U}_PL")
    k.I("buffer_load_dwordx2", v(6, 2), v(11), s(S_WS, 4), s(24), mods="offen sc1")
    k.wait(vm=0)
    k.I("v_cmp_eq_u64", "vcc", v(248, 2), v(6, 2))
    k.I("s_cmp_eq_u64", "vcc", -1)
    k.I("s_cbranch_scc1", f"{U}_POK")
    k.I("s_sub_u32", s(33), s(33), 1)
    k.I("s_cmp_eq_u32", s(33), 0)
    k.I("s_cbranch_scc1", f"{U}_POK")
    k.I("s_sleep", 1)
    k.I("s_branch", f"{U}_PL")
    k.label(f"{U}_POK")
    LS.stamp("poll")
    ST.stamp()
    OF = 16
    k.I("v_lshlrev_b32", v(11), 4, v(2))
    k.I("s_mul_i32", s(24), s(22), 18 * 1024)
    k.I("s_add_u32", s(24), s(24), hex(WS_O))
    for kb in range(18):
        if kb % 4 == 0 and kb:
            k.I("s_add_u32", s(24), s(24), 4096)
        k.I("buffer_load_dwordx4", v(OF + 4 * kb, 4), v(11), s(S_WS, 4), s(24), mods=f"offen offset:{(kb % 4) * 1024} sc1")
    k.I("v_lshlrev_b32", v(10), 4, v(8))
    k.I("v_lshrrev_b32", v(11), 1, v(9))
    k.I("v_lshl_add_u32", v(10), v(11), 8, v(10))
    k.I("v_and_b32", v(11), 1, v(9))
    k.I("v_lshl_add_u32", v(10), v(11), 3, v(10))
    k.I("s_mul_i32", s(23), s(3), 2304)
    k.I("s_add_u32", s(23), s(23), L_PREP + 9216)
    k.I("v_add_u32", v(10), s(23), v(10))
    k.I("v_lshlrev_b32", v(14), 4, v(2))
    k.I("v_add_u32", v(15), s(23), v(14))
    k.I("s_mul_i32", s(23), s(22), 72 * 256)
    k.I("s_mul_i32", s(24), s(21), 9 * 256)
    k.I("s_add_u32", s(23), s(23), s(24))
    k.I("s_add_u32", s(23), s(23), hex(WS_H))
    k.I("v_cmp_gt_u32", s(40, 2), 32, v(2))
    k.I("v_mov_b32", v(4), 0)
    k.I("v_mov_b32", v(5), 0)
    k.I("v_mov_b32", v(6), "0x3f803f80")
    BACC = 212
    for kb in range(18):
        for r in range(5):
            ac = v(BACC + 4 * r, 4)
            k.I(MF, ac, wo(kb, r), v(OF + 4 * kb, 4), ac if kb else 0)
    LS.stamp("B mfma")
    ST.stamp()
    for r in range(5):
        x = BACC + 4 * r
        t = 16 + 4 * (r % 2)
        for i in range(2):
            k.I("v_lshlrev_b32", v(t + 2 * i), 16, v(RES + 2 * r + i))
            k.I("v_and_b32", v(t + 2 * i + 1), "0xffff0000", v(RES + 2 * r + i))
        for i in range(4):
            k.I("v_add_f32", v(x + i), v(x + i), v(t + i))
        k.I("v_cvt_pk_bf16_f32", v(x), v(x), v(x + 1))
        k.I("v_cvt_pk_bf16_f32", v(x + 1), v(x + 2), v(x + 3))
        if r == 4:
            k.I("s_mov_b64", "exec", s(40, 2))
        k.I("ds_write_b64", v(10), v(x, 2), mods=f"offset:{r * 512}")
        for i in range(2):
            k.I("v_dot2c_f32_bf16", v(4), v(x + i), v(6))
            k.I("v_dot2c_f32_bf16", v(5), v(x + i), v(x + i))
        if r == 4:
            k.I("s_mov_b64", "exec", -1)
    tile_out(k, 15, 14, 23, 28, sc)
    reduce_groups(k, [4, 5], 24)
    k.I("v_lshlrev_b32", v(10), 6, v(8))
    k.I("s_lshl_b32", s(23), s(22), 10)
    k.I("s_lshl_b32", s(24), s(21), 3)
    k.I("s_add_u32", s(23), s(23), s(24))
    k.I("s_add_u32", s(23), s(23), hex(WS_ST))
    k.I("buffer_store_dwordx2", v(4, 2), v(10), s(S_WS, 4), s(23), mods=f"offen {sc}")
    LS.stamp("B done")
    LS.dump(S_WS, 254, 1)


def build_ab(dbg=""):
    k = Kern("kab_kernel")
    ST = Stamps(k, 64, "stamp" in dbg)
    k.I("s_cmp_ge_u32", s(2), 256)
    k.I("s_cbranch_scc1", "KAB_END")
    ST.stamp()
    emit_ab(k, "KAB", ST, dbg)
    k.I("v_lshlrev_b32", v(8), 2, v(2))
    k.I("s_lshl_b32", s(22), s(2), 7)
    k.I("s_add_u32", s(22), s(22), hex(WS_F1))
    k.I("s_add_u32", s(23), s(22), hex(WS_F2 - WS_F1))
    k.I("v_cmp_gt_u32", "vcc", 32, v(2))
    k.I("s_and_saveexec_b64", s(30, 2), "vcc")
    k.I("buffer_store_dword", v(3), v(8), s(S_WS, 4), s(22), mods="offen")
    k.I("buffer_store_dword", v(3), v(8), s(S_WS, 4), s(23), mods="offen")
    k.I("s_mov_b64", "exec", s(30, 2))
    ST.stamp()
    ST.dump(S_WS, 100, 3)
    k.label("KAB_END")
    k.I("s_endpgm")
    return k, "grid=(256,1,1) block=(256,1,1) lds=%d" % LDS_TOTAL
```

```python
from common import *
from k_frag import f32bits
import k_prep
from k_prep import PrepRegs
from k_a2 import reduce_groups
from k_ab3 import tile_out, S_WS, S_X, S_QKV, S_WO, S_DBG, S_WG, S_WU, S_WD

MF = "v_mfma_f32_16x16x32_bf16"
XB = 18432
WBLK = 3616
STG = XB + 29 * 1024
PQ = 440
L_ST = 144384
L_CS = 145664
L_OT = 65536
BLK = 2432
LOG2E = 1.4426950408889634
NEG = -1e30
BC, BP, B0, QM, ONES, AQ, AV, AKP, AVP, AO = 216, 220, 224, 228, 236, 240, 241, 242, 243, 244


def att_setup(k):
    k.I("v_and_b32", v(14), 15, v(2))
    k.I("v_lshrrev_b32", v(15), 4, v(2))
    k.I("v_mul_u32_u24", v(AQ), PQ, v(14))
    k.I("v_lshl_add_u32", v(AQ), v(15), 4, v(AQ))
    k.I("v_lshrrev_b32", v(AV), 2, v(2))
    k.I("v_mul_u32_u24", v(AV), PQ, v(AV))
    k.I("v_and_b32", v(16), 3, v(2))
    k.I("v_lshl_add_u32", v(AV), v(16), 3, v(AV))
    k.I("s_lshl_b32", s(22), s(3), 1)
    k.I("s_mul_i32", s(23), s(22), s(27))
    k.I("s_mul_i32", s(23), s(23), 16 * PQ)
    k.I("s_add_u32", s(22), s(22), 1)
    k.I("s_mul_i32", s(22), s(22), 16 * PQ)
    k.I("v_add_u32", v(AKP), s(23), v(AQ))
    k.I("v_add_u32", v(AVP), s(23), v(AV))
    k.I("v_add_u32", v(AQ), s(22), v(AQ))
    k.I("v_add_u32", v(AV), s(22), v(AV))
    k.I("v_mov_b32", v(16), hex(f32bits(NEG)))
    k.I("v_lshlrev_b32", v(17), 2, v(15))
    k.I("v_sub_u32", v(17), v(14), v(17))
    k.I("s_cmp_eq_u32", s(3), 0)
    k.I("s_cselect_b32", s(22), 8, 0)
    k.I("s_cselect_b32", s(23), 8, 16)
    k.I("s_or_b32", s(38), s(20), s(27))
    k.I("s_cmp_eq_u32", s(38), 0)
    k.I("s_cselect_b32", s(23), 0, s(23))
    for r in range(4):
        k.I("v_subrev_u32", v(246), r, v(17))
        k.I("v_cmp_gt_u32", "vcc", 8, v(246))
        k.I("v_cndmask_b32", v(BC + r), v(16), 0, "vcc")
        k.I("v_cmp_gt_i32", "vcc", -8, v(246))
        k.I("v_cndmask_b32", v(BP + r), v(16), 0, "vcc")
        k.I("v_subrev_u32", v(247), s(22), v(246))
        k.I("v_cmp_gt_i32", "vcc", -8, v(247))
        k.I("v_lshl_add_u32", v(247), v(15), 2, r)
        k.I("v_cmp_gt_u32", s(40, 2), s(23), v(247))
        k.I("s_and_b64", "vcc", "vcc", s(40, 2))
        k.I("v_cndmask_b32", v(B0 + r), v(16), 0, "vcc")
        k.I("v_cmp_gt_u32", "vcc", 9, v(247))
        k.I("v_cndmask_b32", v(QM + r), 0, -1, "vcc")
        k.I("v_subrev_u32", v(247), 1, v(247))
        k.I("v_cmp_gt_u32", "vcc", 9, v(247))
        k.I("v_cndmask_b32", v(QM + 4 + r), 0, -1, "vcc")
        k.I("v_mov_b32", v(ONES + r), "0x3f803f80")
    k.I("v_lshlrev_b32", v(246), 1, v(14))
    k.I("v_add_u32", v(246), s(28), v(246))
    k.I("v_lshrrev_b32", v(247), 4, v(246))
    k.I("v_mul_u32_u24", v(247), 2304, v(247))
    k.I("v_and_b32", v(246), 15, v(246))
    k.I("v_lshl_add_u32", v(247), v(246), 4, v(247))
    k.I("s_mul_i32", s(22), s(27), 4 * 2304)
    k.I("s_add_u32", s(22), s(22), L_OT)
    k.I("v_add_u32", v(247), s(22), v(247))
    k.I("v_lshrrev_b32", v(246), 1, v(15))
    k.I("v_lshl_add_u32", v(AO), v(246), 8, v(247))
    k.I("v_and_b32", v(246), 1, v(15))
    k.I("v_lshl_add_u32", v(AO), v(246), 3, v(AO))
    k.I("v_add_u32", v(16), 1, v(15))
    k.I("v_lshrrev_b32", v(246), 1, v(16))
    k.I("v_lshl_add_u32", v(AO + 1), v(246), 8, v(247))
    k.I("v_and_b32", v(246), 1, v(16))
    k.I("v_lshl_add_u32", v(AO + 1), v(246), 3, v(AO + 1))


def gemm(k, U, cls, LS, dbg):
    VX, VW = 4, 6
    L = f"{U}_G{cls}"
    xt = list(range(0, 5)) if cls == 0 else list(range(5, 9))
    tconst = lambda t: 32 * ((t - 1) & 3) + ((t - 1) >> 2)
    nW = 7 if cls == 0 else 8
    tok = {}

    def wvoff(n):
        k.I("v_add_u32", v(14), 128 * n, v(18))
        if n == 7:
            k.I("v_add_u32", v(15), 28 * 64, v(2))
            k.I("v_min_u32", v(14), v(14), v(15))
            k.I("v_min_u32", v(14), 1807, v(14))
        k.I("v_mul_u32_u24", v(15), 18559, v(14))
        k.I("v_lshrrev_b32", v(15), 22, v(15))
        k.I("v_mul_u32_u24", v(16), 226, v(15))
        k.I("v_sub_u32", v(14), v(14), v(16))
        k.I("v_mul_u32_u24", v(16), 2341, v(14))
        k.I("v_lshrrev_b32", v(16), 16, v(16))
        k.I("v_min_u32", v(16), 7, v(16))
        k.I("v_lshl_add_u32", v(15), v(15), 3, v(16))
        k.I("v_mul_u32_u24", v(16), 28, v(16))
        k.I("v_sub_u32", v(14), v(14), v(16))
        k.I("v_min_u32", v(14), 26, v(14))
        k.I("v_mul_u32_u24", v(16), 57, v(14))
        k.I("v_lshrrev_b32", v(16), 9, v(16))
        k.I("v_mul_u32_u24", v(15), 3456, v(15))
        k.I("v_lshl_add_u32", v(15), v(14), 4, v(15))
        k.I("v_mul_u32_u24", v(16), 1152 - 144, v(16))
        k.I("v_add_u32", v(VW + n), v(15), v(16))

    def dma_items(st):
        base = (st % 3) * STG
        I = []
        for t in xt:
            def f(t=t):
                k.I("s_add_u32", "m0", s(37), base + t * 2048)
                k.I("s_add_u32", s(38), s(34), (tconst(t) * 1152 if t else 0))
                k.I("buffer_load_dwordx4", v(VX + (t == 0)), s(S_X, 4), s(38), mods="offen lds")
            I.append(f)
        for n in range(nW):
            def f(n=n):
                if st == 0:
                    wvoff(n)
                if n < 7:
                    k.I("s_add_u32", "m0", s(24), base + n * 2048)
                else:
                    k.I("s_mov_b32", "m0", base + XB + 28 * 1024)
                tok[st] = k.I("buffer_load_dwordx4", v(VW + n), s(S_QKV, 4), s(25), mods="offen lds")
                if n == nW - 1:
                    k.I("s_add_u32", s(25), s(25), 64 * 3456)
                    k.I("s_add_u32", s(34), s(34), 128)
                    k.I("s_cmp_ge_u32", s(34), 1152)
                    k.I("s_cselect_b32", s(34), 0, s(34))
                    k.I("s_cselect_b32", s(25), s(26), s(25))
            I.append(f)
        return I

    for f in dma_items(0):
        f()
    LS.stamp("S0 issued")
    AX, AP, AW = 20, 26, 38
    k.I("v_and_b32", v(14), 15, v(2))
    k.I("v_lshrrev_b32", v(15), 1, v(14))
    k.I("v_lshrrev_b32", v(16), 4, v(2))
    k.I("v_xor_b32", v(15), v(15), v(16))
    k.I("v_lshlrev_b32", v(14), 7, v(14))
    k.I("v_lshl_add_u32", v(AX), v(15), 4, v(14))
    k.I("v_xor_b32", v(AX + 1), 64, v(AX))
    for sl in range(1, 3):
        k.I("v_add_u32", v(AX + 2 * sl), sl * STG, v(AX))
        k.I("v_add_u32", v(AX + 2 * sl + 1), sl * STG, v(AX + 1))
    k.I("s_lshl_b32", s(39), s(27), 1)
    k.I("s_add_u32", s(39), s(39), 1 + 4 * cls)
    k.I("s_xor_b32", s(36), s(27), 1)
    k.I("s_lshl_b32", s(36), s(36), 1)
    k.I("s_add_u32", s(36), s(36), 1 + 4 * cls)
    for pr, sr in enumerate((39, 36)):
        k.I("s_lshl_b32", s(22), s(sr), 11)
        for i in range(6):
            k.I("v_add_u32", v(AP + 6 * pr + i), s(22), v(AX + i))
    k.I("v_lshrrev_b32", v(14), 4, v(2))
    k.I("v_mul_u32_u24", v(14), WBLK, v(14))
    k.I("v_bfe_u32", v(15), v(2), 2, 2)
    k.I("v_mul_u32_u24", v(15), 448, v(15))
    k.I("v_add_u32", v(14), v(14), v(15))
    k.I("v_and_b32", v(15), 3, v(2))
    k.I("v_lshl_add_u32", v(14), v(15), 3, v(14))
    k.I("s_mul_i32", s(22), s(27), 7 * 32)
    k.I("s_add_u32", s(22), s(22), XB)
    k.I("v_add_u32", v(AW), s(22), v(14))
    for sl in range(1, 3):
        k.I("v_add_u32", v(AW + sl), sl * STG, v(AW))
    k.I("v_and_b32", v(14), 15, v(2))
    k.I("v_cmp_eq_u32", s(30, 2), 0, v(14))
    k.I("s_lshl_b32", s(22), s(27), 3)
    k.I("v_add_u32", v(14), s(22), v(14))
    k.I("v_cmp_le_u32", s(32, 2), 16, v(14))
    att_setup(k)
    for f in dma_items(1):
        f()
    hs = list(range(0, 4)) if cls == 0 else list(range(4, 7))
    tiles = [(s_, t) for s_ in range(7) for t in range(4)] + [(s_, "h") for s_ in hs]
    ACC = {t: 72 + 4 * n for n, t in enumerate(tiles)}
    SA = 44
    HF, W6 = 56, 200

    def xf(p, t):
        return v(HF + 4 * p, 4) if t == "h" else a(40 * p + 4 * t, 4)

    def wf(p, s_, h=None):
        if s_ == 6:
            return v(W6 + 4 * p, 4) if h is None else v(W6 + 4 * p + 2 * h, 2)
        return a(40 * p + 16 + 4 * s_, 4) if h is None else a(40 * p + 16 + 4 * s_ + 2 * h, 2)

    def read_items(st):
        I = []
        sl = st % 3
        for ks in range(2):
            p = (2 * st + ks) % 4
            for t in range(4):
                I.append(lambda t=t, p=p, ks=ks: k.I("ds_read_b128", xf(p, t), v(AP + 6 * (t // 2) + 2 * sl + ks), mods=f"offset:{(t % 2) * 2048}"))
            I.append(lambda p=p, ks=ks: k.I("ds_read_b128", xf(p, "h"), v(AX + 2 * sl + ks)))
            for s_ in range(7):
                for h in range(2):
                    I.append(lambda s_=s_, h=h, p=p, ks=ks: k.I("ds_read_b64_tr_b16", wf(p, s_, h), v(AW + sl),
                                                                mods=f"offset:{ks * 4 * WBLK + h * 4 * 448 + s_ * 32}"))
        return I

    def compute(kb, fill, every):
        p = kb % 4
        z = kb == 0
        mm = [(v(SA + 4 * j, 4), xf(p, j), xf(p, j)) for j in range(2)]
        if cls == 1:
            mm.append((v(SA + 8, 4), xf(p, "h"), xf(p, "h")))
        pre = [lambda: [k.I("v_cndmask_b32", v(HF + 4 * p + j), v(HF + 4 * p + j), v(ONES), s(30, 2)) for j in range(4)],
               lambda: [k.I("v_cndmask_b32", v(W6 + 4 * p + j), v(W6 + 4 * p + j), v(ONES), s(32, 2)) for j in range(4)]]
        fill2 = [None, None, None] + pre
        for t in tiles:
            mm.append((v(ACC[t], 4), wf(p, t[0]), xf(p, t[1])))
        n = n2 = 0
        cr = 0.0
        for (ac, A_, B_) in mm:
            k.I(MF, ac, A_, B_, 0 if z else ac)
            cr += every
            while cr >= 1 and n < len(fill):
                fill[n]()
                n += 1
                cr -= 1
            if n2 < len(fill2):
                if fill2[n2] is not None:
                    fill2[n2]()
                n2 += 1
        while n < len(fill):
            fill[n]()
            n += 1

    k.wait_vm(tok[0])
    k.I("s_barrier")
    LS.stamp("S0 landed")
    for f in read_items(0):
        f()
    for f in dma_items(2):
        f()
    k.wait(lg=0)
    k.I("s_barrier")
    for f in dma_items(3):
        f()
    for st in range(9):
        if st < 8:
            k.wait_vm(tok[st + 1])
            k.I("s_barrier")
            compute(2 * st, read_items(st + 1), 1.3)
            k.wait(lg=0)
            k.I("s_barrier")
            compute(2 * st + 1, dma_items(st + 4) if st + 4 < 9 else [], 0.5)
        else:
            compute(2 * st, [], 1)
            compute(2 * st + 1, [], 1)
        LS.stamp(f"st{st}")
    nt = 2 if cls == 0 else 3
    k.I("v_and_b32", v(14), 15, v(2))
    k.I("v_lshrrev_b32", v(17), 4, v(2))
    k.I("v_lshlrev_b32", v(15), 3, v(14))
    k.I("v_add_u32", v(15), L_ST, v(15))
    k.I("s_lshl_b32", s(22), s(39), 7)
    k.I("v_add_u32", v(20), s(22), v(15))
    k.I("s_lshl_b32", s(22), s(36), 7)
    k.I("v_add_u32", v(21), s(22), v(15))
    k.I("v_and_b32", v(18), 3, v(14))
    for r in range(1, 4):
        k.I("v_cmp_eq_u32", "vcc", r, v(18))
        for t in range(nt):
            k.I("v_cndmask_b32", v(SA + 4 * t), v(SA + 4 * t), v(SA + 4 * t + r), "vcc")
    k.I("v_lshrrev_b32", v(18), 2, v(14))
    k.I("v_cmp_eq_u32", s(34, 2), v(18), v(17))
    k.I("v_lshlrev_b32", v(18), 4, v(17))
    k.I("s_mul_i32", s(22), s(27), 7 * 64)
    k.I("s_add_u32", s(22), s(22), L_CS)
    k.I("v_add_u32", v(18), s(22), v(18))
    k.I("s_lshl_b32", s(22), s(27), 2)
    k.I("v_add_u32", v(25), s(22), v(17))
    k.I("v_cmp_eq_u32", s(40, 2), 6, v(25))
    k.I("s_lshl_b32", s(22), s(27), 1)
    k.I("v_add_u32", v(25), s(22), v(17))
    k.I("v_cmp_gt_u32", s(32, 2), 4, v(25))
    k.I("s_mov_b64", "exec", s(34, 2))
    k.I("ds_write_b32", v(20), v(SA), mods="offset:4")
    k.I("ds_write_b32", v(20), v(SA + 4), mods="offset:132")
    if cls == 1:
        k.I("ds_write_b32", v(15), v(SA + 8), mods="offset:4")
    k.I("s_mov_b64", "exec", s(30, 2))
    for s_ in hs:
        k.I("ds_write_b128", v(18), v(ACC[(s_, "h")], 4), mods=f"offset:{64 * s_}")
    k.I("s_cmp_eq_u32", s(27), 0)
    k.I("s_cbranch_scc1", f"{L}_NS")
    k.I("s_mov_b64", "exec", s(40, 2))
    for t in range(4):
        k.I("ds_write_b32", v(20 + t // 2), v(ACC[(6, t)]), mods=f"offset:{128 * (t % 2)}")
    if cls == 1:
        k.I("ds_write_b32", v(15), v(ACC[(6, "h")]))
    k.label(f"{L}_NS")
    k.I("s_mov_b64", "exec", -1)
    k.I("v_mov_b32", v(26), hex(f32bits(1.0 / 576)))
    k.I("v_mov_b32", v(27), hex(f32bits(1.0 / 576)))
    k.I("v_mul_u32_u24", v(22), PQ, v(14))
    k.I("v_lshl_add_u32", v(22), v(17), 3, v(22))
    k.I("s_mul_i32", s(22), s(27), 7 * 32)
    k.I("v_add_u32", v(22), s(22), v(22))
    k.I("s_mul_i32", s(22), s(39), 16 * PQ)
    k.I("v_add_u32", v(23), s(22), v(22))
    k.I("s_mul_i32", s(22), s(36), 16 * PQ)
    k.I("v_add_u32", v(24), s(22), v(22))
    k.dsq.append((-2, set()))
    k.wait(lg=0)
    k.I("s_barrier")
    STT = {0: 28, 1: 30, 2: 32, 3: 34, "h": 36}
    CSR = 40
    for t in range(4):
        k.I("ds_read_b64", v(STT[t], 2), v(20 + t // 2), mods=f"offset:{128 * (t % 2)}")
    k.I("ds_read_b64", v(STT["h"], 2), v(15))
    for s_ in range(7):
        k.I("ds_read_b128", v(CSR + 4 * s_, 4), v(18), mods=f"offset:{64 * s_}")
    B = list(STT.values())
    for b in B:
        k.I("v_pk_mul_f32", v(b, 2), v(b, 2), v(26, 2))
    for b in B:
        k.I("v_fma_f32", v(b + 1), f"-{v(b)}", v(b), v(b + 1))
    for b in B:
        k.I("v_max_f32", v(b + 1), 0, v(b + 1))
    for b in B:
        k.I("v_add_f32", v(b + 1), hex(f32bits(1e-5)), v(b + 1))
    for b in B:
        k.I("v_rsq_f32", v(b + 1), v(b + 1))
    for b in B:
        k.I("v_mul_f32", v(b), f"-{v(b)}", v(b + 1))
    for n, t in enumerate(tiles):
        s_, T = t
        x = ACC[t]
        cs = CSR + 4 * s_
        if "nopk" not in dbg:
            for hh in range(2):
                k.I("v_pk_mul_f32", v(x + 2 * hh, 2), v(x + 2 * hh, 2), v(STT[T], 2), mods="op_sel:[0,1] op_sel_hi:[1,1]")
            for hh in range(2):
                k.I("v_pk_fma_f32", v(x + 2 * hh, 2), v(cs + 2 * hh, 2), v(STT[T], 2), v(x + 2 * hh, 2),
                    mods="op_sel:[0,0,0] op_sel_hi:[1,0,1]")
        else:
            for r in range(4):
                k.I("v_mul_f32", v(x + r), v(STT[T] + 1), v(x + r))
            for r in range(4):
                k.I("v_fmac_f32", v(x + r), v(STT[T]), v(cs + r))
        k.I("v_cvt_pk_bf16_f32", v(x), v(x), v(x + 1))
        k.I("v_cvt_pk_bf16_f32", v(x + 1), v(x + 2), v(x + 3))
        if s_ == 6:
            k.I("s_mov_b64", "exec", s(32, 2))
        if T == "h":
            k.I("ds_write_b64", v(22), v(x, 2), mods=f"offset:{s_ * 32}")
        else:
            k.I("ds_write_b64", v(23 + T // 2), v(x, 2), mods=f"offset:{(T % 2) * 16 * PQ + s_ * 32}")
        if s_ == 6:
            k.I("s_mov_b64", "exec", -1)


def attention(k, U, dbg):
    QF, KF, VF = 20, 52, 100
    SS = 164
    MX = 4
    c0 = [4 * (18 * h // 4) for h in range(4)]
    for t in range(3):
        for h in range(4):
            for hf in range(2):
                k.I("ds_read_b64", v(KF + 16 * t + 4 * h + 2 * hf, 2), v(AKP if t == 0 else AQ),
                    mods=f"offset:{(t - 1) * 16 * PQ * (t > 0) + 144 + 2 * c0[h] + 8 * hf}")
        if t >= 1:
            for h in range(4):
                for hf in range(2):
                    k.I("ds_read_b64", v(QF + 16 * (t - 1) + 4 * h + 2 * hf, 2), v(AQ),
                        mods=f"offset:{(t - 1) * 16 * PQ + 2 * c0[h] + 8 * hf}")
    k.I("s_lshl_b32", s(22), s(20), 3)
    k.I("s_lshl_b32", s(23), s(3), 1)
    k.I("s_add_u32", s(22), s(22), s(23))
    k.I("s_mul_i32", s(22), s(22), 72 * 256)
    k.I("s_mul_i32", s(23), s(21), 9 * 256)
    k.I("s_add_u32", s(22), s(22), s(23))
    k.I("s_add_u32", s(22), s(22), hex(WS_O))
    k.I("s_add_u32", s(23), s(22), 72 * 256)
    k.I("v_cmp_gt_u32", s(40, 2), 16, v(2))
    k.I("s_mov_b32", s(24), hex(f32bits(LOG2E * 18 ** -0.5)))

    def v_reads(t):
        for h in range(4):
            for rt in range(2):
                for kt in range(2):
                    tt = t + kt
                    k.I("ds_read_b64_tr_b16", v(VF + 32 * t + 8 * h + 4 * rt + 2 * kt, 2), v(AVP if tt == 0 else AV),
                        mods=f"offset:{(tt - 1) * 16 * PQ * (tt > 0) + 288 + 2 * c0[h] + 32 * rt}")
    for t in range(2):
        for h in range(4):
            for e in range(4):
                x = QF + 16 * t + 4 * h + e
                k.I("v_and_b32", v(x), v(QM + 4 * (h % 2) + e), v(x))
        for h in range(4):
            k.I(MF, v(SS + 8 * h, 4), v(KF + 16 * t + 4 * h, 4), v(QF + 16 * t + 4 * h, 4), v(B0 if t == 0 else BP, 4))
            k.I(MF, v(SS + 8 * h + 4, 4), v(KF + 16 * (t + 1) + 4 * h, 4), v(QF + 16 * t + 4 * h, 4), v(BC, 4))
        v_reads(t)
        for h in range(4):
            b = SS + 8 * h
            k.I("v_max3_f32", v(MX + h), v(b), v(b + 1), v(b + 2))
        for h in range(4):
            b = SS + 8 * h
            k.I("v_max3_f32", v(MX + h), v(MX + h), v(b + 3), v(b + 4))
        for h in range(4):
            b = SS + 8 * h
            k.I("v_max3_f32", v(MX + 4 + h), v(b + 5), v(b + 6), v(b + 7))
        for h in range(4):
            k.I("v_max_f32", v(MX + h), v(MX + h), v(MX + 4 + h))
        reduce_groups(k, [MX + h for h in range(4)], MX + 4, op="v_max_f32")
        for h in range(4):
            k.I("v_mul_f32", v(MX + h), s(24), v(MX + h))
        OA = QF + 16 * t
        OB = KF + 16 * t
        for h in range(4):
            for e in range(8):
                k.I("v_fma_f32", v(SS + 8 * h + e), v(SS + 8 * h + e), s(24), f"-{v(MX + h)}")
            for e in range(8):
                k.I("v_exp_f32", v(SS + 8 * h + e), v(SS + 8 * h + e))
            for e in range(4):
                k.I("v_cvt_pk_bf16_f32", v(SS + 8 * h + e), v(SS + 8 * h + 2 * e), v(SS + 8 * h + 2 * e + 1))
            if h > 0:
                hp = h - 1
                k.I(MF, v(SS + 8 * hp + 4, 4), v(ONES, 4), v(SS + 8 * hp, 4), 0)
                k.I(MF, v(OA + 4 * hp, 4), v(VF + 32 * t + 8 * hp, 4), v(SS + 8 * hp, 4), 0)
                k.I(MF, v(OB + 4 * hp, 4), v(VF + 32 * t + 8 * hp + 4, 4), v(SS + 8 * hp, 4), 0)
        hp = 3
        k.I(MF, v(SS + 8 * hp + 4, 4), v(ONES, 4), v(SS + 8 * hp, 4), 0)
        k.I(MF, v(OA + 4 * hp, 4), v(VF + 32 * t + 8 * hp, 4), v(SS + 8 * hp, 4), 0)
        k.I(MF, v(OB + 4 * hp, 4), v(VF + 32 * t + 8 * hp + 4, 4), v(SS + 8 * hp, 4), 0)
        for h in range(4):
            k.I("v_rcp_f32", v(MX + h), v(SS + 8 * h + 4))
            if h:
                g = h - 1
                for r in range(4):
                    k.I("v_mul_f32", v(OA + 4 * g + r), v(MX + g), v(OA + 4 * g + r))
                for r in range(2 if g % 2 == 0 else 4):
                    k.I("v_mul_f32", v(OB + 4 * g + r), v(MX + g), v(OB + 4 * g + r))
        g = 3
        for r in range(4):
            k.I("v_mul_f32", v(OA + 4 * g + r), v(MX + g), v(OA + 4 * g + r))
        for r in range(4):
            k.I("v_mul_f32", v(OB + 4 * g + r), v(MX + g), v(OB + 4 * g + r))
        for hp in range(2):
            e_, o_ = 2 * hp, 2 * hp + 1
            for r in range(2):
                k.I("v_cndmask_b32", v(OA + 4 * o_ + r), v(OA + 4 * o_ + r), v(OB + 4 * e_ + r), s(40, 2))
            for (reg, G) in ((OA + 4 * e_, 9 * hp), (OA + 4 * o_, 9 * hp + 4), (OB + 4 * o_, 9 * hp + 8)):
                k.I("v_cvt_pk_bf16_f32", v(reg), v(reg), v(reg + 1))
                k.I("v_cvt_pk_bf16_f32", v(reg + 1), v(reg + 2), v(reg + 3))
                last = G % 9 == 8
                if last:
                    k.I("s_mov_b64", "exec", s(40, 2))
                k.I("ds_write_b64", v(AO + G % 2), v(reg, 2), mods=f"offset:{(G // 2) * 256 + t * 4608}")
                if last:
                    k.I("s_mov_b64", "exec", -1)
    k.I("v_lshlrev_b32", v(4), 4, v(2))
    k.I("s_mul_i32", s(24), s(3), 4608)
    k.I("s_add_u32", s(24), s(24), L_OT)
    k.I("v_add_u32", v(5), s(24), v(4))
    k.I("v_add_u32", v(6), 2304, v(5))
    k.wait(lg=0)
    k.I("s_barrier")
    tile_out(k, 5, 4, 22, 20, "sc1")
    tile_out(k, 6, 4, 23, 32, "sc1")


def nonce_wait(k, L):
    k.I("s_mov_b32", s(33), 20000)
    k.label(f"{L}_NL")
    k.I("v_readfirstlane_b32", s(22), v(248))
    k.I("s_cmp_lg_u32", s(22), 0)
    k.I("s_cbranch_scc1", f"{L}_NOK")
    k.I("s_sub_u32", s(33), s(33), 1)
    k.I("s_cmp_eq_u32", s(33), 0)
    k.I("s_cbranch_scc1", f"{L}_NOK")
    k.I("buffer_load_dwordx2", v(248, 2), v(3), s(S_DBG, 4), 0, mods="offen sc1")
    k.wait(vm=0)
    k.I("s_branch", f"{L}_NL")
    k.label(f"{L}_NOK")


def emit_ab(k, U, dbg=""):
    LS = LStamps(k, 255, 100, "lst" in dbg)
    LS.stamp("start")
    k.I("s_load_dwordx4", s(20, 4), s(0, 2), KA_X)
    k.I("s_load_dwordx4", s(24, 4), s(0, 2), KA_DBG)
    k.I("s_load_dwordx2", s(28, 2), s(0, 2), KA_WO)
    k.I("s_load_dwordx4", s(32, 4), s(0, 2), KA_WG)
    k.I("s_load_dwordx2", s(30, 2), s(0, 2), KA_WD)
    k.I("v_lshrrev_b32", v(1), 6, v(0))
    k.I("v_and_b32", v(2), 63, v(0))
    k.I("v_readfirstlane_b32", s(3), v(1))
    k.I("v_mov_b32", v(3), 0)
    k.I("v_lshrrev_b32", v(14), 3, v(2))
    k.I("v_lshrrev_b32", v(15), 1, v(14))
    k.I("v_and_b32", v(16), 7, v(2))
    k.wait(lg=0)
    LS.stamp("kernarg")
    srd(k, S_X, 20, S * D * 2)
    srd(k, S_QKV, 22, D * 3 * D * 2)
    srd(k, S_WS, 26, WS_SIZE)
    srd(k, S_DBG, 24, 256)
    srd(k, S_WO, 28, D * D * 2)
    srd(k, S_WG, 32, D * F * 2)
    srd(k, S_WU, 34, D * F * 2)
    srd(k, S_WD, 30, D * F * 2)
    k.I("s_lshr_b32", s(29), s(2), 4)
    k.I("s_bfe_u32", s(34), s(2), hex((2 << 16) | 1))
    k.I("s_and_b32", s(35), s(2), 1)
    k.I("s_bitcmp1_b32", s(2), 3)
    k.I("s_cbranch_scc1", f"{U}_P")
    k.I("s_lshl_b32", s(20), s(34), 2)
    k.I("s_and_b32", s(21), s(29), 3)
    k.I("s_add_u32", s(20), s(20), s(21))
    k.I("s_lshl_b32", s(21), s(35), 2)
    k.I("s_lshr_b32", s(22), s(29), 2)
    k.I("s_add_u32", s(21), s(21), s(22))
    k.I("s_and_b32", s(27), s(3), 1)
    k.I("s_lshr_b32", s(28), s(3), 1)
    VX = 4
    k.I("s_mov_b32", s(23), 1152)
    k.I("s_lshl_b32", s(22), s(27), 2)
    k.I("v_add_u32", v(15), s(22), v(15))
    k.I("v_xor_b32", v(15), v(15), v(16))
    k.I("s_lshl_b32", s(22), s(20), 7)
    k.I("s_lshl_b32", s(24), s(27), 4)
    k.I("s_add_u32", s(24), s(24), s(22))
    k.I("v_lshl_add_u32", v(16), v(14), 1, s(24))
    k.I("v_mul_lo_u32", v(16), v(16), s(23))
    k.I("v_lshl_add_u32", v(VX), v(15), 4, v(16))
    k.I("s_add_u32", s(24), s(22), s(27))
    k.I("s_sub_u32", s(24), s(24), 16)
    k.I("v_lshl_add_u32", v(16), v(14), 1, s(24))
    k.I("v_mul_lo_u32", v(16), v(16), s(23))
    k.I("v_lshl_add_u32", v(VX + 1), v(15), 4, v(16))
    k.I("s_mul_i32", s(22), s(28), 14)
    k.I("s_add_u32", s(22), s(22), s(27))
    k.I("s_lshl_b32", s(24), s(22), 6)
    k.I("v_add_u32", v(18), s(24), v(2))
    k.I("s_lshl_b32", s(24), s(22), 10)
    k.I("s_add_u32", s(24), s(24), XB)
    k.I("s_lshl_b32", s(37), s(27), 10)
    k.I("s_mul_i32", s(25), s(21), 144)
    k.I("s_mov_b32", s(26), s(25))
    k.I("s_and_b32", s(34), s(20), 3)
    k.I("s_and_b32", s(35), s(21), 3)
    k.I("s_add_u32", s(34), s(34), s(35))
    k.I("s_lshl_b32", s(34), s(34), 1)
    k.I("s_sub_u32", s(35), s(34), 9)
    k.I("s_cmp_ge_u32", s(34), 9)
    k.I("s_cselect_b32", s(34), s(35), s(34))
    if "norot" in dbg:
        k.I("s_mov_b32", s(34), 0)
    k.I("s_mul_i32", s(35), s(34), 64 * 3456)
    k.I("s_add_u32", s(25), s(25), s(35))
    k.I("s_lshl_b32", s(34), s(34), 7)
    LS.stamp("setup")
    n0 = LS.n
    k.I("s_cmp_lg_u32", s(28), 0)
    k.I("s_cbranch_scc1", f"{U}_A1")
    for cls in range(2):
        if cls == 1:
            k.label(f"{U}_A1")
            k.vmq, k.dsq = [], []
            LS.n, LS.names = n0, LS.names[:n0]
        gemm(k, U, cls, LS, dbg)
        if cls == 0:
            k.I("s_branch", f"{U}_AJ")
    k.label(f"{U}_AJ")
    k.dsq = [(-2, set())]
    k.wait(lg=0)
    k.I("s_barrier")
    LS.stamp("norm")
    k.I("buffer_load_dwordx2", v(248, 2), v(3), s(S_DBG, 4), 0, mods="offen sc1")
    attention(k, U, dbg)
    LS.stamp("attn")
    k.wait(vm=0)
    k.I("s_barrier")
    nonce_wait(k, f"{U}_A")
    k.I("s_cmp_lg_u32", s(3), 0)
    k.I("s_cbranch_scc1", f"{U}_NF")
    k.I("s_lshl_b32", s(24), s(20), 6)
    k.I("s_lshl_b32", s(23), s(21), 3)
    k.I("s_add_u32", s(23), s(23), s(24))
    k.I("s_add_u32", s(23), s(23), hex(WS_F0))
    k.I("buffer_store_dwordx2", v(248, 2), v(3), s(S_WS, 4), s(23), mods="offen sc1")
    k.label(f"{U}_NF")
    LS.stamp("flag")
    if "lsp" not in dbg:
        LS.dump(S_WS, 254, 1)
    k.I("s_branch", f"{U}_JOIN")
    k.label(f"{U}_P")
    k.vmq, k.dsq = [], []
    LS.n, LS.names = 2, LS.names[:2]
    k.I("s_cmp_lg_u32", s(2), 8)
    k.I("s_cbranch_scc1", f"{U}_NN")
    k.I("s_cmp_lg_u32", s(3), 0)
    k.I("s_cbranch_scc1", f"{U}_NN")
    k.I("s_memrealtime", s(22, 2))
    k.wait(lg=0)
    k.I("s_or_b32", s(22), s(22), 1)
    k.I("v_mov_b32", v(4), s(22))
    k.I("v_mov_b32", v(5), s(23))
    k.I("buffer_store_dwordx2", v(4, 2), v(3), s(S_DBG, 4), 0, mods="offen sc1")
    k.vmq.pop()
    k.label(f"{U}_NN")
    if "nowarm" not in dbg:
        k.I("s_mul_i32", s(22), s(34), 512 * 1152)
        k.I("s_mul_i32", s(23), s(29), 33 * 1152)
        k.I("s_add_u32", s(22), s(22), s(23))
        k.I("v_lshlrev_b32", v(8), 4, v(0))
        k.I("v_subrev_u32", v(9), 16 * 1152, v(8))
        k.I("v_add_u32", v(9), s(22), v(9))
        for i in range(10):
            k.I("buffer_load_dwordx4", v(16 + 4 * i, 4), v(9), s(S_X, 4), 0, mods="offen")
            k.I("v_add_u32", v(9), 4096, v(9))
        k.I("s_mul_i32", s(22), s(29), 36 * 3456)
        k.I("s_mul_i32", s(23), s(35), 512)
        k.I("s_add_u32", s(22), s(22), s(23))
        for n in range(17):
            k.I("v_add_u32", v(8), 256 * n, v(0))
            k.I("v_min_u32", v(8), 4319, v(8))
            k.I("v_mul_u32_u24", v(9), 26215, v(8))
            k.I("v_lshrrev_b32", v(9), 20, v(9))
            k.I("v_mul_u32_u24", v(9), 1152 - 640, v(9))
            k.I("v_lshl_add_u32", v(9), v(8), 4, v(9))
            k.I("buffer_load_dwordx4", v(64 + 4 * n, 4), v(9), s(S_QKV, 4), s(22), mods="offen")
    k.I("s_lshl_b32", s(20), s(34), 3)
    k.I("s_and_b32", s(21), s(29), 7)
    k.I("s_add_u32", s(20), s(20), s(21))
    k.I("s_lshl_b32", s(21), s(35), 1)
    k.I("s_lshr_b32", s(22), s(29), 3)
    k.I("s_add_u32", s(21), s(21), s(22))
    k.I("s_mul_i32", s(24), s(21), 288)
    k.I("s_lshl_b32", s(25), s(3), 10)

    def wo_dma(row0, ninstr_total):
        tok = None
        k.auto = False
        for n in range((ninstr_total + 3) // 4):
            cond = (n + 1) * 4 > ninstr_total
            if cond:
                k.I("s_cmp_ge_u32", s(3), ninstr_total - 4 * n)
                k.I("s_cbranch_scc1", f"{U}_WO{row0}")
            k.I("v_add_u32", v(8), 256 * n, v(0))
            k.I("v_mul_u32_u24", v(9), 110377, v(8))
            k.I("v_lshrrev_b32", v(9), 24, v(9))
            k.I("v_mul_u32_u24", v(10), 152, v(9))
            k.I("v_sub_u32", v(8), v(8), v(10))
            k.I("v_min_u32", v(8), 143, v(8))
            k.I("v_mul_u32_u24", v(10), 57, v(8))
            k.I("v_lshrrev_b32", v(10), 10, v(10))
            k.I("v_lshl_add_u32", v(9), v(9), 3, v(10))
            k.I("v_mul_u32_u24", v(9), 1152, v(9))
            k.I("v_mul_u32_u24", v(10), 18, v(10))
            k.I("v_sub_u32", v(8), v(8), v(10))
            k.I("v_lshl_add_u32", v(9), v(8), 4, v(9))
            k.I("s_add_u32", "m0", s(25), n * 4096)
            k.I("buffer_load_dwordx4", v(9), s(S_WO, 4), s(24), mods="offen lds")
        k.label(f"{U}_WO{row0}")
        k.auto = True
        k.wait(vm=0)
        k.I("s_barrier")

    def wo_addr():
        k.I("v_lshrrev_b32", v(12), 4, v(2))
        k.I("v_mul_u32_u24", v(12), BLK, v(12))
        k.I("v_bfe_u32", v(13), v(2), 2, 2)
        k.I("v_mul_u32_u24", v(13), 288, v(13))
        k.I("v_add_u32", v(12), v(12), v(13))
        k.I("v_and_b32", v(13), 3, v(2))
        k.I("v_lshl_add_u32", v(12), v(13), 3, v(12))
        k.I("v_add_u32", v(13), 6 * 4 * BLK, v(12))
        k.I("v_add_u32", v(14), 12 * 4 * BLK, v(12))

    k.I("s_mov_b32", s(4), s(20))
    k.I("s_mov_b32", s(5), s(21))
    wo_addr()
    k.I("s_and_b32", s(22), s(20), 7)
    k.I("s_mul_i32", s(22), s(22), 44 * 1152)
    k.I("s_add_u32", s(22), s(22), 224 * 1152)
    k.I("s_and_b32", s(23), s(24), "0xffffff80")
    k.I("s_add_u32", s(22), s(22), s(23))
    for n in range(5):
        k.I("v_add_u32", v(8), 256 * n, v(0))
        k.I("v_min_u32", v(8), 1055, v(8))
        k.I("v_mul_u32_u24", v(9), 2731, v(8))
        k.I("v_lshrrev_b32", v(9), 16, v(9))
        k.I("v_mul_u32_u24", v(9), 1152 - 384, v(9))
        k.I("v_lshl_add_u32", v(9), v(8), 4, v(9))
        k.I("buffer_load_dwordx4", v(140 + 4 * n, 4), v(9), s(S_WO, 4), s(22), mods="offen")
    wo_dma(0, 67)
    for kb in range(7):
        for r in range(9):
            for h in range(2):
                k.I("ds_read_b64_tr_b16", a(4 * (9 * kb + r) + 2 * h, 2), v(12 + kb // 6),
                    mods=f"offset:{(kb % 6) * 4 * BLK + h * 1152 + r * 32}")
    k.wait(lg=0)
    k.I("s_barrier")
    LS.stamp("wo1")
    k.I("s_and_b32", s(20), s(2), 7)
    k.I("s_lshl_b32", s(20), s(20), 4)
    k.I("s_add_u32", s(20), s(20), s(29))
    k.I("s_lshl_b32", s(21), s(20), 2)
    k.I("s_add_u32", s(21), s(21), s(3))
    k.I("s_mul_i32", s(22), s(3), 36864)
    k.I("s_add_u32", s(23), s(22), 9216)
    k.I("s_add_u32", s(26), s(22), 18432)
    k.I("s_add_u32", s(27), s(22), 27648)
    PR = PrepRegs(sb=30, vb=8, srd_ws=S_WS, srd_g=52, srd_u=56, lane=2)
    PW = PrepRegs(sb=30, vb=48, srd_ws=S_WS, lane=2)
    PR.sc = PW.sc = "sc1"
    PR.ld = PW.ld = "nt"

    def gdec(su, skb, sg):
        k.I("s_mul_i32", s(skb), s(su), 911)
        k.I("s_lshr_b32", s(skb), s(skb), 16)
        k.I("s_mul_i32", s(sg), s(skb), 72)
        k.I("s_sub_u32", s(sg), s(su), s(sg))
    gdec(21, 24, 25)
    k_prep.g_setup(k, PR, 22)
    t0 = k_prep.g_load(k, PR, 22, 25, 24, 0)
    t1 = k_prep.g_load(k, PR, 23, 25, 24, 1)

    def g_first():
        k_prep.g_process(k, PR, 25, 24, 0, t0)
        k.I("v_add_u32", v(PR.vb + 1), 9216, v(PR.vb + 1))
        k_prep.g_process(k, PR, 25, 24, 1, t1)
        k_prep.g_finish(k, PR, 25, 24)
    save = list(k.vmq)
    k.I("s_cmp_ge_u32", s(21), 136)
    k.I("s_cbranch_scc1", f"{U}_PW")
    k.I("s_add_u32", s(28), s(21), 512)
    gdec(28, 32, 33)
    t2 = k_prep.g_load(k, PR, 26, 33, 32, 0)
    t3 = k_prep.g_load(k, PR, 27, 33, 32, 1)
    g_first()
    for i in range(8):
        k.I("v_mov_b32", v(PR.vb + 24 + i), 0)
    k.I("v_add_u32", v(PR.vb + 1), 9216, v(PR.vb + 1))
    k_prep.g_process(k, PR, 33, 32, 0, t2)
    k.I("v_add_u32", v(PR.vb + 1), 9216, v(PR.vb + 1))
    k_prep.g_process(k, PR, 33, 32, 1, t3)
    k_prep.g_finish(k, PR, 33, 32)
    k.I("s_branch", f"{U}_PDONE")
    k.label(f"{U}_PW")
    k.vmq, k.dsq = list(save), []
    k.I("s_cmp_ge_u32", s(21), 424)
    k.I("s_cbranch_scc1", f"{U}_PX")
    k.I("s_sub_u32", s(32), s(21), 136)
    k.I("s_lshl_b32", s(32), s(32), 1)
    k.I("s_add_u32", s(33), s(32), 1)
    k_prep.w_setup(k, PW, 26)
    t2 = k_prep.w_load(k, PW, 26, 32, 60)
    t3 = k_prep.w_load(k, PW, 27, 33, 60)
    g_first()
    k_prep.w_process16(k, PW, 32, WS_WD, t2)
    k.I("v_add_u32", v(PW.vb + 1), 9216, v(PW.vb + 1))
    k_prep.w_process16(k, PW, 33, WS_WD, t3)
    k.I("s_branch", f"{U}_PDONE")
    k.label(f"{U}_PX")
    k.vmq, k.dsq = list(save), []
    g_first()
    k.label(f"{U}_PDONE")
    k.vmq, k.dsq = [(-2, set())], [(-2, set())]
    k.I("v_lshlrev_b32", v(8), 2, v(2))
    k.I("s_lshl_b32", s(22), s(20), 8)
    k.I("s_add_u32", s(22), s(22), hex(WS_F1))
    k.I("s_add_u32", s(23), s(22), hex(WS_F2 - WS_F1))
    k.I("buffer_store_dword", v(3), v(8), s(S_WS, 4), s(22), mods="offen sc1")
    k.I("buffer_store_dword", v(3), v(8), s(S_WS, 4), s(23), mods="offen sc1")
    for i in range(4):
        k.I("v_mov_b32", v(12 + i), -1)
    for e in range(2):
        k.I("s_lshl_b32", s(23), s(20), 1)
        k.I("s_add_u32", s(23), s(23), e)
        k.I("s_add_u32", s(22), s(23), 1)
        k.I("s_and_b32", s(22), s(22), 3)
        k.I("s_lshl_b32", s(23), s(23), 2)
        k.I("s_add_u32", s(22), s(22), s(23))
        k.I("s_mul_i32", s(22), s(22), 18432)
        k.I("s_add_u32", s(22), s(22), hex(WS_PART))
        k.I("v_lshlrev_b32", v(8), 4, v(0))
        for i in range(5):
            if i == 4:
                k.I("v_min_u32", v(8), 2032, v(8))
            k.I("buffer_store_dwordx4", v(12, 4), v(8), s(S_WS, 4), s(22), mods="offen sc1")
            k.I("s_add_u32", s(22), s(22), 4096)
    k.I("buffer_load_dwordx2", v(248, 2), v(3), s(S_DBG, 4), 0, mods="offen sc1")
    k.wait(vm=0, lg=0)
    k.I("s_barrier")
    nonce_wait(k, f"{U}_P")
    k.I("s_cmp_lg_u32", s(3), 0)
    k.I("s_cbranch_scc1", f"{U}_NP")
    k.I("s_lshl_b32", s(23), s(20), 3)
    k.I("s_add_u32", s(23), s(23), hex(WS_FP))
    k.I("buffer_store_dwordx2", v(248, 2), v(3), s(S_WS, 4), s(23), mods="offen sc1")
    k.vmq.pop()
    k.label(f"{U}_NP")
    LS.stamp("prep")
    k.I("s_mov_b32", s(20), s(4))
    k.I("s_mov_b32", s(21), s(5))
    k.I("s_mul_i32", s(24), s(21), 288)
    k.I("s_add_u32", s(24), s(24), 224 * 1152)
    k.I("s_lshl_b32", s(25), s(3), 10)
    wo_addr()
    wo_dma(224, 105)
    WR = 112
    for kb in range(2):
        for r in range(9):
            for h in range(2):
                k.I("ds_read_b64_tr_b16", v(WR + 4 * (9 * kb + r) + 2 * h, 2), v(12),
                    mods=f"offset:{kb * 4 * BLK + h * 1152 + r * 32}")
    k.label(f"{U}_B")
    k.vmq, k.dsq = [], []
    k.I("s_lshl_b32", s(22), s(20), 2)
    k.I("s_add_u32", s(22), s(22), s(3))
    k.I("v_and_b32", v(8), 15, v(2))
    k.I("v_lshrrev_b32", v(9), 4, v(2))
    k.I("v_mul_u32_u24", v(10), 1152, v(8))
    k.I("v_lshl_add_u32", v(10), v(9), 3, v(10))
    k.I("s_mul_i32", s(23), s(22), 16 * 1152)
    k.I("s_mul_i32", s(24), s(21), 288)
    k.I("s_add_u32", s(23), s(23), s(24))
    RES = 184
    for r in range(9):
        k.I("buffer_load_dwordx2", v(RES + 2 * r, 2), v(10), s(S_X, 4), s(23), mods=f"offen offset:{32 * r}")
    k.I("s_lshr_b32", s(24), s(20), 1)
    k.I("s_lshl_b32", s(24), s(24), 6)
    k.I("s_add_u32", s(24), s(24), hex(WS_F0))
    LS.stamp("wo")
    k.I("v_and_b32", v(11), 7, v(2))
    k.I("v_lshlrev_b32", v(11), 3, v(11))
    k.I("s_mov_b32", s(33), 40000)
    k.label(f"{U}_PL")
    k.I("buffer_load_dwordx2", v(6, 2), v(11), s(S_WS, 4), s(24), mods="offen sc1")
    k.wait(vm=0)
    k.I("v_cmp_eq_u64", "vcc", v(248, 2), v(6, 2))
    k.I("s_cmp_eq_u64", "vcc", -1)
    k.I("s_cbranch_scc1", f"{U}_POK")
    k.I("s_sub_u32", s(33), s(33), 1)
    k.I("s_cmp_eq_u32", s(33), 0)
    k.I("s_cbranch_scc1", f"{U}_POK")
    k.I("s_sleep", 2)
    k.I("s_branch", f"{U}_PL")
    k.label(f"{U}_POK")
    LS.stamp("poll")
    OF = 40
    k.I("v_lshlrev_b32", v(11), 4, v(2))
    k.I("s_mul_i32", s(24), s(22), 18 * 1024)
    k.I("s_add_u32", s(24), s(24), hex(WS_O))
    for kb in range(18):
        if kb % 4 == 0 and kb:
            k.I("s_add_u32", s(24), s(24), 4096)
        k.I("buffer_load_dwordx4", v(OF + 4 * kb, 4), v(11), s(S_WS, 4), s(24), mods=f"offen offset:{(kb % 4) * 1024} sc1")
    BACC = 204
    AF = 16
    seq = [(kb, r) for kb in range(9, 18) for r in range(9)]

    def a_read(n):
        kb, r = seq[n]
        kk = kb - 7
        d = AF + 4 * (n % 6)
        for h in range(2):
            k.I("ds_read_b64_tr_b16", v(d + 2 * h, 2), v(12 + kk // 6),
                mods=f"offset:{(kk % 6) * 4 * BLK + h * 1152 + r * 32}")
    for n in range(5):
        a_read(n)
    for kb in range(9):
        for r in range(9):
            ac = v(BACC + 4 * r, 4)
            A_ = a(4 * (9 * kb + r), 4) if kb < 7 else v(WR + 4 * (9 * (kb - 7) + r), 4)
            k.I(MF, ac, A_, v(OF + 4 * kb, 4), ac if kb else 0)
    for n, (kb, r) in enumerate(seq):
        ac = v(BACC + 4 * r, 4)
        k.I(MF, ac, v(AF + 4 * (n % 6), 4), v(OF + 4 * kb, 4), ac)
        if n + 5 < len(seq):
            a_read(n + 5)
    k.I("v_lshlrev_b32", v(10), 4, v(8))
    k.I("v_lshrrev_b32", v(11), 1, v(9))
    k.I("v_lshl_add_u32", v(10), v(11), 8, v(10))
    k.I("v_and_b32", v(11), 1, v(9))
    k.I("v_lshl_add_u32", v(10), v(11), 3, v(10))
    k.I("s_mul_i32", s(23), s(22), 72 * 256)
    k.I("s_mul_i32", s(24), s(21), 18 * 256)
    k.I("s_add_u32", s(23), s(23), s(24))
    k.I("s_add_u32", s(23), s(23), hex(WS_H))
    k.I("s_add_u32", s(24), s(23), 2304)
    LS.stamp("B mfma")
    k.I("s_mul_i32", s(25), s(3), 4608)
    k.I("v_add_u32", v(10), s(25), v(10))
    k.I("v_lshlrev_b32", v(14), 4, v(2))
    k.I("v_add_u32", v(15), s(25), v(14))
    k.I("v_add_u32", v(13), 2304, v(15))
    k.wait(lg=0)
    k.I("s_barrier")
    k.I("v_mov_b32", v(4), 0)
    k.I("v_mov_b32", v(5), 0)
    k.I("v_mov_b32", v(6), "0x3f803f80")
    for r in range(9):
        x = BACC + 4 * r
        t = 16 + 4 * (r % 2)
        for i in range(2):
            k.I("v_lshlrev_b32", v(t + 2 * i), 16, v(RES + 2 * r + i))
            k.I("v_and_b32", v(t + 2 * i + 1), "0xffff0000", v(RES + 2 * r + i))
        for i in range(4):
            k.I("v_add_f32", v(x + i), v(x + i), v(t + i))
        k.I("v_cvt_pk_bf16_f32", v(x), v(x), v(x + 1))
        k.I("v_cvt_pk_bf16_f32", v(x + 1), v(x + 2), v(x + 3))
        k.I("ds_write_b64", v(10), v(x, 2), mods=f"offset:{r * 512}")
        for i in range(2):
            k.I("v_dot2c_f32_bf16", v(4), v(x + i), v(6))
            k.I("v_dot2c_f32_bf16", v(5), v(x + i), v(x + i))
    tile_out(k, 15, 14, 23, 40, "sc1")
    tile_out(k, 13, 14, 24, 52, "sc1")
    reduce_groups(k, [4, 5], 24)
    k.I("v_lshlrev_b32", v(10), 5, v(8))
    k.I("s_lshl_b32", s(23), s(22), 9)
    k.I("s_lshl_b32", s(24), s(21), 3)
    k.I("s_add_u32", s(23), s(23), s(24))
    k.I("s_add_u32", s(23), s(23), hex(WS_ST))
    k.I("buffer_store_dwordx2", v(4, 2), v(10), s(S_WS, 4), s(23), mods="offen sc1")
    k.wait(vm=0)
    k.I("s_barrier")
    k.I("s_cmp_lg_u32", s(3), 0)
    k.I("s_cbranch_scc1", f"{U}_NH")
    k.I("s_lshl_b32", s(22), s(20), 5)
    k.I("s_lshl_b32", s(23), s(21), 3)
    k.I("s_add_u32", s(22), s(22), s(23))
    k.I("s_add_u32", s(22), s(22), hex(WS_FH))
    k.I("buffer_store_dwordx2", v(248, 2), v(3), s(S_WS, 4), s(22), mods="offen sc1")
    k.label(f"{U}_NH")
    LS.stamp("B done")
    if "lsp" in dbg:
        LS.dump(S_WS, 254, 1)
    k.label(f"{U}_JOIN")
    k.vmq, k.dsq = [(-2, set())], []
```

```python
from common import *
from k_frag import f32bits
from collections import deque

RING = 5
STAGE = 16384
NSTG = 19
LDS_WD = RING * STAGE
LDS_CS = LDS_WD + 4 * NSTG * 1024
LDS_TOTAL = LDS_CS + 2304
BUF = 73728
MF = "v_mfma_f32_16x16x32_bf16"
LOG2E = 1.4426950408889634
NSTAT = 8


class Pool:
    def __init__(self, vlo, vhi, alo, ahi):
        self.v = deque(range(vlo, vhi, 4))
        self.a = deque(range(alo, ahi, 4))

    def get(self, kind="any"):
        if kind == "v" or (kind == "any" and not self.a):
            return ("v", self.v.popleft())
        return ("a", self.a.popleft())

    def put(self, r):
        (self.v if r[0] == "v" else self.a).append(r[1])

    def n(self):
        return len(self.v) + len(self.a)


def r4(r):
    return R(r[0], r[1], 4)


def build_cd(dbg="", NA=7):
    k = Kern("kcd_kernel")
    ST = Stamps(k, 64, "stamp" in dbg)
    k.I("s_cmp_ge_u32", s(2), 256)
    k.I("s_cbranch_scc1", "KCD_END")
    ST.stamp()
    emit_cd(k, ST, dbg, NA, False)
    k.label("KCD_END")
    k.I("s_endpgm")
    return k, "grid=(256,1,1) block=(256,1,1) lds=%d" % LDS_TOTAL


def emit_cd(k, ST, dbg, NA, fused, roles=False):
    NG = 2 if roles else 4
    if "stC" in dbg or "stD" in dbg:
        ST2 = Stamps(k, 64, True)
    else:
        ST2 = Stamps(k, 64, False)
    SC = "sc1" if "nosc" not in dbg else ""
    SCI = "sc1" if fused else ""
    LS = LStamps(k, 1, 100, "lsd" in dbg)
    if not fused:
        k.I("s_load_dwordx2", s(4, 2), s(0, 2), KA_WS)
        k.I("v_lshrrev_b32", v(1), 6, v(0))
        k.I("v_and_b32", v(2), 63, v(0))
        k.I("v_readfirstlane_b32", s(3), v(1))
    k.I("s_load_dwordx2", s(6, 2), s(0, 2), KA_OUT)
    k.I("s_bfe_u32", s(16), s(2), hex((2 << 16) | 1))
    k.I("s_bfe_u32", s(17), s(2), hex((2 << 16) | 3))
    k.I("s_and_b32", s(21), s(2), 1)
    k.I("s_lshl_b32", s(21), s(21), 3)
    k.I("s_lshr_b32", s(20), s(2), 5)
    k.I("s_add_u32", s(21), s(21), s(20))
    k.I("s_lshl_b32", s(20), s(16), 2)
    k.I("s_add_u32", s(20), s(20), s(17))
    k.I("v_lshlrev_b32", v(3), 4, v(2))
    k.I("s_lshl_b32", s(22), s(21), 3)
    k.I("s_lshl_b32", s(23), s(3), 1)
    k.I("s_add_u32", s(22), s(22), s(23))
    k.I("s_mul_i32", s(24), s(20), 9 * 18 * 4096)
    k.I("s_add_u32", s(24), s(24), hex(WS_WGU))
    k.I("s_lshl_b32", s(25), s(3), 12)
    k.I("s_add_u32", s(30), s(24), s(25))
    k.I("s_add_u32", s(30), s(30), 72 * 4096)
    k.I("s_mul_i32", s(31), s(3), 18 * 4096)
    k.I("s_add_u32", s(24), s(24), s(31))
    k.I("s_mul_i32", s(26), s(22), 18 * 1024)
    k.I("s_add_u32", s(26), s(26), hex(WS_H))
    k.I("s_add_u32", s(27), s(26), 18 * 1024)
    k.wait(lg=0)
    if not fused:
        srd(k, 8, 4, WS_SIZE)
    srd(k, 12, 6, S * D * 2)

    def nonce_poll(tag, vo, sreg, nld):
        k.I("s_mov_b32", s(60), 40000)
        k.label(f"KCD_Q{tag}")
        for i in range(nld):
            k.I("buffer_load_dwordx4", v(28 + 4 * i, 4), v(vo), s(8, 4), s(sreg), mods=f"offen offset:{16 * i} sc1")
        k.wait(vm=0)
        for i in range(2 * nld):
            k.I("v_cmp_eq_u64", "vcc" if i == 0 else s(56, 2), v(248, 2), v(28 + 2 * i, 2))
            if i:
                k.I("s_and_b64", "vcc", "vcc", s(56, 2))
        k.I("s_cmp_eq_u64", "vcc", -1)
        k.I("s_cbranch_scc1", f"KCD_R{tag}")
        k.I("s_sub_u32", s(60), s(60), 1)
        k.I("s_cmp_eq_u32", s(60), 0)
        k.I("s_cbranch_scc1", f"KCD_R{tag}")
        k.I("s_sleep", 1)
        k.I("s_branch", f"KCD_Q{tag}")
        k.label(f"KCD_R{tag}")

    P = Pool(28, 256, 0, 256)
    X = {(tt, kb): P.get("a") for kb in range(18) for tt in range(2)}
    ACC = {(c, tile, tt): P.get("v") for c in range(4) for tile in range(4) for tt in range(2)}
    CS = [P.get("v") for _ in range(4)]
    WF = {(b, tile): P.get("a") for b in range(3) for tile in range(4)}

    dma_tok = {}
    wtok = {}

    NSTAGE = 18 + 23

    def dma_items(st):
        slot = st % RING

        def one(i):
            def f():
                if i == 0:
                    k.I("s_add_u32", "m0", s(25), slot * STAGE)
                    if st == NSTAGE - 1:
                        k.I("s_and_b32", s(59), s(3), 2)
                        k.I("s_lshl_b32", s(59), s(59), 12)
                        k.I("s_sub_u32", s(30), s(30), s(59))
                sr = 24 if st < 18 else 30
                t = k.I("buffer_load_dwordx4", v(3), s(8, 4), s(sr), mods=f"offen offset:{i * 1024} {SCI} lds")
                if i == 3:
                    dma_tok[st] = t
                    k.I("s_add_u32", s(sr), s(sr), 4096 if st < 18 else STAGE)
            return f
        return [one(i) for i in range(4)]

    def x_items(kb0, kb1):
        L = []
        for kb in range(kb0, kb1):
            for tt in range(2):
                def f(kb=kb, tt=tt):
                    if kb % 4 == 0 and kb:
                        k.I("s_add_u32", s(26 + tt), s(26 + tt), 4096)
                    k.I("buffer_load_dwordx4", r4(X[(tt, kb)]), v(3), s(8, 4), s(26 + tt), mods=f"offen offset:{(kb % 4) * 1024} {SCI}")
                L.append(f)
        return L

    if fused:
        k.I("v_lshlrev_b32", v(4), 5 if not roles else 4, v(2))
        k.I("s_mov_b32", s(59), hex(WS_F0 if not roles else WS_FP))
        nonce_poll("a", 4, 59, 2 if not roles else 1)
        for st in range(3):
            for f in dma_items(st):
                f()
        k.I("v_and_b32", v(4), 7 if not roles else 3, v(2))
        k.I("v_lshlrev_b32", v(4), 4, v(4))
        k.I("s_lshl_b32", s(59), s(21), 7 if not roles else 6)
        k.I("s_add_u32", s(59), s(59), hex(WS_FH))
        nonce_poll("b", 4, 59, 1)
        ST.stamp()
        for f in x_items(0, 3):
            f()
    else:
        for st in range(3):
            for f in dma_items(st) + x_items(st, st + 1):
                f()
    k.I("v_add_u32", v(4), 3 * STAGE, v(3))
    k.I("s_mul_i32", s(61), s(3), NSTG * 1024)
    k.I("s_add_u32", s(61), s(61), LDS_WD)
    k.I("v_add_u32", v(5), s(61), v(3))
    k.I("v_add_u32", v(14), 144 * 1024, v(3))
    k.I("v_mov_b32", v(15), 0)
    k.I("s_mul_i32", s(28), s(22), 144 * 1024)
    k.I("s_mul_i32", s(29), s(20), 9 * 1024)
    k.I("s_add_u32", s(28), s(28), s(29))
    k.I("s_add_u32", s(28), s(28), hex(WS_HH))
    k.I("s_mul_i32", s(53), s(16), 36)
    k.I("s_mul_i32", s(54), s(3), 9)
    k.I("s_add_u32", s(53), s(53), s(54))
    k.I("s_mul_i32", s(32), s(53), 36864)
    k.I("s_mul_i32", s(54), s(17), 9216)
    k.I("s_add_u32", s(32), s(32), s(54))
    k.I("s_add_u32", s(32), s(32), hex(WS_WD))
    k.I("s_lshl_b32", s(54), s(21), 2)
    k.I("s_add_u32", s(55), s(54), s(16))
    k.I("s_lshl_b32", s(55), s(55), 2)
    k.I("s_add_u32", s(40), s(55), s(3))
    k.I("s_lshl_b32", s(40), s(40), 7)
    k.I("s_add_u32", s(40), s(40), hex(WS_F1))
    k.I("s_add_u32", s(44), s(55), s(17))
    k.I("s_lshl_b32", s(44), s(44), 7)
    k.I("s_lshl_b32", s(56), s(3), 2)
    k.I("s_add_u32", s(44), s(44), s(56))
    k.I("s_add_u32", s(44), s(44), hex(WS_F1))
    k.I("s_add_u32", s(55), s(54), s(17))
    k.I("s_lshl_b32", s(55), s(55), 2)
    for p in range(4):
        k.I("s_add_u32", s(56), s(16), p + 1)
        k.I("s_and_b32", s(56), s(56), 3)
        k.I("s_lshl_b32", s(57), s(21), 2)
        k.I("s_add_u32", s(57), s(57), s(56))
        k.I("s_mul_i32", s(57), s(57), 288)
        k.I("s_add_u32", s(57), s(57), s(53))
        k.I("s_lshl_b32", s(57), s(57), 10)
        k.I("s_add_u32", s(36 + p), s(57), hex(WS_HH))
        k.I("s_add_u32", s(57), s(55), s(56))
        if p < 3:
            k.I("s_lshl_b32", s(58), s(57), 2)
            k.I("s_add_u32", s(58), s(58), s(16))
            k.I("s_mul_i32", s(58), s(58), 18432)
            k.I("s_add_u32", s(45 + p), s(58), hex(WS_PART))
            k.I("s_lshl_b32", s(58), s(57), 5)
            k.I("s_lshl_b32", s(59), s(3), 2)
            k.I("s_add_u32", s(58), s(58), s(59))
            k.I("s_add_u32", s(58), s(58), s(16))
            k.I("s_lshl_b32", s(58), s(58), 2)
            k.I("s_add_u32", s(48 + p), s(58), hex(WS_F2))
        else:
            k.I("s_mul_i32", s(51), s(57), 4 * 18432)
            k.I("s_add_u32", s(51), s(51), hex(WS_PART))
            k.I("s_lshl_b32", s(52), s(57), 7)
            k.I("s_lshl_b32", s(59), s(3), 4)
            k.I("s_add_u32", s(52), s(52), s(59))
            k.I("s_add_u32", s(52), s(52), hex(WS_F2))

    tS = [P.get("v") for _ in range(2 * NG)]
    tC = [P.get("v") for _ in range(9)]

    def stat_loads(tS, sbase_reg, ntt=2):
        L = []
        for tt in range(ntt):
            for i in range(NG):
                L.append(lambda tt=tt, i=i: k.I("buffer_load_dwordx4", r4(tS[NG * tt + i]), v(7), s(8, 4), s(sbase_reg),
                                                mods=f"offen offset:{tt * 256 * NG + 16 * i} {SCI}"))
        return L

    def stat_math(t4, dmean, drstd):
        b = [g[1] for g in t4]
        L = []
        for (x, y) in (((0, 1), (2, 3), (0, 2)) if NG == 4 else ((0, 1),)):
            for i in range(4):
                L.append(lambda x=x, y=y, i=i: k.I("v_add_f32", v(b[x] + i), v(b[x] + i), v(b[y] + i)))
        L.append(lambda: k.I("v_add_f32", v(b[0]), v(b[0]), v(b[0] + 2)))
        L.append(lambda: k.I("v_add_f32", v(b[0] + 1), v(b[0] + 1), v(b[0] + 3)))
        L.append(lambda: k.I("v_mul_f32", v(b[0]), hex(f32bits(-1.0 / 576)), v(b[0])))
        L.append(lambda: k.I("v_mul_f32", v(b[0] + 1), hex(f32bits(1.0 / 576)), v(b[0] + 1)))
        L.append(lambda: k.I("v_fma_f32", v(b[0] + 1), f"-{v(b[0])}", v(b[0]), v(b[0] + 1)))
        L.append(lambda: k.I("v_max_f32", v(b[0] + 1), 0, v(b[0] + 1)))
        L.append(lambda: k.I("v_add_f32", v(b[0] + 1), hex(f32bits(1e-5)), v(b[0] + 1)))
        L.append(lambda: k.I("v_rsq_f32", v(drstd), v(b[0] + 1)))
        if dmean is not None:
            L.append(lambda: k.I("v_mov_b32", v(dmean), v(b[0])))
        return L

    k.I("v_and_b32", v(7), 15, v(2))
    k.I("v_lshlrev_b32", v(7), 6 if NG == 4 else 5, v(7))
    k.I("s_lshl_b32", s(23), s(22), 10 if NG == 4 else 9)
    k.I("s_add_u32", s(23), s(23), hex(WS_ST))
    k.I("v_min_u32", v(24), 143, v(0))
    k.I("v_lshlrev_b32", v(24), 4, v(24))
    k.I("s_mul_i32", s(31), s(20), 2304)
    k.I("s_add_u32", s(31), s(31), hex(WS_CS))
    k.I("v_lshrrev_b32", v(6), 4, v(2))
    k.I("v_lshlrev_b32", v(6), 4, v(6))
    k.I("v_add_u32", v(6), LDS_CS, v(6))

    def cs_loads():
        L = []
        for p in range(9):
            def f(p=p):
                k.I("buffer_load_dwordx4", r4(tC[p]), v(24), s(8, 4), s(31), mods=f"offen {SCI}")
                if p < 8:
                    k.I("s_add_u32", s(31), s(31), 36864)
            L.append(f)
        return L

    def startup_math():
        L = []
        for tt in range(2):
            L += stat_math(tS[NG * tt:NG * tt + NG], 8 + tt, 10 + tt)
            L.append(lambda tt=tt: k.I("v_mul_f32", v(10 + tt), hex(f32bits(-LOG2E)), v(10 + tt)))
            L.append(lambda tt=tt: k.I("v_mul_f32", v(12 + tt), v(10 + tt), v(8 + tt)))
        for p in range(1, 9):
            for i in range(4):
                L.append(lambda p=p, i=i: k.I("v_add_f32", v(tC[0][1] + i), v(tC[0][1] + i), v(tC[p][1] + i)))
        L.append(lambda: k.I("v_add_u32", v(24), LDS_CS, v(24)))
        L.append(lambda: k.I("ds_write_b128", v(24), r4(tC[0])))

        def rel():
            for g in tS + tC:
                P.put(g)
        L.append(rel)
        return L

    def w_read(q, tile):
        st, r = divmod(q, 4)
        slot = st % RING
        wtok[(q, tile)] = k.I("ds_read_b128", r4(WF[(q % 3, tile)]), v(3 + slot // 3),
                              mods=f"offset:{(slot % 3) * STAGE + r * 4096 + tile * 1024}")

    hh_store_tok = {}

    def epi_items(c):
        L = []
        st = c
        for tile in range(4):
            L.append(lambda tile=tile: k.I("ds_read_b128", r4(CS[tile]), v(6), mods=f"offset:{c * 256 + tile * 64}"))
        for tt in range(2):
            g = [ACC[(st, e // 4, tt)][1] + e % 4 for e in range(8)]
            u = [ACC[(st, 2 + e // 4, tt)][1] + e % 4 for e in range(8)]
            cg = [CS[e // 4][1] + e % 4 for e in range(8)]
            cu = [CS[2 + e // 4][1] + e % 4 for e in range(8)]
            for e in range(8):
                L.append(lambda e=e, g=g, tt=tt: k.I("v_mul_f32", v(g[e]), v(10 + tt), v(g[e])))
            for e in range(8):
                L.append(lambda e=e, g=g, cg=cg, tt=tt: k.I("v_fmac_f32", v(g[e]), v(12 + tt), v(cg[e])))
            for e in range(8):
                L.append(lambda e=e, g=g: k.I("v_exp_f32", v(g[e]), v(g[e])))
                L.append(lambda e=e, u=u, cu=cu, tt=tt: k.I("v_fmac_f32", v(u[e]), v(8 + tt), v(cu[e])))
            for e in range(8):
                L.append(lambda e=e, g=g: k.I("v_add_f32", v(g[e]), 1.0, v(g[e])))
            for e in range(8):
                L.append(lambda e=e, g=g: k.I("v_rcp_f32", v(g[e]), v(g[e])))
            for e in range(8):
                L.append(lambda e=e, g=g, u=u: k.I("v_mul_f32", v(u[e]), v(g[e]), v(u[e])))
            for i in range(4):
                L.append(lambda i=i, u=u, tt=tt: k.I("v_cvt_pk_bf16_f32", v(16 + 4 * tt + i), v(u[2 * i]), v(u[2 * i + 1])))

            def stf(tt=tt):
                if c % 4 == 0 and c and tt == 0:
                    k.I("s_add_u32", s(28), s(28), 4096)
                tk = k.I("buffer_store_dwordx4", v(16 + 4 * tt, 4), v(3 if tt == 0 else 14), s(8, 4), s(28),
                         mods=f"offen offset:{(c % 4) * 1024} {SC}")
                if tt == 1:
                    hh_store_tok[c] = tk
            L.append(stf)

        def rel():
            for tile in range(4):
                for tt in range(2):
                    P.put(ACC.pop((c, tile, tt)))
        L.append(rel)
        return L

    def flag_store(tokfn, sreg, val):
        def f():
            k.wait_vm(tokfn())
            k.I("v_mov_b32", v(25), val)
            k.I("buffer_store_dword", v(25), v(15), s(8, 4), s(sreg), mods=f"offen {SC}")
        return f

    npoll = [0]

    def poll_issue(sreg, dst):
        return k.I("buffer_load_dwordx4", r4(dst), v(15), s(8, 4), s(sreg), mods=f"offen {SC}")

    def poll_check(sreg, dst, level, skip_reg=None, skip2=None):
        npoll[0] += 1
        n = npoll[0]
        b = dst[1]

        def test():
            if skip_reg is not None:
                for i in range(4):
                    k.I("s_cmp_eq_u32", s(skip_reg), i)
                    k.I("s_cselect_b32", s(59), level, 0)
                    k.I("v_max_u32", v(b + i), s(59), v(b + i))
                    if skip2 is not None:
                        k.I("s_cmp_eq_u32", s(skip2), i)
                        k.I("s_cselect_b32", s(59), level, 0)
                        k.I("v_max_u32", v(b + i), s(59), v(b + i))
            k.I("v_min_u32", v(b), v(b), v(b + 1))
            k.I("v_min_u32", v(b + 2), v(b + 2), v(b + 3))
            k.I("v_min_u32", v(b), v(b), v(b + 2))
            k.I("v_readfirstlane_b32", s(59), v(b))
            k.I("s_cmp_ge_u32", s(59), level)
        test()
        k.I("s_cbranch_scc1", f"KCD_PD{n}")
        k.I("s_mov_b32", s(60), 20000)
        k.label(f"KCD_PL{n}")
        save = (list(k.vmq), list(k.dsq))
        k.I("s_sub_u32", s(60), s(60), 1)
        k.I("s_cmp_eq_u32", s(60), 0)
        k.I("s_cbranch_scc1", f"KCD_PD{n}")
        k.I("s_sleep", 1)
        poll_issue(sreg, dst)
        k.wait(vm=0)
        test()
        k.I("s_cbranch_scc0", f"KCD_PL{n}")
        k.vmq, k.dsq = save
        k.label(f"KCD_PD{n}")

    WD = {}
    HH = {}

    def wd_load(i, r):
        def f():
            WD[(i, r)] = P.get()
            k.I("s_add_u32", s(59), s(32), i * 36864 + (r // 4) * 4096)
            k.I("buffer_load_dwordx4", r4(WD[(i, r)]), v(3), s(8, 4), s(59), mods=f"offen offset:{(r % 4) * 1024} {SCI}")
        return f

    def hh_load(p, i, tt):
        def f():
            HH[(p, i, tt)] = P.get()
            if i >= 4:
                k.I("s_add_u32", s(59), s(36 + p), (i // 4) * 4096)
            k.I("buffer_load_dwordx4", r4(HH[(p, i, tt)]), v(3 if tt == 0 else 14), s(8, 4), s(59) if i >= 4 else s(36 + p),
                mods=f"offen offset:{(i % 4) * 1024} {SC}")
        return f

    def sync(st):
        k.wait_vm(dma_tok[st])
        k.I("s_barrier")

    staged = [(5, r) for r in range(9)] + [(6, r) for r in range(9)] + [(7, 0)]
    staged.sort(key=lambda x: (x[1], x[0]))
    stg_tok = {}

    def wd_stage(n):
        i, r = staged[n]

        def f():
            k.I("s_add_u32", "m0", s(61), n * 1024)
            k.I("s_add_u32", s(59), s(32), i * 36864 + r * 1024)
            stg_tok[n] = k.I("buffer_load_dwordx4", v(3), s(8, 4), s(59), mods=f"offen {SCI} lds")
        return f

    def wd_unstage(n):
        def f():
            WD[staged[n]] = P.get()
            k.wait_vm(stg_tok[n])
            k.I("ds_read_b128", r4(WD[staged[n]]), v(5), mods=f"offset:{n * 1024}")
        return f

    seq = [(c, kb) for kb in range(18) for c in range(4)] + [(c, kb) for c in range(4, 9) for kb in range(18)]
    NU = len(seq)
    vq = deque()
    sync(0)
    ST.stamp()
    for q in range(2):
        for tile in range(4):
            w_read(q, tile)
    vq += dma_items(3) + x_items(3, 4)
    pollreg = None
    lateq = deque()
    side = deque()
    wdq = deque()
    pace = 1.0
    credit = 0.0
    allw = deque([wd_load(i, r) for r in range(9) for i in range(5)])
    for q, (c, kb) in enumerate(seq):
        if q == 24:
            vq += stat_loads(tS, 23) + cs_loads()
        if q == 48:
            side += startup_math()
            pace = 1.0
        if q >= 72 and kb == 0:
            if "stC" in dbg:
                ST2.stamp()
            while side:
                it = side.popleft()
                if it is not None:
                    it()
            for tile in range(4):
                for tt in range(2):
                    ACC[(c, tile, tt)] = P.get("v")
            drain = {4: [0, 1], 5: [2, 3], 6: [4, 5], 7: [6], 8: [7]}[c]
            first_gap = True
            for d in drain:
                side += epi_items(d)
            pace = len(side) / (130.0 if len(drain) > 1 else 90.0)
            if c == 4:
                wdq += [wd_stage(n) for n in range(NSTG)]
        un = q + 2
        for m in range(8):
            tile, tt = divmod(m, 2)
            if m == 0:
                k.wait_ds(wtok[(q, 3)])
            ac = r4(ACC[(c, tile, tt)])
            k.I(MF, ac, r4(WF[(q % 3, tile)]), r4(X[(tt, kb)]), ac if kb else 0)
            nf = 0
            if un < NU and m % 2 == 0:
                if m == 0 and un % 4 == 0:
                    stn = un // 4
                    if stn == 17:
                        while side:
                            side.popleft()()
                        k.wait(lg=0)
                    sync(stn)
                    if stn + RING - 2 < NSTAGE:
                        vq += dma_items(stn + RING - 2)
                        if stn + RING - 2 < 18:
                            vq += x_items(stn + RING - 2, stn + RING - 1)
                w_read(un, m // 2)
                nf += 1
            elif vq:
                vq.popleft()()
                nf += 1
            elif wdq and m == 3:
                wdq.popleft()()
                nf += 1
            elif allw and q >= 72 and m == 5 and P.n() > (17 if c < 6 else 9):
                allw.popleft()()
                nf += 1
            elif lateq and P.n() > 0:
                lateq.popleft()()
                nf += 1
            credit += pace
            if q >= 72 and kb == 0 and m < 3:
                credit = 0.0
            while side and credit >= 1.0 and nf < 3:
                side.popleft()()
                credit -= 1.0
                nf += 1
            if not side:
                credit = 0.0
        if c == NA and kb == 16:
            assert not side
            flag_store(lambda: hh_store_tok[NA - 1], 44, 1)()
        if c == 8:
            for tt in range(2):
                P.put(X[(tt, kb)])
            if kb == 0:
                assert not allw and not wdq, (len(allw), len(wdq))
                pollreg = P.get("v")
                lateq += [wd_unstage(n) for n in range(6)]
            if kb == 6:
                poll_issue(40, pollreg)
            if kb == 8:
                poll_check(40, pollreg, 1)
                lateq.extendleft(reversed([hh_load(0, i, tt) for i in range(NA) for tt in range(2)]))
                lateq += [wd_unstage(n) for n in range(6, NSTG)]
    while side:
        side.popleft()()
    ST.stamp()
    for g in WF.values():
        P.put(g)
    while lateq:
        lateq.popleft()()

    k.I("v_mul_u32_u24", v(4), 18432, v(1))
    k.I("v_add_u32", v(4), v(4), v(3))
    k.I("v_add_u32", v(5), BUF, v(4))
    k.I("v_lshl_add_u32", v(26), v(1), 10, v(3))
    k.I("v_and_b32", v(27), 1, v(1))
    k.I("v_lshl_add_u32", v(27), v(27), 10, v(3))
    k.I("v_add_u32", v(27), 16384, v(27))
    lateq += [hh_load(1, i, tt) for i in range(NA) for tt in range(2)]
    lateq += [wd_load(i, r) for r in range(9) for i in range(NA, 9) if (i, r) not in staged]
    lateq += [hh_load(2, i, tt) for i in range(NA) for tt in range(2)]

    side = deque(epi_items(8))

    def rel_c():
        for g in CS:
            P.put(g)
    side.append(rel_c)

    red_tok = {}
    red_done = {}

    def reduce_items(p):
        L = []
        buf = (p % 2) * BUF
        T = [("v", 16), ("v", 20)]
        extra = []

        def start():
            extra.append(P.get("v"))
            extra.append(P.get("v"))
        L.append(start)
        for n in range(5):
            def rd(n=n):
                regs = T + extra
                k.I("v_add_u32", v(24), buf + (n * 4096 if n < 4 else 0), v(26 if n < 4 else 27))
                for w2 in range(4):
                    k.I("ds_read_b128", r4(regs[w2]), v(24), mods=f"offset:{w2 * 18432}")
            L.append(rd)
            L += [None] * 3
            for (x, y) in ((0, 1), (2, 3), (0, 2)):
                for i in range(4):
                    L.append(lambda x=x, y=y, i=i: k.I("v_add_f32", v((T + extra)[x][1] + i), v((T + extra)[x][1] + i), v((T + extra)[y][1] + i)))

            def stf(n=n):
                if n < 4 and n:
                    k.I("s_add_u32", s(59), s(45 + p), n * 4096)
                red_tok[p] = k.I("buffer_store_dwordx4", r4(T[0]), v(26 if n < 4 else 27), s(8, 4),
                                 s(59) if 0 < n < 4 else s(45 + p), mods=f"offen {SC}")
            L.append(stf)

        def fin():
            P.put(extra[0])
            P.put(extra[1])
            red_done[p] = red_tok[p]
        L.append(fin)
        return L

    passes = [(0, list(range(NA)), True), (1, list(range(NA)), True), (0, list(range(NA, 9)), False),
              (1, list(range(NA, 9)), False), (2, list(range(9)), True), (3, list(range(9)), True)]
    WDLY = 4
    pend_w = deque()
    events = {}

    def at(pi, mi, fn):
        events.setdefault((pi, mi), []).append(fn)

    def barrier():
        k.wait(lg=0)
        k.I("s_barrier")

    at(0, 2, barrier)
    at(0, 120, flag_store(lambda: hh_store_tok[8], 44, 2))
    nA = 18 * NA
    at(1, nA - 60, lambda: poll_issue(40, pollreg))

    def lvl2():
        poll_check(40, pollreg, 2)
        P.put(pollreg)
        lateq.extendleft(reversed([hh_load(p, i, tt) for p in range(2) for i in range(NA, 9) for tt in range(2)]))
        lateq.extend([hh_load(2, i, tt) for i in range(NA, 9) for tt in range(2)])
        lateq.extend([hh_load(3, i, tt) for i in range(9) for tt in range(2)])
    at(1, nA - 36, lvl2)

    def b_red(p):
        def f():
            while side:
                it = side.popleft()
                if it is not None:
                    it()
            barrier()
            side.extend(reduce_items(p))
        return f
    at(3, 8, b_red(0))
    at(4, 20, b_red(1))
    at(4, 90, flag_store(lambda: red_done[0], 48, 1))
    at(4, 158, flag_store(lambda: red_done[1], 49, 1))
    at(5, 8, b_red(2))
    if not fused:
        at(5, 100, flag_store(lambda: red_done[2], 50, 1))

    fin = {}

    def fin_setup():
        k.I("s_lshl_b32", s(53), s(21), 3)
        k.I("s_lshl_b32", s(54), s(16), 1)
        k.I("s_add_u32", s(53), s(53), s(54))
        k.I("s_and_b32", s(54), s(3), 1)
        k.I("s_add_u32", s(53), s(53), s(54))
        k.I("s_lshl_b32", s(23), s(53), 10 if NG == 4 else 9)
        k.I("s_add_u32", s(23), s(23), hex(WS_ST))
        fin["st"] = [P.get("v") for _ in range(NG)]
        for f in stat_loads(fin["st"], 23, 1):
            f()
        k.I("s_mul_i32", s(54), s(53), 72 * 256)
        k.I("s_mul_i32", s(55), s(17), 18 * 256)
        k.I("s_add_u32", s(54), s(54), s(55))
        k.I("s_add_u32", s(54), s(54), hex(WS_H))
        k.I("s_lshr_b32", s(56), s(3), 1)
        k.I("s_lshl_b32", s(55), s(56), 9)
        k.I("s_add_u32", s(55), s(55), s(54))
        k.I("s_add_u32", s(54), s(54), 4096)
        k.I("v_and_b32", v(8), 15, v(2))
        k.I("v_lshlrev_b32", v(9), 4, v(8))
        k.I("v_lshrrev_b32", v(10), 5, v(2))
        k.I("v_lshl_add_u32", v(9), v(10), 8, v(9))
        k.I("v_bfe_u32", v(10), v(2), 4, 1)
        k.I("v_lshl_add_u32", v(9), v(10), 3, v(9))
        fin["res"] = [P.get("v") for _ in range(3)]
        for n in range(5):
            g = fin["res"][n // 2]
            k.I("buffer_load_dwordx2", v(g[1] + 2 * (n % 2), 2), v(9), s(8, 4), s(55) if n < 4 else s(54),
                mods=f"offen offset:{n * 1024 if n < 4 else 0} {SCI}")
        k.I("v_mul_u32_u24", v(9), 1152, v(8))
        k.I("v_lshrrev_b32", v(10), 4, v(2))
        k.I("v_lshl_add_u32", v(9), v(10), 3, v(9))
        k.I("s_mul_i32", s(53), s(53), 16 * 1152)
        k.I("s_mul_i32", s(54), s(17), 288)
        k.I("s_add_u32", s(53), s(53), s(54))
        k.I("s_lshl_b32", s(54), s(56), 5)
        k.I("s_add_u32", s(54), s(54), s(53))
        fin["poll"] = P.get("v")
    at(5, 40, fin_setup)
    at(5, 100, lambda: side.extend(stat_math(fin["st"], None, 11)))
    fin["rp"] = {}

    def rp_loads(d, alloc=True):
        k.I("s_add_u32", s(57), s(16), d)
        k.I("s_and_b32", s(57), s(57), 3)
        k.I("s_mul_i32", s(57), s(57), 18432)
        k.I("s_add_u32", s(57), s(57), s(51))
        for n in range(5):
            if alloc:
                fin["rp"][(d, n)] = P.get("v")
            g = fin["rp"][(d, n)]
            if 0 < n < 4:
                k.I("s_add_u32", s(58), s(57), n * 4096)
            k.I("buffer_load_dwordx4", r4(g), v(26 if n < 4 else 27), s(8, 4), s(58) if 0 < n < 4 else s(57), mods=f"offen {SC}")

    if fused:
        def early_rp():
            k.I("s_add_u32", s(62), s(16), 1)
            k.I("s_and_b32", s(62), s(62), 3)
            poll_check(52, fin["poll"], 1, skip_reg=16, skip2=62)
            rp_loads(3)
            rp_loads(2)
        at(5, 70, lambda: poll_issue(52, fin["poll"]))
        at(5, 100, early_rp)
        at(5, 140, lambda: rp_loads(1))

        def fin_loads():
            k.I("s_mov_b32", s(60), 20000)
            k.label("KCD_SL")
            b = [fin["rp"][(1, n)][1] for n in range(5)]
            k.I("v_max3_u32", v(24), v(b[0]), v(b[0] + 1), v(b[0] + 2))
            regs = [b[0] + 3] + [b[n] + i for n in range(1, 5) for i in range(4)]
            while len(regs) >= 2:
                k.I("v_max3_u32", v(24), v(24), v(regs.pop()), v(regs.pop()))
            k.I("v_max_u32", v(24), v(24), v(regs.pop()))
            k.I("v_cmp_eq_u32", "vcc", -1, v(24))
            k.I("s_cbranch_vccz", "KCD_SD")
            k.I("s_sub_u32", s(60), s(60), 1)
            k.I("s_cmp_eq_u32", s(60), 0)
            k.I("s_cbranch_scc1", "KCD_SD")
            rp_loads(1, alloc=False)
            k.wait(vm=0)
            k.I("s_branch", "KCD_SL")
            k.label("KCD_SD")
    else:
        at(5, 120, lambda: poll_issue(52, fin["poll"]))

        def fin_loads():
            poll_check(52, fin["poll"], 1, skip_reg=16)
            for d in range(1, 4):
                rp_loads(d)

    for pi, (p, il, first) in enumerate(passes):
        wbase = 4 + p % 2
        accs = {}
        if "stD" in dbg:
            ST2.stamp()

        def acc_get(r):
            accs[r] = [P.get(), P.get()]
            if not first:
                for tt in range(2):
                    k.I("ds_read_b128", r4(accs[r][tt]), v(wbase), mods=f"offset:{(2 * r + tt) * 1024}")
        ahead = 1 if first else 4
        for r in range(ahead):
            acc_get(r)
        mi = 0
        for r in range(9):
            LS.stamp(f"p{pi}r{r}")
            for n_i, i in enumerate(il):
                for tt in range(2):
                    while (i, r) not in WD or (p, i, tt) not in HH:
                        lateq.popleft()()
                    ac = r4(accs[r][tt])
                    k.I(MF, ac, r4(WD[(i, r)]), r4(HH[(p, i, tt)]), 0 if (first and n_i == 0) else ac)
                    nf = 0
                    for fn in events.pop((pi, mi), []):
                        fn()
                        nf += 1
                    if pend_w and pend_w[0][0] <= 0:
                        pend_w.popleft()[1]()
                        nf += 1
                    pend_w = deque((cd - 1, fn) for cd, fn in pend_w)
                    if lateq and P.n() > 6 and nf < 2 and mi % 2 == 1:
                        lateq.popleft()()
                        nf += 1
                    while side and nf < 2:
                        it = side.popleft()
                        if it is None:
                            break
                        it()
                        nf += 1
                    if r == 8:
                        P.put(HH.pop((p, i, tt)))
                    if pi == 5 and tt == 1:
                        P.put(WD.pop((i, r)))
                    mi += 1
            for tt in range(2):
                def wr(r=r, tt=tt, g=accs[r][tt], wbase=wbase):
                    k.I("ds_write_b128", v(wbase), r4(g), mods=f"offset:{(2 * r + tt) * 1024}")
                    P.put(g)
                pend_w.append((WDLY + tt, wr))
            if r + ahead < 9:
                acc_get(r + ahead)
        if pi == 1 or pi == 2:
            pass
    assert not events, events.keys()
    ST.stamp()
    if "stD" in dbg:
        ST2.stamp()
    while pend_w:
        pend_w.popleft()[1]()
    while side:
        it = side.popleft()
        if it is not None:
            it()
    LS.stamp("mfma end")
    if not fused:
        fin_loads()
    if "stD" in dbg:
        ST2.stamp()
    barrier()
    ST.stamp()
    for n in range(5):
        regs = [P.get("v") for _ in range(4)]
        k.I("v_add_u32", v(24), BUF + (n * 4096 if n < 4 else 0), v(26 if n < 4 else 27))
        for w2 in range(4):
            k.I("ds_read_b128", r4(regs[w2]), v(24), mods=f"offset:{w2 * 18432}")
        fin[("own", n)] = regs
    if fused:
        k.wait(vm=0)
        fin_loads()
    LS.stamp("fin loads")
    for n in range(5):
        b = [g[1] for g in fin[("own", n)]]
        rp = [fin["rp"][(d, n)][1] for d in range(1, 4)]
        for i in range(4):
            k.I("v_add_f32", v(b[0] + i), v(b[0] + i), v(b[1] + i))
            k.I("v_add_f32", v(b[2] + i), v(b[2] + i), v(b[3] + i))
            k.I("v_add_f32", v(rp[0] + i), v(rp[0] + i), v(rp[1] + i))
        for i in range(4):
            k.I("v_add_f32", v(b[0] + i), v(b[0] + i), v(b[2] + i))
            k.I("v_add_f32", v(rp[0] + i), v(rp[0] + i), v(rp[2] + i))
        for i in range(4):
            k.I("v_add_f32", v(b[0] + i), v(b[0] + i), v(rp[0] + i))
        rs = fin["res"][n // 2][1] + 2 * (n % 2)
        for i in range(2):
            k.I("v_lshlrev_b32", v(b[1] + 2 * i), 16, v(rs + i))
            k.I("v_and_b32", v(b[1] + 2 * i + 1), "0xffff0000", v(rs + i))
        for i in range(4):
            k.I("v_fma_f32", v(b[0] + i), v(b[0] + i), v(11), v(b[1] + i))
        k.I("v_cvt_pk_bf16_f32", v(b[2]), v(b[0]), v(b[0] + 1))
        k.I("v_cvt_pk_bf16_f32", v(b[2] + 1), v(b[0] + 2), v(b[0] + 3))
        k.I("buffer_store_dwordx2", v(b[2], 2), v(9), s(12, 4), s(54) if n < 4 else s(53),
            mods=f"offen offset:{n * 64 if n < 4 else 256}")
    ST.stamp()
    ST.dump(8, 16, 2)
    if "stD" in dbg:
        ST2.stamp()
    ST2.dump(8, 16, 2)
    LS.stamp("end")
    LS.dump(8, 16, 1)
```

```python
from common import *
import k_ab4, k_cd


def build_f(dbg=""):
    k = Kern(NAME + "_kernel")
    ST = Stamps(k, 64, "stamp" in dbg)
    k.I("s_cmp_ge_u32", s(2), 256)
    k.I("s_cbranch_scc1", "KF_END")
    ST.stamp()
    k.I("s_getpc_b64", s(36, 2))
    k.label("KF_PC")
    k.I("s_lshr_b32", s(38), s(2), 3)
    k.I("s_lshl_b32", s(38), s(38), 12)
    k.I("v_lshlrev_b32", v(4), 4, v(0))
    k.I("v_add_u32", v(4), s(38), v(4))
    k.raw("    v_min_u32 v4, KF_END-KF_PC-16, v4")
    k.I("global_load_dwordx4", v(250, 4), v(4), s(36, 2))
    k_ab4.emit_ab(k, "KAB", dbg)
    ST.stamp()
    k.I("s_barrier")
    k_cd.emit_cd(k, ST, dbg, 7, True, roles=True)
    k.label("KF_END")
    k.I("s_endpgm")
    return k, "grid=(256,1,1) block=(256,1,1) lds=%d" % k_cd.LDS_TOTAL
```

```python
import sys, os
sys.path.insert(0, os.path.dirname(__file__))
from gen import *
import importlib
mod = importlib.import_module(sys.argv[2])
build([mod.build_f(sys.argv[3] if len(sys.argv) > 3 else "")], sys.argv[1])
```

```python
from common import *
from k_frag import f32bits
import k_prep
from k_prep import PrepRegs
from k_a2 import reduce_groups

MF = "v_mfma_f32_16x16x32_bf16"
XB = 10240
WBLK = 3616
STG = XB + 29 * 1024
L_PREP = 122880
PQ = 440
L_WO = 0
L_QKV = 83968
L_ST = 119808
L_CS = 120576
LDS_TOTAL = 162048
LOG2E = 1.4426950408889634
NEG = -1e30
BC, B0, QM, ONES, AQ, AV, AKP, AVP, AO = 216, 224, 228, 236, 240, 241, 242, 243, 244
PVB = 160
S_WS, S_X, S_QKV, S_WO, S_DBG, S_WG, S_WU, S_WD = 8, 12, 16, 44, 48, 52, 56, 60


def att_setup(k):
    k.I("v_and_b32", v(14), 15, v(2))
    k.I("v_lshrrev_b32", v(15), 4, v(2))
    k.I("v_mul_u32_u24", v(AQ), PQ, v(14))
    k.I("v_lshl_add_u32", v(AQ), v(15), 4, v(AQ))
    k.I("v_lshrrev_b32", v(AV), 2, v(2))
    k.I("v_mul_u32_u24", v(AV), PQ, v(AV))
    k.I("v_and_b32", v(16), 3, v(2))
    k.I("v_lshl_add_u32", v(AV), v(16), 3, v(AV))
    k.I("s_mul_i32", s(23), s(3), s(27))
    k.I("s_mul_i32", s(23), s(23), 16 * PQ)
    k.I("s_add_u32", s(23), s(23), L_QKV)
    k.I("s_add_u32", s(22), s(3), 1)
    k.I("s_mul_i32", s(22), s(22), 16 * PQ)
    k.I("s_add_u32", s(22), s(22), L_QKV)
    k.I("v_add_u32", v(AKP), s(23), v(AQ))
    k.I("v_add_u32", v(AVP), s(23), v(AV))
    k.I("v_add_u32", v(AQ), s(22), v(AQ))
    k.I("v_add_u32", v(AV), s(22), v(AV))
    k.I("v_mov_b32", v(16), hex(f32bits(NEG)))
    k.I("v_lshlrev_b32", v(17), 2, v(15))
    k.I("v_sub_u32", v(17), v(14), v(17))
    k.I("s_cmp_eq_u32", s(3), 0)
    k.I("s_cselect_b32", s(22), 8, 0)
    k.I("s_cselect_b32", s(23), 8, 16)
    k.I("s_or_b32", s(38), s(20), s(27))
    k.I("s_cmp_eq_u32", s(38), 0)
    k.I("s_cselect_b32", s(23), 0, s(23))
    for r in range(4):
        k.I("v_subrev_u32", v(246), r, v(17))
        k.I("v_cmp_gt_u32", "vcc", 8, v(246))
        k.I("v_cndmask_b32", v(BC + r), v(16), 0, "vcc")
        k.I("v_subrev_u32", v(247), s(22), v(246))
        k.I("v_cmp_gt_i32", "vcc", -8, v(247))
        k.I("v_lshl_add_u32", v(247), v(15), 2, r)
        k.I("v_cmp_gt_u32", s(40, 2), s(23), v(247))
        k.I("s_and_b64", "vcc", "vcc", s(40, 2))
        k.I("v_cndmask_b32", v(B0 + r), v(16), 0, "vcc")
        k.I("v_cmp_gt_u32", "vcc", 9, v(247))
        k.I("v_cndmask_b32", v(QM + r), 0, -1, "vcc")
        k.I("v_subrev_u32", v(247), 1, v(247))
        k.I("v_cmp_gt_u32", "vcc", 9, v(247))
        k.I("v_cndmask_b32", v(QM + 4 + r), 0, -1, "vcc")
        k.I("v_mov_b32", v(ONES + r), "0x3f803f80")
    k.I("v_lshlrev_b32", v(246), 1, v(14))
    k.I("v_add_u32", v(246), s(28), v(246))
    k.I("v_lshrrev_b32", v(247), 4, v(246))
    k.I("v_mul_u32_u24", v(247), 2304, v(247))
    k.I("v_and_b32", v(246), 15, v(246))
    k.I("v_lshl_add_u32", v(247), v(246), 4, v(247))
    k.I("s_mul_i32", s(22), s(27), 4608)
    k.I("s_add_u32", s(22), s(22), L_PREP)
    k.I("v_add_u32", v(247), s(22), v(247))
    k.I("v_lshrrev_b32", v(246), 1, v(15))
    k.I("v_lshl_add_u32", v(AO), v(246), 8, v(247))
    k.I("v_and_b32", v(246), 1, v(15))
    k.I("v_lshl_add_u32", v(AO), v(246), 3, v(AO))
    k.I("v_add_u32", v(16), 1, v(15))
    k.I("v_lshrrev_b32", v(246), 1, v(16))
    k.I("v_lshl_add_u32", v(AO + 1), v(246), 8, v(247))
    k.I("v_and_b32", v(246), 1, v(16))
    k.I("v_lshl_add_u32", v(AO + 1), v(246), 3, v(AO + 1))


class Prep:
    NSL = 6

    def __init__(self, k, U, sc):
        self.k, self.U, self.sc = k, U, sc
        self.tok = {}

    def decode(self):
        k = self.k
        k.I("s_lshl_b32", s(42), s(2), 2)
        k.I("s_add_u32", s(42), s(42), s(3))
        k.I("s_mul_i32", s(7), s(3), self.NSL * 1024)
        k.I("s_add_u32", s(7), s(7), L_PREP)
        k.I("v_lshrrev_b32", v(168), 3, v(2))
        k.I("v_and_b32", v(169), 7, v(2))
        k.I("v_lshrrev_b32", v(170), 4, v(2))
        k.I("v_bfe_u32", v(171), v(2), 2, 2)
        k.I("v_and_b32", v(172), 3, v(2))
        k.I("v_and_b32", v(173), 15, v(2))
        k.I("v_lshlrev_b32", v(161), 7, v(171))
        k.I("v_add_u32", v(161), s(7), v(161))
        k.I("v_mov_b32", v(164), 0)
        k.I("v_mov_b32", v(165), 0)
        k.I("v_mov_b32", v(166), "0x3f803f80")
        k.I("s_cmp_ge_u32", s(42), 648)
        k.I("s_cbranch_scc1", f"{self.U}_PW")
        k.I("s_mov_b32", s(4), 1)
        k.I("s_mul_i32", s(43), s(42), 911)
        k.I("s_lshr_b32", s(43), s(43), 16)
        k.I("s_mul_i32", s(5), s(43), 72)
        k.I("s_sub_u32", s(42), s(42), s(5))
        k.I("s_mul_i32", s(5), s(43), 64 * 9216)
        k.I("s_lshl_b32", s(6), s(42), 7)
        k.I("s_add_u32", s(5), s(5), s(6))
        k.I("s_mul_i32", s(6), s(42), 147456)
        k.I("s_lshl_b32", s(41), s(43), 13)
        k.I("s_add_u32", s(6), s(6), s(41))
        k.I("s_add_u32", s(6), s(6), hex(WS_WGU))
        k.I("s_mul_i32", s(43), s(43), 36864)
        k.I("s_lshl_b32", s(42), s(42), 9)
        k.I("s_add_u32", s(43), s(43), s(42))
        k.I("s_add_u32", s(43), s(43), hex(WS_CS))
        k.I("v_mov_b32", v(163), s(43))
        k.I("v_mul_u32_u24", v(160), 9216, v(168))
        k.I("v_lshrrev_b32", v(174), 1, v(170))
        k.I("v_and_b32", v(175), 1, v(170))
        k.I("v_lshl_add_u32", v(161), v(174), 6, v(161))
        k.I("v_lshl_add_u32", v(161), v(172), 4, v(161))
        k.I("v_lshl_add_u32", v(161), v(175), 3, v(161))
        k.I("v_mul_u32_u24", v(162), 73728, v(174))
        k.I("v_lshl_add_u32", v(162), v(175), 10, v(162))
        k.I("v_lshl_add_u32", v(163), v(174), 8, v(163))
        k.I("v_lshl_add_u32", v(163), v(175), 6, v(163))
        k.I("v_lshl_add_u32", v(163), v(173), 2, v(163))
        k.I("s_branch", f"{self.U}_PD")
        k.label(f"{self.U}_PW")
        k.I("s_mov_b32", s(4), 0)
        k.I("s_sub_u32", s(42), s(42), 648)
        k.I("s_mul_i32", s(43), s(42), 7282)
        k.I("s_lshr_b32", s(43), s(43), 16)
        k.I("s_mul_i32", s(5), s(43), 9)
        k.I("s_sub_u32", s(41), s(42), s(5))
        k.I("s_cmp_ge_u32", s(42), 324)
        k.I("s_cselect_b32", s(43), "0x1000", s(43))
        k.I("s_mul_i32", s(5), s(43), 16 * 9216)
        k.I("s_lshl_b32", s(6), s(41), 7)
        k.I("s_add_u32", s(5), s(5), s(6))
        k.I("s_mul_i32", s(6), s(43), 4 * 36864)
        k.I("s_lshl_b32", s(41), s(41), 12)
        k.I("s_add_u32", s(6), s(6), s(41))
        k.I("s_add_u32", s(6), s(6), hex(WS_WD))
        k.I("v_mov_b32", v(163), "0x7fffff00")
        k.I("v_mul_u32_u24", v(160), 1152, v(168))
        k.I("v_lshl_add_u32", v(161), v(170), 5, v(161))
        k.I("v_lshl_add_u32", v(161), v(172), 3, v(161))
        k.I("v_lshlrev_b32", v(162), 10, v(170))
        for sr in (S_WG, S_WU):
            k.I("s_mov_b32", s(sr), s(S_WD))
            k.I("s_mov_b32", s(sr + 1), s(S_WD + 1))
        k.label(f"{self.U}_PD")
        k.I("v_lshl_add_u32", v(160), v(169), 4, v(160))
        k.I("v_lshl_add_u32", v(162), v(173), 4, v(162))

    def _off(self, base, cg, cw):
        k = self.k
        k.I("s_mul_i32", s(42), s(4), cg - cw)
        k.I("s_add_u32", s(42), s(42), s(base))
        if cw:
            k.I("s_add_u32", s(42), s(42), cw)

    def load(self, t):
        def f():
            k = self.k
            self._off(5, (t // 2) * 73728, t * 9216)
            k.I("s_add_u32", "m0", s(7), (t % self.NSL) * 1024)
            if "pnold" in self.dbg:
                self.tok[t] = None
                return
            self.tok[t] = k.I("buffer_load_dwordx4", v(160), s(S_WG if t % 2 == 0 else S_WU, 4), s(42),
                              mods="offen nt lds")
        return f

    def read(self, t):
        def f():
            k = self.k
            k.wait_vm(self.tok[t])
            d = 168 + 4 * (t % 4)
            for h in range(2):
                k.I("ds_read_b64_tr_b16", v(d + 2 * h, 2), v(161), mods=f"offset:{(t % self.NSL) * 1024 + h * 512}")
        return f

    def store(self, t):
        def f():
            k = self.k
            d = 168 + 4 * (t % 4)
            self._off(6, (t // 8) * 4096 + (t % 2) * 2048 + ((t // 2) % 4) * 256, (t // 4) * 36864 + (t % 4) * 256)
            if "pnost" not in self.dbg:
                k.I("buffer_store_dwordx4", v(d, 4), v(162), s(S_WS, 4), s(42), mods=f"offen {self.sc}" + (" nt" if "snt" in self.dbg else ""))
            for j in range(4):
                k.I("v_dot2c_f32_bf16", v(164 + t % 2), v(d + j), v(166))
        return f

    def finish(self):
        k = self.k
        for m in range(2):
            k.I("buffer_store_dword", v(164 + m), v(163), s(S_WS, 4), 0, mods=f"offen offset:{m * 128} {self.sc}")


def gemm(k, U, cls, ST, prep, wo_items, touch_items, wofrag, dbg, LS):
    VX, VW = 4, 6
    L = f"{U}_G{cls}"
    xt = [0, 1, 2] if cls == 0 else [3, 4]
    tconst = lambda t: 32 * ((t - 1) & 1) + ((t - 1) >> 1)
    nW = 7 if cls == 0 else 8
    tok = {}

    def wvoff(n):
        k.I("v_add_u32", v(14), 128 * n, v(18))
        if n == 7:
            k.I("v_add_u32", v(15), 28 * 64, v(2))
            k.I("v_min_u32", v(14), v(14), v(15))
            k.I("v_min_u32", v(14), 1807, v(14))
        k.I("v_mul_u32_u24", v(15), 18559, v(14))
        k.I("v_lshrrev_b32", v(15), 22, v(15))
        k.I("v_mul_u32_u24", v(16), 226, v(15))
        k.I("v_sub_u32", v(14), v(14), v(16))
        k.I("v_mul_u32_u24", v(16), 2341, v(14))
        k.I("v_lshrrev_b32", v(16), 16, v(16))
        k.I("v_min_u32", v(16), 7, v(16))
        k.I("v_lshl_add_u32", v(15), v(15), 3, v(16))
        k.I("v_mul_u32_u24", v(16), 28, v(16))
        k.I("v_sub_u32", v(14), v(14), v(16))
        k.I("v_min_u32", v(14), 26, v(14))
        k.I("v_mul_u32_u24", v(16), 57, v(14))
        k.I("v_lshrrev_b32", v(16), 9, v(16))
        k.I("v_mul_u32_u24", v(15), 3456, v(15))
        k.I("v_lshl_add_u32", v(15), v(14), 4, v(15))
        k.I("v_mul_u32_u24", v(16), 1152 - 144, v(16))
        k.I("v_add_u32", v(VW + n), v(15), v(16))

    def dma_items(st):
        base = (st % 3) * STG
        I = []
        for t in xt:
            def f(t=t):
                k.I("s_add_u32", "m0", s(37), base + t * 2048)
                k.I("s_add_u32", s(38), s(34), (tconst(t) * 1152 if t else 0))
                k.I("buffer_load_dwordx4", v(VX + (t == 0)), s(S_X, 4), s(38), mods="offen lds")
            I.append(f)
        for n in range(nW):
            def f(n=n):
                if st == 0:
                    wvoff(n)
                if n < 7:
                    k.I("s_add_u32", "m0", s(24), base + n * 2048)
                else:
                    k.I("s_mov_b32", "m0", base + XB + 28 * 1024)
                tok[st] = k.I("buffer_load_dwordx4", v(VW + n), s(S_QKV, 4), s(25), mods="offen lds")
                if n == nW - 1:
                    k.I("s_add_u32", s(25), s(25), 64 * 3456)
                    k.I("s_add_u32", s(34), s(34), 128)
                    k.I("s_cmp_ge_u32", s(34), 1152)
                    k.I("s_cselect_b32", s(34), 0, s(34))
                    k.I("s_cselect_b32", s(25), s(26), s(25))
            I.append(f)
        return I

    for f in dma_items(0):
        f()
    LS.stamp("S0 issued")
    AX, AP, AW = 20, 26, 38
    k.I("v_and_b32", v(14), 15, v(2))
    k.I("v_lshrrev_b32", v(15), 1, v(14))
    k.I("v_lshrrev_b32", v(16), 4, v(2))
    k.I("v_xor_b32", v(15), v(15), v(16))
    k.I("v_lshlrev_b32", v(14), 7, v(14))
    k.I("v_lshl_add_u32", v(AX), v(15), 4, v(14))
    k.I("v_xor_b32", v(AX + 1), 64, v(AX))
    for sl in range(1, 3):
        k.I("v_add_u32", v(AX + 2 * sl), sl * STG, v(AX))
        k.I("v_add_u32", v(AX + 2 * sl + 1), sl * STG, v(AX + 1))
    k.I("s_add_u32", s(39), s(27), 1 + 2 * cls)
    k.I("s_xor_b32", s(36), s(27), 1)
    k.I("s_add_u32", s(36), s(36), 1 + 2 * cls)
    for pr, sr in enumerate((39, 36)):
        k.I("s_lshl_b32", s(22), s(sr), 11)
        for i in range(6):
            k.I("v_add_u32", v(AP + 6 * pr + i), s(22), v(AX + i))
    k.I("v_lshrrev_b32", v(14), 4, v(2))
    k.I("v_mul_u32_u24", v(14), WBLK, v(14))
    k.I("v_bfe_u32", v(15), v(2), 2, 2)
    k.I("v_mul_u32_u24", v(15), 448, v(15))
    k.I("v_add_u32", v(14), v(14), v(15))
    k.I("v_and_b32", v(15), 3, v(2))
    k.I("v_lshl_add_u32", v(14), v(15), 3, v(14))
    k.I("s_mul_i32", s(22), s(27), 7 * 32)
    k.I("s_add_u32", s(22), s(22), XB)
    k.I("v_add_u32", v(AW), s(22), v(14))
    for sl in range(1, 3):
        k.I("v_add_u32", v(AW + sl), sl * STG, v(AW))
    k.I("v_and_b32", v(14), 15, v(2))
    k.I("v_cmp_eq_u32", s(30, 2), 0, v(14))
    k.I("s_lshl_b32", s(22), s(27), 3)
    k.I("v_add_u32", v(14), s(22), v(14))
    k.I("v_cmp_le_u32", s(32, 2), 16, v(14))
    att_setup(k)
    for f in dma_items(1):
        f()
    hs = list(range(0, 4)) if cls == 0 else list(range(4, 7))
    tiles = [(s_, t) for s_ in range(7) for t in range(2)] + [(s_, "h") for s_ in hs]
    ACC = {t: 72 + 4 * n for n, t in enumerate(tiles)}
    SA = 44
    HF, W6 = 144, 200

    def xf(p, t):
        return v(HF + 4 * p, 4) if t == "h" else a(32 * p + 4 * t, 4)

    def wf(p, s_, h=None):
        if s_ == 6:
            return v(W6 + 4 * p, 4) if h is None else v(W6 + 4 * p + 2 * h, 2)
        return a(32 * p + 8 + 4 * s_, 4) if h is None else a(32 * p + 8 + 4 * s_ + 2 * h, 2)

    def read_items(st):
        I = []
        sl = st % 3
        for ks in range(2):
            p = (2 * st + ks) % 4
            for t in range(2):
                I.append(lambda t=t, p=p, ks=ks: k.I("ds_read_b128", xf(p, t), v(AP + 6 * t + 2 * sl + ks)))
            I.append(lambda p=p, ks=ks: k.I("ds_read_b128", xf(p, "h"), v(AX + 2 * sl + ks)))
            for s_ in range(7):
                for h in range(2):
                    I.append(lambda s_=s_, h=h, p=p, ks=ks: k.I("ds_read_b64_tr_b16", wf(p, s_, h), v(AW + sl),
                                                                mods=f"offset:{ks * 4 * WBLK + h * 4 * 448 + s_ * 32}"))
        return I

    def compute(kb, fill, per):
        p = kb % 4
        z = kb == 0
        mm = [(v(SA, 4), xf(p, 0), xf(p, 0))]
        if cls == 1:
            mm.append((v(SA + 4, 4), xf(p, "h"), xf(p, "h")))
        pre = [lambda: [k.I("v_cndmask_b32", v(HF + 4 * p + j), v(HF + 4 * p + j), v(ONES), s(30, 2)) for j in range(4)],
               lambda: [k.I("v_cndmask_b32", v(W6 + 4 * p + j), v(W6 + 4 * p + j), v(ONES), s(32, 2)) for j in range(4)]]
        fill2 = [None, None] + pre
        for t in tiles:
            mm.append((v(ACC[t], 4), wf(p, t[0]), xf(p, t[1])))
        n = n2 = 0
        for (ac, A_, B_) in mm:
            k.I(MF, ac, A_, B_, 0 if z else ac)
            for _ in range(per):
                if n < len(fill):
                    fill[n]()
                    n += 1
            if n2 < len(fill2):
                if fill2[n2] is not None:
                    fill2[n2]()
                n2 += 1
        while n < len(fill):
            fill[n]()
            n += 1

    def later(st):
        if st < 9:
            return dma_items(st)
        if st == 9:
            return wo_items[0:10]
        if st == 10:
            return wo_items[10:20]
        return []

    LS.stamp("S2 issued")
    k.wait_vm(tok[0])
    k.I("s_barrier")
    LS.stamp("S0 landed")
    ST.stamp()
    for f in read_items(0):
        f()
    for f in dma_items(2):
        f()
    k.wait(lg=0)
    k.I("s_barrier")
    for f in later(3):
        f()
    if prep.early is not None:
        prep.early()
    def pl(st):
        return [prep.load(2 * st), prep.load(2 * st + 1)] if (0 <= st < 8 and not prep.off) else []

    def pr(st):
        return [prep.read(2 * st), prep.read(2 * st + 1)] if (0 <= st < 8 and not prep.off) else []

    def ps(st):
        return [prep.store(2 * st), prep.store(2 * st + 1)] if (0 <= st < 8 and not prep.off) else []
    for f in pl(0) + pl(1):
        f()
    for st in range(9):
        if st < 8:
            k.wait_vm(tok[st + 1])
            k.I("s_barrier")
            compute(2 * st, read_items(st + 1) + pr(st - 1), 2)
            k.wait(lg=0)
            k.I("s_barrier")
            compute(2 * st + 1, later(st + 4) + ps(st - 1) + pl(st + 2), 2)
        else:
            compute(2 * st, pr(st - 1), 2)
            compute(2 * st + 1, ps(st - 1), 1)
        LS.stamp(f"st{st}")
    ST.stamp()
    nt = 1 if cls == 0 else 2
    k.I("v_and_b32", v(14), 15, v(2))
    k.I("v_lshrrev_b32", v(17), 4, v(2))
    k.I("v_lshlrev_b32", v(15), 3, v(14))
    k.I("v_add_u32", v(15), L_ST, v(15))
    k.I("s_lshl_b32", s(22), s(39), 7)
    k.I("v_add_u32", v(20), s(22), v(15))
    k.I("s_lshl_b32", s(22), s(36), 7)
    k.I("v_add_u32", v(21), s(22), v(15))
    k.I("v_and_b32", v(18), 3, v(14))
    for r in range(1, 4):
        k.I("v_cmp_eq_u32", "vcc", r, v(18))
        for t in range(nt):
            k.I("v_cndmask_b32", v(SA + 4 * t), v(SA + 4 * t), v(SA + 4 * t + r), "vcc")
    k.I("v_lshrrev_b32", v(18), 2, v(14))
    k.I("v_cmp_eq_u32", s(34, 2), v(18), v(17))
    k.I("v_lshlrev_b32", v(18), 4, v(17))
    k.I("s_mul_i32", s(22), s(27), 7 * 64)
    k.I("s_add_u32", s(22), s(22), L_CS)
    k.I("v_add_u32", v(18), s(22), v(18))
    k.I("s_lshl_b32", s(22), s(27), 2)
    k.I("v_add_u32", v(25), s(22), v(17))
    k.I("v_cmp_eq_u32", s(40, 2), 6, v(25))
    k.I("s_lshl_b32", s(22), s(27), 1)
    k.I("v_add_u32", v(25), s(22), v(17))
    k.I("v_cmp_gt_u32", s(32, 2), 4, v(25))
    k.I("s_mov_b64", "exec", s(34, 2))
    k.I("ds_write_b32", v(20), v(SA), mods="offset:4")
    if cls == 1:
        k.I("ds_write_b32", v(15), v(SA + 4), mods="offset:4")
    k.I("s_mov_b64", "exec", s(30, 2))
    for s_ in hs:
        k.I("ds_write_b128", v(18), v(ACC[(s_, "h")], 4), mods=f"offset:{64 * s_}")
    k.I("s_cmp_eq_u32", s(27), 0)
    k.I("s_cbranch_scc1", f"{L}_NS")
    k.I("s_mov_b64", "exec", s(40, 2))
    for t in range(2):
        k.I("ds_write_b32", v(20 + t), v(ACC[(6, t)]))
    if cls == 1:
        k.I("ds_write_b32", v(15), v(ACC[(6, "h")]))
    k.label(f"{L}_NS")
    k.I("s_mov_b64", "exec", -1)
    wo_tok = wo_items[20]()
    if not prep.off:
        prep.finish()
    k.I("v_mov_b32", v(26), hex(f32bits(1.0 / 576)))
    k.I("v_mov_b32", v(27), hex(f32bits(1.0 / 576)))
    k.I("v_mul_u32_u24", v(22), PQ, v(14))
    k.I("v_lshl_add_u32", v(22), v(17), 3, v(22))
    k.I("s_mul_i32", s(22), s(27), 7 * 32)
    k.I("s_add_u32", s(22), s(22), L_QKV)
    k.I("v_add_u32", v(22), s(22), v(22))
    k.I("s_mul_i32", s(22), s(39), 16 * PQ)
    k.I("v_add_u32", v(23), s(22), v(22))
    k.I("s_mul_i32", s(22), s(36), 16 * PQ)
    k.I("v_add_u32", v(24), s(22), v(22))
    k.dsq.append((-2, set()))
    k.wait(lg=0)
    k.I("s_barrier")
    STT = {0: 28, 1: 30, "h": 32}
    CSR = 40
    for t in range(2):
        k.I("ds_read_b64", v(STT[t], 2), v(20 + t))
    k.I("ds_read_b64", v(STT["h"], 2), v(15))
    for s_ in range(7):
        k.I("ds_read_b128", v(CSR + 4 * s_, 4), v(18), mods=f"offset:{64 * s_}")
    B = list(STT.values())
    for b in B:
        k.I("v_pk_mul_f32", v(b, 2), v(b, 2), v(26, 2))
    for b in B:
        k.I("v_fma_f32", v(b + 1), f"-{v(b)}", v(b), v(b + 1))
    for b in B:
        k.I("v_max_f32", v(b + 1), 0, v(b + 1))
    for b in B:
        k.I("v_add_f32", v(b + 1), hex(f32bits(1e-5)), v(b + 1))
    for b in B:
        k.I("v_rsq_f32", v(b + 1), v(b + 1))
    for b in B:
        k.I("v_mul_f32", v(b), f"-{v(b)}", v(b + 1))
    for n, t in enumerate(tiles):
        s_, T = t
        x = ACC[t]
        cs = CSR + 4 * s_
        for hh in range(2):
            k.I("v_pk_mul_f32", v(x + 2 * hh, 2), v(x + 2 * hh, 2), v(STT[T], 2), mods="op_sel:[0,1] op_sel_hi:[1,1]")
        for hh in range(2):
            k.I("v_pk_fma_f32", v(x + 2 * hh, 2), v(cs + 2 * hh, 2), v(STT[T], 2), v(x + 2 * hh, 2),
                mods="op_sel:[0,0,0] op_sel_hi:[1,0,1]")
        k.I("v_cvt_pk_bf16_f32", v(x), v(x), v(x + 1))
        k.I("v_cvt_pk_bf16_f32", v(x + 1), v(x + 2), v(x + 3))
        if s_ == 6:
            k.I("s_mov_b64", "exec", s(32, 2))
        k.I("ds_write_b64", v(22 if T == "h" else 23 + T), v(x, 2), mods=f"offset:{s_ * 32}")
        if s_ == 6:
            k.I("s_mov_b64", "exec", -1)
    k.wait(vm=3 if not prep.off else 1)


def attention(k, wo_items):
    QF, KF, VF, SS, MX = 20, 36, 68, 100, 4
    c0 = [4 * (18 * h // 4) for h in range(4)]
    for h in range(4):
        for hf in range(2):
            k.I("ds_read_b64", v(QF + 4 * h + 2 * hf, 2), v(AQ), mods=f"offset:{2 * c0[h] + 8 * hf}")
        for t in range(2):
            for hf in range(2):
                k.I("ds_read_b64", v(KF + 16 * t + 4 * h + 2 * hf, 2), v(AKP if t == 0 else AQ),
                    mods=f"offset:{144 + 2 * c0[h] + 8 * hf}")
    k.I("s_lshl_b32", s(22), s(20), 2)
    k.I("s_add_u32", s(22), s(22), s(3))
    k.I("s_mul_i32", s(22), s(22), 72 * 256)
    k.I("s_mul_i32", s(23), s(21), 9 * 256)
    k.I("s_add_u32", s(22), s(22), s(23))
    k.I("s_add_u32", s(22), s(22), hex(WS_O))
    k.I("v_cmp_gt_u32", s(40, 2), 16, v(2))
    k.I("s_mov_b32", s(24), hex(f32bits(LOG2E * 18 ** -0.5)))
    k.bgq = list(wo_items)
    k.bg_period = 1
    for h in range(4):
        for e in range(4):
            x = QF + 4 * h + e
            k.I("v_and_b32", v(x), v(QM + 4 * (h % 2) + e), v(x))
        k.I(MF, v(SS + 8 * h, 4), v(KF + 4 * h, 4), v(QF + 4 * h, 4), v(B0, 4))
        k.I(MF, v(SS + 8 * h + 4, 4), v(KF + 16 + 4 * h, 4), v(QF + 4 * h, 4), v(BC, 4))
    for h in range(4):
        for rt in range(2):
            for kt in range(2):
                k.I("ds_read_b64_tr_b16", v(VF + 8 * h + 4 * rt + 2 * kt, 2), v(AVP if kt == 0 else AV),
                    mods=f"offset:{288 + 2 * c0[h] + 32 * rt}")
    for h in range(4):
        b = SS + 8 * h
        k.I("v_max3_f32", v(MX + h), v(b), v(b + 1), v(b + 2))
    for h in range(4):
        b = SS + 8 * h
        k.I("v_max3_f32", v(MX + h), v(MX + h), v(b + 3), v(b + 4))
    for h in range(4):
        b = SS + 8 * h
        k.I("v_max3_f32", v(MX + 4 + h), v(b + 5), v(b + 6), v(b + 7))
    for h in range(4):
        k.I("v_max_f32", v(MX + h), v(MX + h), v(MX + 4 + h))
    reduce_groups(k, [MX + h for h in range(4)], MX + 4, op="v_max_f32")
    for h in range(4):
        k.I("v_mul_f32", v(MX + h), s(24), v(MX + h))
    OA, OB = QF, KF

    def pv(hp):
        k.I(MF, v(SS + 8 * hp + 4, 4), v(ONES, 4), v(SS + 8 * hp, 4), 0)
        k.I(MF, v(OA + 4 * hp, 4), v(VF + 8 * hp, 4), v(SS + 8 * hp, 4), 0)
        k.I(MF, v(OB + 4 * hp, 4), v(VF + 8 * hp + 4, 4), v(SS + 8 * hp, 4), 0)
    for h in range(4):
        for e in range(8):
            k.I("v_fma_f32", v(SS + 8 * h + e), v(SS + 8 * h + e), s(24), f"-{v(MX + h)}")
        for e in range(8):
            k.I("v_exp_f32", v(SS + 8 * h + e), v(SS + 8 * h + e))
        for e in range(4):
            k.I("v_cvt_pk_bf16_f32", v(SS + 8 * h + e), v(SS + 8 * h + 2 * e), v(SS + 8 * h + 2 * e + 1))
        if h > 0:
            pv(h - 1)
    pv(3)
    while k.bgq:
        k.bgq.pop(0)()

    def scale(g):
        for r in range(4):
            k.I("v_mul_f32", v(OA + 4 * g + r), v(MX + g), v(OA + 4 * g + r))
        for r in range(2 if g % 2 == 0 else 4):
            k.I("v_mul_f32", v(OB + 4 * g + r), v(MX + g), v(OB + 4 * g + r))
    for h in range(4):
        k.I("v_rcp_f32", v(MX + h), v(SS + 8 * h + 4))
        if h:
            scale(h - 1)
    scale(3)
    for hp in range(2):
        e_, o_ = 2 * hp, 2 * hp + 1
        for r in range(2):
            k.I("v_cndmask_b32", v(OA + 4 * o_ + r), v(OA + 4 * o_ + r), v(OB + 4 * e_ + r), s(40, 2))
        for (reg, G) in ((OA + 4 * e_, 9 * hp), (OA + 4 * o_, 9 * hp + 4), (OB + 4 * o_, 9 * hp + 8)):
            k.I("v_cvt_pk_bf16_f32", v(reg), v(reg), v(reg + 1))
            k.I("v_cvt_pk_bf16_f32", v(reg + 1), v(reg + 2), v(reg + 3))
            last = G % 9 == 8
            if last:
                k.I("s_mov_b64", "exec", s(40, 2))
            k.I("ds_write_b64", v(AO + G % 2), v(reg, 2), mods=f"offset:{(G // 2) * 256}")
            if last:
                k.I("s_mov_b64", "exec", -1)
    k.I("v_lshlrev_b32", v(4), 4, v(2))
    k.I("s_mul_i32", s(23), s(3), 2304)
    k.I("s_add_u32", s(23), s(23), L_PREP)
    k.I("v_add_u32", v(5), s(23), v(4))
    k.wait(lg=0)
    k.I("s_barrier")
    tile_out(k, 5, 4, 22, 20, "sc1")


def tile_out(k, vl, vo, so, tmp, sc):
    for i in range(3):
        k.I("ds_read_b128", v(tmp + 4 * i, 4), v(vl), mods=f"offset:{1024 * i}")
    for i in range(3):
        if i == 2:
            k.I("s_mov_b64", "exec", "0xffff")
        k.I("buffer_store_dwordx4", v(tmp + 4 * i, 4), v(vo), s(S_WS, 4), s(so), mods=f"offen offset:{1024 * i} {sc}")
    k.I("s_mov_b64", "exec", -1)


def emit_ab(k, U, ST, dbg="", sc="", early=None, prepoll=False):
    LS = LStamps(k, 255, 100, "lst" in dbg)
    LS.stamp("start")
    k.I("s_load_dwordx4", s(20, 4), s(0, 2), KA_X)
    k.I("s_load_dwordx4", s(24, 4), s(0, 2), KA_DBG)
    k.I("s_load_dwordx2", s(28, 2), s(0, 2), KA_WO)
    k.I("s_load_dwordx4", s(32, 4), s(0, 2), KA_WG)
    k.I("s_load_dwordx2", s(30, 2), s(0, 2), KA_WD)
    k.I("v_lshrrev_b32", v(1), 6, v(0))
    k.I("v_and_b32", v(2), 63, v(0))
    k.I("v_readfirstlane_b32", s(3), v(1))
    k.I("v_mov_b32", v(3), 0)
    k.I("v_lshrrev_b32", v(14), 3, v(2))
    k.I("v_lshrrev_b32", v(15), 1, v(14))
    k.I("v_and_b32", v(16), 7, v(2))
    k.wait(lg=0)
    LS.stamp("kernarg")
    srd(k, S_X, 20, S * D * 2)
    srd(k, S_QKV, 22, D * 3 * D * 2)
    srd(k, S_WS, 26, WS_SIZE)
    srd(k, S_DBG, 24, 256)
    srd(k, S_WO, 28, D * D * 2)
    srd(k, S_WG, 32, D * F * 2)
    srd(k, S_WU, 34, D * F * 2)
    srd(k, S_WD, 30, D * F * 2)
    k.I("s_bfe_u32", s(20), s(2), hex((2 << 16) | 1))
    k.I("s_lshl_b32", s(20), s(20), 3)
    k.I("s_bfe_u32", s(21), s(2), hex((3 << 16) | 3))
    k.I("s_add_u32", s(20), s(20), s(21))
    k.I("s_and_b32", s(21), s(2), 1)
    k.I("s_lshl_b32", s(21), s(21), 2)
    k.I("s_lshr_b32", s(22), s(2), 6)
    k.I("s_add_u32", s(21), s(21), s(22))
    k.I("s_and_b32", s(27), s(3), 1)
    k.I("s_lshr_b32", s(28), s(3), 1)
    VX = 4
    k.I("s_mov_b32", s(23), 1152)
    k.I("s_lshl_b32", s(22), s(27), 2)
    k.I("v_add_u32", v(15), s(22), v(15))
    k.I("v_xor_b32", v(15), v(15), v(16))
    k.I("s_lshl_b32", s(22), s(20), 6)
    k.I("s_lshl_b32", s(24), s(27), 4)
    k.I("s_add_u32", s(24), s(24), s(22))
    k.I("v_lshl_add_u32", v(16), v(14), 1, s(24))
    k.I("v_mul_lo_u32", v(16), v(16), s(23))
    k.I("v_lshl_add_u32", v(VX), v(15), 4, v(16))
    k.I("s_add_u32", s(24), s(22), s(27))
    k.I("s_sub_u32", s(24), s(24), 16)
    k.I("v_lshl_add_u32", v(16), v(14), 1, s(24))
    k.I("v_mul_lo_u32", v(16), v(16), s(23))
    k.I("v_lshl_add_u32", v(VX + 1), v(15), 4, v(16))
    k.I("s_mul_i32", s(22), s(28), 14)
    k.I("s_add_u32", s(22), s(22), s(27))
    k.I("s_lshl_b32", s(24), s(22), 6)
    k.I("v_add_u32", v(18), s(24), v(2))
    k.I("s_lshl_b32", s(24), s(22), 10)
    k.I("s_add_u32", s(24), s(24), XB)
    k.I("s_lshl_b32", s(37), s(27), 10)
    k.I("s_mul_i32", s(25), s(21), 144)
    k.I("s_mov_b32", s(26), s(25))
    k.I("s_and_b32", s(34), s(20), 7)
    k.I("s_and_b32", s(35), s(21), 3)
    k.I("s_lshl_b32", s(35), s(35), 1)
    k.I("s_add_u32", s(34), s(34), s(35))
    k.I("s_sub_u32", s(35), s(34), 9)
    k.I("s_cmp_ge_u32", s(34), 9)
    k.I("s_cselect_b32", s(34), s(35), s(34))
    if "norot" in dbg:
        k.I("s_mov_b32", s(34), 0)
    k.I("s_mul_i32", s(35), s(34), 64 * 3456)
    k.I("s_add_u32", s(25), s(25), s(35))
    k.I("s_lshl_b32", s(34), s(34), 7)
    k.I("s_or_b32", s(22), s(2), s(3))
    k.I("s_cmp_lg_u32", s(22), 0)
    k.I("s_cbranch_scc1", f"{U}_NN")
    k.I("s_memrealtime", s(22, 2))
    k.wait(lg=0)
    k.I("s_or_b32", s(22), s(22), 1)
    k.I("v_mov_b32", v(248), s(22))
    k.I("v_mov_b32", v(249), s(23))
    k.I("buffer_store_dwordx2", v(248, 2), v(3), s(S_DBG, 4), 0, mods="offen sc1")
    k.vmq.pop()
    k.label(f"{U}_NN")
    prep = Prep(k, U, sc)
    prep.early = early
    prep.off = "noprep" in dbg
    prep.dbg = dbg
    prep.decode()

    def wo_item(n):
        def f():
            base, lim, off = (0, 38, 4 * n) if n < 10 else ((39, 38, 4 * (n - 10)) if n < 20 else (78, 2, 0))
            if off + 3 > lim:
                k.I("s_add_u32", s(29), s(3), off)
                k.I("s_min_u32", s(29), s(29), lim)
                k.I("s_add_u32", s(29), s(29), base)
                k.I("s_lshl_b32", "m0", s(29), 10)
                k.I("s_lshl_b32", s(29), s(29), 6)
                k.I("v_add_u32", v(250), s(29), v(2))
            else:
                k.I("v_add_u32", v(250), 64 * (base + off), v(0))
                k.I("s_lshl_b32", s(29), s(3), 10)
                k.I("s_add_u32", "m0", s(29), (base + off) * 1024)
            k.I("v_mul_u32_u24", v(251), 7282, v(250))
            k.I("v_lshrrev_b32", v(251), 16, v(251))
            k.I("v_mul_u32_u24", v(251), 1152 - 144, v(251))
            k.I("v_lshl_add_u32", v(251), v(250), 4, v(251))
            k.I("buffer_load_dwordx4", v(251), s(S_WO, 4), s(26), mods="offen lds")
        return f
    wo_items = [wo_item(n) for n in range(21)]

    def touch_w(n):
        def f():
            k.I("v_add_u32", v(250), 256 * n, v(0))
            k.I("v_min_u32", v(250), 431, v(250))
            k.I("v_mul_u32_u24", v(251), 10923, v(250))
            k.I("v_lshrrev_b32", v(251), 16, v(251))
            k.I("v_mul_u32_u24", v(252), 6, v(251))
            k.I("v_sub_u32", v(250), v(250), v(252))
            k.I("v_mul_u32_u24", v(251), 8 * 3456, v(251))
            k.I("v_lshrrev_b32", v(252), 1, v(250))
            k.I("v_mul_u32_u24", v(252), 1152, v(252))
            k.I("v_add_u32", v(251), v(251), v(252))
            k.I("v_and_b32", v(250), 1, v(250))
            k.I("v_mul_u32_u24", v(250), 140, v(250))
            k.I("v_add_u32", v(251), v(251), v(250))
            k.I("s_and_b32", s(29), s(20), 7)
            k.I("s_mul_i32", s(29), s(29), 3456)
            k.I("s_add_u32", s(29), s(29), s(26))
            k.I("buffer_load_dword", v(194 + n), v(251), s(S_QKV, 4), s(29), mods="offen")
        return f

    def touch_x():
        k.I("v_mul_u32_u24", v(251), 1152, v(2))
        k.I("s_and_b32", s(29), s(21), 3)
        k.I("s_lshl_b32", s(38), s(3), 2)
        k.I("s_add_u32", s(29), s(29), s(38))
        k.I("s_min_u32", s(29), s(29), 8)
        k.I("s_lshl_b32", s(29), s(29), 7)
        k.I("s_mul_i32", s(38), s(20), 64 * 1152)
        k.I("s_add_u32", s(29), s(29), s(38))
        k.I("buffer_load_dword", v(196), v(251), s(S_X, 4), s(29), mods="offen")

    def touch_wo():
        k.I("v_min_u32", v(250), 143, v(0))
        k.I("v_lshrrev_b32", v(251), 1, v(250))
        k.I("v_mul_u32_u24", v(251), 8 * 1152, v(251))
        k.I("v_and_b32", v(250), 1, v(250))
        k.I("v_mul_u32_u24", v(250), 140, v(250))
        k.I("v_add_u32", v(251), v(251), v(250))
        k.I("s_and_b32", s(29), s(20), 7)
        k.I("s_mul_i32", s(29), s(29), 1152)
        k.I("s_add_u32", s(29), s(29), s(26))
        k.I("buffer_load_dword", v(197), v(251), s(S_WO, 4), s(29), mods="offen")
    touch_items = [touch_w(0), touch_x, touch_w(1), touch_wo] if "touch" in dbg else []
    k.I("v_lshrrev_b32", v(52), 4, v(2))
    k.I("v_lshlrev_b32", v(52), 3, v(52))
    k.I("v_bfe_u32", v(53), v(2), 2, 2)
    k.I("v_add_u32", v(52), v(52), v(53))
    k.I("v_mul_u32_u24", v(52), 144, v(52))
    k.I("v_and_b32", v(53), 3, v(2))
    k.I("v_lshl_add_u32", v(192), v(53), 3, v(52))
    k.I("v_add_u32", v(193), 9 * 4608, v(192))

    def wo(kb, r, h=None):
        n = 5 * kb + r
        vg = list(range(88, 160, 4)) + list(range(168, 184, 4)) + list(range(232, 248, 4))
        f, b = ("a", 4 * n) if n < 64 else ("v", vg[n - 64])
        return R(f, b, 4) if h is None else R(f, b + 2 * h, 2)
    wofrag = [lambda kb=kb, r=r, h=h: k.I("ds_read_b64_tr_b16", wo(kb, r, h), v(192 + kb // 9),
                                          mods=f"offset:{(kb % 9) * 4608 + h * 576 + r * 32}")
              for kb in range(18) for r in range(5) for h in range(2)]
    LS.stamp("setup")
    n0 = LS.n
    k.I("s_cmp_lg_u32", s(28), 0)
    k.I("s_cbranch_scc1", f"{U}_A1")
    for cls in range(2):
        if cls == 1:
            k.label(f"{U}_A1")
            k.vmq, k.dsq = [], []
        if cls == 1:
            LS.n, LS.names = n0, LS.names[:n0]
        gemm(k, U, cls, ST if cls == 0 else ST.clone(), prep, wo_items, touch_items, wofrag, dbg, LS)
        if cls == 0:
            k.I("s_branch", f"{U}_AJ")
    k.label(f"{U}_AJ")
    k.dsq = [(-2, set())]
    k.wait(lg=0)
    k.I("s_barrier")
    ST.stamp()
    LS.stamp("norm")
    k.I("buffer_load_dwordx2", v(248, 2), v(3), s(S_DBG, 4), 0, mods="offen sc1")
    attention(k, [])
    ST.stamp()
    LS.stamp("attn")
    k.wait(vm=0)
    LS.stamp("drain")
    k.I("s_barrier")
    k.I("s_mov_b32", s(33), 20000)
    k.label(f"{U}_NL")
    k.I("v_readfirstlane_b32", s(22), v(248))
    k.I("s_cmp_lg_u32", s(22), 0)
    k.I("s_cbranch_scc1", f"{U}_NOK")
    k.I("s_sub_u32", s(33), s(33), 1)
    k.I("s_cmp_eq_u32", s(33), 0)
    k.I("s_cbranch_scc1", f"{U}_NOK")
    k.I("buffer_load_dwordx2", v(248, 2), v(3), s(S_DBG, 4), 0, mods="offen sc1")
    k.wait(vm=0)
    k.I("s_branch", f"{U}_NL")
    k.label(f"{U}_NOK")
    k.I("s_lshl_b32", s(24), s(20), 6)
    k.I("s_add_u32", s(24), s(24), hex(WS_F0))
    k.I("s_cmp_lg_u32", s(3), 0)
    k.I("s_cbranch_scc1", f"{U}_NF")
    k.I("s_lshl_b32", s(23), s(21), 3)
    k.I("s_add_u32", s(23), s(23), s(24))
    k.I("buffer_store_dwordx2", v(248, 2), v(3), s(S_WS, 4), s(23), mods="offen sc1")
    k.vmq.pop()
    k.label(f"{U}_NF")
    ST.stamp()
    k.I("s_lshl_b32", s(22), s(20), 2)
    k.I("s_add_u32", s(22), s(22), s(3))
    k.I("v_and_b32", v(8), 15, v(2))
    k.I("v_lshrrev_b32", v(9), 4, v(2))
    k.I("v_mul_u32_u24", v(10), 1152, v(8))
    k.I("v_lshl_add_u32", v(10), v(9), 3, v(10))
    k.I("s_mul_i32", s(23), s(22), 16 * 1152)
    k.I("s_add_u32", s(23), s(23), s(26))
    RES = 200
    for r in range(5):
        k.I("buffer_load_dwordx2", v(RES + 2 * r, 2), v(10), s(S_X, 4), s(23), mods=f"offen offset:{32 * r}")
    LS.stamp("flag")

    for f in wofrag:
        f()
    k.I("v_and_b32", v(11), 7, v(2))
    k.I("v_lshlrev_b32", v(11), 3, v(11))
    k.I("s_mov_b32", s(33), 40000)
    k.label(f"{U}_PL")
    k.I("buffer_load_dwordx2", v(6, 2), v(11), s(S_WS, 4), s(24), mods="offen sc1")
    k.wait(vm=0)
    k.I("v_cmp_eq_u64", "vcc", v(248, 2), v(6, 2))
    k.I("s_cmp_eq_u64", "vcc", -1)
    k.I("s_cbranch_scc1", f"{U}_POK")
    k.I("s_sub_u32", s(33), s(33), 1)
    k.I("s_cmp_eq_u32", s(33), 0)
    k.I("s_cbranch_scc1", f"{U}_POK")
    k.I("s_sleep", 1)
    k.I("s_branch", f"{U}_PL")
    k.label(f"{U}_POK")
    LS.stamp("poll")
    ST.stamp()
    OF = 16
    k.I("v_lshlrev_b32", v(11), 4, v(2))
    k.I("s_mul_i32", s(24), s(22), 18 * 1024)
    k.I("s_add_u32", s(24), s(24), hex(WS_O))
    for kb in range(18):
        if kb % 4 == 0 and kb:
            k.I("s_add_u32", s(24), s(24), 4096)
        k.I("buffer_load_dwordx4", v(OF + 4 * kb, 4), v(11), s(S_WS, 4), s(24), mods=f"offen offset:{(kb % 4) * 1024} sc1")
    k.I("v_lshlrev_b32", v(10), 4, v(8))
    k.I("v_lshrrev_b32", v(11), 1, v(9))
    k.I("v_lshl_add_u32", v(10), v(11), 8, v(10))
    k.I("v_and_b32", v(11), 1, v(9))
    k.I("v_lshl_add_u32", v(10), v(11), 3, v(10))
    k.I("s_mul_i32", s(23), s(3), 2304)
    k.I("s_add_u32", s(23), s(23), L_PREP + 9216)
    k.I("v_add_u32", v(10), s(23), v(10))
    k.I("v_lshlrev_b32", v(14), 4, v(2))
    k.I("v_add_u32", v(15), s(23), v(14))
    k.I("s_mul_i32", s(23), s(22), 72 * 256)
    k.I("s_mul_i32", s(24), s(21), 9 * 256)
    k.I("s_add_u32", s(23), s(23), s(24))
    k.I("s_add_u32", s(23), s(23), hex(WS_H))
    k.I("v_cmp_gt_u32", s(40, 2), 32, v(2))
    k.I("v_mov_b32", v(4), 0)
    k.I("v_mov_b32", v(5), 0)
    k.I("v_mov_b32", v(6), "0x3f803f80")
    BACC = 212
    for kb in range(18):
        if kb == 12 and prepoll:
            k.I("v_lshlrev_b32", v(7), 5, v(2))
            k.I("s_mov_b32", s(25), hex(WS_F0))
            for i in range(2):
                k.I("buffer_load_dwordx4", v(192 + 4 * i, 4), v(7), s(S_WS, 4), s(25), mods=f"offen offset:{16 * i} sc1")
        for r in range(5):
            ac = v(BACC + 4 * r, 4)
            k.I(MF, ac, wo(kb, r), v(OF + 4 * kb, 4), ac if kb else 0)
    LS.stamp("B mfma")
    ST.stamp()
    for r in range(5):
        x = BACC + 4 * r
        t = 16 + 4 * (r % 2)
        for i in range(2):
            k.I("v_lshlrev_b32", v(t + 2 * i), 16, v(RES + 2 * r + i))
            k.I("v_and_b32", v(t + 2 * i + 1), "0xffff0000", v(RES + 2 * r + i))
        for i in range(4):
            k.I("v_add_f32", v(x + i), v(x + i), v(t + i))
        k.I("v_cvt_pk_bf16_f32", v(x), v(x), v(x + 1))
        k.I("v_cvt_pk_bf16_f32", v(x + 1), v(x + 2), v(x + 3))
        if r == 4:
            k.I("s_mov_b64", "exec", s(40, 2))
        k.I("ds_write_b64", v(10), v(x, 2), mods=f"offset:{r * 512}")
        for i in range(2):
            k.I("v_dot2c_f32_bf16", v(4), v(x + i), v(6))
            k.I("v_dot2c_f32_bf16", v(5), v(x + i), v(x + i))
        if r == 4:
            k.I("s_mov_b64", "exec", -1)
    tile_out(k, 15, 14, 23, 28, sc)
    reduce_groups(k, [4, 5], 24)
    k.I("v_lshlrev_b32", v(10), 6, v(8))
    k.I("s_lshl_b32", s(23), s(22), 10)
    k.I("s_lshl_b32", s(24), s(21), 3)
    k.I("s_add_u32", s(23), s(23), s(24))
    k.I("s_add_u32", s(23), s(23), hex(WS_ST))
    k.I("buffer_store_dwordx2", v(4, 2), v(10), s(S_WS, 4), s(23), mods=f"offen {sc}")
    LS.stamp("B done")
    LS.dump(S_WS, 254, 1)


def build_ab(dbg=""):
    k = Kern("kab_kernel")
    ST = Stamps(k, 64, "stamp" in dbg)
    k.I("s_cmp_ge_u32", s(2), 256)
    k.I("s_cbranch_scc1", "KAB_END")
    ST.stamp()
    emit_ab(k, "KAB", ST, dbg)
    k.I("v_lshlrev_b32", v(8), 2, v(2))
    k.I("s_lshl_b32", s(22), s(2), 7)
    k.I("s_add_u32", s(22), s(22), hex(WS_F1))
    k.I("s_add_u32", s(23), s(22), hex(WS_F2 - WS_F1))
    k.I("v_cmp_gt_u32", "vcc", 32, v(2))
    k.I("s_and_saveexec_b64", s(30, 2), "vcc")
    k.I("buffer_store_dword", v(3), v(8), s(S_WS, 4), s(22), mods="offen")
    k.I("buffer_store_dword", v(3), v(8), s(S_WS, 4), s(23), mods="offen")
    k.I("s_mov_b64", "exec", s(30, 2))
    ST.stamp()
    ST.dump(S_WS, 100, 3)
    k.label("KAB_END")
    k.I("s_endpgm")
    return k, "grid=(256,1,1) block=(256,1,1) lds=%d" % LDS_TOTAL
```

```python
from common import *
from k_frag import f32bits
from collections import deque

RING = 5
STAGE = 16384
NSTG = 19
LDS_WD = RING * STAGE
LDS_CS = LDS_WD + 4 * NSTG * 1024
LDS_TOTAL = LDS_CS + 2304
BUF = 73728
MF = "v_mfma_f32_16x16x32_bf16"
LOG2E = 1.4426950408889634
NSTAT = 8


class Pool:
    def __init__(self, vlo, vhi, alo, ahi):
        self.v = deque(range(vlo, vhi, 4))
        self.a = deque(range(alo, ahi, 4))

    def get(self, kind="any"):
        if kind == "v" or (kind == "any" and not self.a):
            return ("v", self.v.popleft())
        return ("a", self.a.popleft())

    def put(self, r):
        (self.v if r[0] == "v" else self.a).append(r[1])

    def n(self):
        return len(self.v) + len(self.a)


def r4(r):
    return R(r[0], r[1], 4)


def build_cd(dbg="", NA=7):
    k = Kern("kcd_kernel")
    ST = Stamps(k, 64, "stamp" in dbg)
    k.I("s_cmp_ge_u32", s(2), 256)
    k.I("s_cbranch_scc1", "KCD_END")
    ST.stamp()
    emit_cd(k, ST, dbg, NA, False)
    k.label("KCD_END")
    k.I("s_endpgm")
    return k, "grid=(256,1,1) block=(256,1,1) lds=%d" % LDS_TOTAL


def emit_cd(k, ST, dbg, NA, fused, roles=False, publish=None):
    NG = 2 if roles else 4
    if "stC" in dbg or "stD" in dbg:
        ST2 = Stamps(k, 64, True)
    else:
        ST2 = Stamps(k, 64, False)
    SC = "sc1" if "nosc" not in dbg else ""
    SCI = "sc1" if fused else ""
    LS = LStamps(k, 1, 100, "lsd" in dbg)
    if not fused:
        k.I("s_load_dwordx2", s(4, 2), s(0, 2), KA_WS)
        k.I("v_lshrrev_b32", v(1), 6, v(0))
        k.I("v_and_b32", v(2), 63, v(0))
        k.I("v_readfirstlane_b32", s(3), v(1))
    k.I("s_load_dwordx2", s(6, 2), s(0, 2), KA_OUT)
    k.I("s_bfe_u32", s(16), s(2), hex((2 << 16) | 1))
    k.I("s_bfe_u32", s(17), s(2), hex((2 << 16) | 3))
    k.I("s_and_b32", s(21), s(2), 1)
    k.I("s_lshl_b32", s(21), s(21), 3)
    k.I("s_lshr_b32", s(20), s(2), 5)
    k.I("s_add_u32", s(21), s(21), s(20))
    k.I("s_lshl_b32", s(20), s(16), 2)
    k.I("s_add_u32", s(20), s(20), s(17))
    k.I("v_lshlrev_b32", v(3), 4, v(2))
    k.I("s_lshl_b32", s(22), s(21), 3)
    k.I("s_lshl_b32", s(23), s(3), 1)
    k.I("s_add_u32", s(22), s(22), s(23))
    k.I("s_mul_i32", s(24), s(20), 9 * 18 * 4096)
    k.I("s_add_u32", s(24), s(24), hex(WS_WGU))
    k.I("s_lshl_b32", s(25), s(3), 12)
    k.I("s_add_u32", s(30), s(24), s(25))
    k.I("s_add_u32", s(30), s(30), 72 * 4096)
    k.I("s_mul_i32", s(31), s(3), 18 * 4096)
    k.I("s_add_u32", s(24), s(24), s(31))
    k.I("s_mul_i32", s(26), s(22), 18 * 1024)
    k.I("s_add_u32", s(26), s(26), hex(WS_H))
    k.I("s_add_u32", s(27), s(26), 18 * 1024)
    k.wait(lg=0)
    if not fused:
        srd(k, 8, 4, WS_SIZE)
    srd(k, 12, 6, S * D * 2)

    def nonce_poll(tag, vo, sreg, nld, pre=None):
        b = 28 if pre is None else pre

        def test():
            for i in range(2 * nld):
                k.I("v_cmp_eq_u64", "vcc" if i == 0 else s(56, 2), v(248, 2), v(b + 2 * i, 2))
                if i:
                    k.I("s_and_b64", "vcc", "vcc", s(56, 2))
            k.I("s_cmp_eq_u64", "vcc", -1)
            k.I("s_cbranch_scc1", f"KCD_R{tag}")
        k.I("s_mov_b32", s(60), 40000)
        if pre is not None:
            test()
        save = list(k.vmq)
        k.label(f"KCD_Q{tag}")
        for i in range(nld):
            k.I("buffer_load_dwordx4", v(b + 4 * i, 4), v(vo), s(8, 4), s(sreg), mods=f"offen offset:{16 * i} sc1")
        k.wait(vm=0)
        test()
        k.I("s_sub_u32", s(60), s(60), 1)
        k.I("s_cmp_eq_u32", s(60), 0)
        k.I("s_cbranch_scc1", f"KCD_R{tag}")
        k.I("s_branch", f"KCD_Q{tag}")
        k.label(f"KCD_R{tag}")
        if pre is not None:
            k.vmq = save

    P = Pool(28, 256, 0, 256)
    X = {(tt, kb): P.get("a") for kb in range(18) for tt in range(2)}
    ACC = {(c, tile, tt): P.get("v") for c in range(4) for tile in range(4) for tt in range(2)}
    CS = [P.get("v") for _ in range(4)]
    WF = {(b, tile): P.get("a") for b in range(3) for tile in range(4)}

    dma_tok = {}
    wtok = {}

    NSTAGE = 18 + 23

    def dma_items(st):
        slot = st % RING

        def one(i):
            def f():
                if i == 0:
                    k.I("s_add_u32", "m0", s(25), slot * STAGE)
                    if st == NSTAGE - 1:
                        k.I("s_and_b32", s(59), s(3), 2)
                        k.I("s_lshl_b32", s(59), s(59), 12)
                        k.I("s_sub_u32", s(30), s(30), s(59))
                sr = 24 if st < 18 else 30
                t = k.I("buffer_load_dwordx4", v(3), s(8, 4), s(sr), mods=f"offen offset:{i * 1024} {SCI} lds")
                if i == 3:
                    dma_tok[st] = t
                    k.I("s_add_u32", s(sr), s(sr), 4096 if st < 18 else STAGE)
            return f
        return [one(i) for i in range(4)]

    def x_items(kb0, kb1):
        L = []
        for kb in range(kb0, kb1):
            for tt in range(2):
                def f(kb=kb, tt=tt):
                    if kb % 4 == 0 and kb:
                        k.I("s_add_u32", s(26 + tt), s(26 + tt), 4096)
                    k.I("buffer_load_dwordx4", r4(X[(tt, kb)]), v(3), s(8, 4), s(26 + tt), mods=f"offen offset:{(kb % 4) * 1024} {SCI}")
                L.append(f)
        return L

    if fused:
        k.I("v_lshlrev_b32", v(4), 5 if not roles else 4, v(2))
        k.I("s_mov_b32", s(59), hex(WS_F0 if not roles else WS_FP))
        if publish is not None:
            publish()
            nonce_poll("a", 4, 59, 2, pre=192)
        else:
            nonce_poll("a", 4, 59, 2 if not roles else 1)
        for st in range(3):
            for f in dma_items(st):
                f()
        k.I("v_and_b32", v(4), 7 if not roles else 3, v(2))
        k.I("v_lshlrev_b32", v(4), 4, v(4))
        k.I("s_lshl_b32", s(59), s(21), 7 if not roles else 6)
        k.I("s_add_u32", s(59), s(59), hex(WS_FH))
        nonce_poll("b", 4, 59, 1)
        ST.stamp()
        for f in x_items(0, 3):
            f()
    else:
        for st in range(3):
            for f in dma_items(st) + x_items(st, st + 1):
                f()
    k.I("v_add_u32", v(4), 3 * STAGE, v(3))
    k.I("s_mul_i32", s(61), s(3), NSTG * 1024)
    k.I("s_add_u32", s(61), s(61), LDS_WD)
    k.I("v_add_u32", v(5), s(61), v(3))
    k.I("v_add_u32", v(14), 144 * 1024, v(3))
    k.I("v_mov_b32", v(15), 0)
    k.I("s_mul_i32", s(28), s(22), 144 * 1024)
    k.I("s_mul_i32", s(29), s(20), 9 * 1024)
    k.I("s_add_u32", s(28), s(28), s(29))
    k.I("s_add_u32", s(28), s(28), hex(WS_HH))
    k.I("s_mul_i32", s(53), s(16), 36)
    k.I("s_mul_i32", s(54), s(3), 9)
    k.I("s_add_u32", s(53), s(53), s(54))
    k.I("s_mul_i32", s(32), s(53), 36864)
    k.I("s_mul_i32", s(54), s(17), 9216)
    k.I("s_add_u32", s(32), s(32), s(54))
    k.I("s_add_u32", s(32), s(32), hex(WS_WD))
    k.I("s_lshl_b32", s(54), s(21), 2)
    k.I("s_add_u32", s(55), s(54), s(16))
    k.I("s_lshl_b32", s(55), s(55), 2)
    k.I("s_add_u32", s(40), s(55), s(3))
    k.I("s_lshl_b32", s(40), s(40), 7)
    k.I("s_add_u32", s(40), s(40), hex(WS_F1))
    k.I("s_add_u32", s(44), s(55), s(17))
    k.I("s_lshl_b32", s(44), s(44), 7)
    k.I("s_lshl_b32", s(56), s(3), 2)
    k.I("s_add_u32", s(44), s(44), s(56))
    k.I("s_add_u32", s(44), s(44), hex(WS_F1))
    k.I("s_add_u32", s(55), s(54), s(17))
    k.I("s_lshl_b32", s(55), s(55), 2)
    for p in range(4):
        k.I("s_add_u32", s(56), s(16), p + 1)
        k.I("s_and_b32", s(56), s(56), 3)
        k.I("s_lshl_b32", s(57), s(21), 2)
        k.I("s_add_u32", s(57), s(57), s(56))
        k.I("s_mul_i32", s(57), s(57), 288)
        k.I("s_add_u32", s(57), s(57), s(53))
        k.I("s_lshl_b32", s(57), s(57), 10)
        k.I("s_add_u32", s(36 + p), s(57), hex(WS_HH))
        k.I("s_add_u32", s(57), s(55), s(56))
        if p < 3:
            k.I("s_lshl_b32", s(58), s(57), 2)
            k.I("s_add_u32", s(58), s(58), s(16))
            k.I("s_mul_i32", s(58), s(58), 18432)
            k.I("s_add_u32", s(45 + p), s(58), hex(WS_PART))
            k.I("s_lshl_b32", s(58), s(57), 5)
            k.I("s_lshl_b32", s(59), s(3), 2)
            k.I("s_add_u32", s(58), s(58), s(59))
            k.I("s_add_u32", s(58), s(58), s(16))
            k.I("s_lshl_b32", s(58), s(58), 2)
            k.I("s_add_u32", s(48 + p), s(58), hex(WS_F2))
        else:
            k.I("s_mul_i32", s(51), s(57), 4 * 18432)
            k.I("s_add_u32", s(51), s(51), hex(WS_PART))
            k.I("s_lshl_b32", s(52), s(57), 7)
            k.I("s_lshl_b32", s(59), s(3), 4)
            k.I("s_add_u32", s(52), s(52), s(59))
            k.I("s_add_u32", s(52), s(52), hex(WS_F2))

    tS = [P.get("v") for _ in range(2 * NG)]
    tC = [P.get("v") for _ in range(9)]

    def stat_loads(tS, sbase_reg, ntt=2):
        L = []
        for tt in range(ntt):
            for i in range(NG):
                L.append(lambda tt=tt, i=i: k.I("buffer_load_dwordx4", r4(tS[NG * tt + i]), v(7), s(8, 4), s(sbase_reg),
                                                mods=f"offen offset:{tt * 256 * NG + 16 * i} {SCI}"))
        return L

    def stat_math(t4, dmean, drstd):
        b = [g[1] for g in t4]
        L = []
        for (x, y) in (((0, 1), (2, 3), (0, 2)) if NG == 4 else ((0, 1),)):
            for i in range(4):
                L.append(lambda x=x, y=y, i=i: k.I("v_add_f32", v(b[x] + i), v(b[x] + i), v(b[y] + i)))
        L.append(lambda: k.I("v_add_f32", v(b[0]), v(b[0]), v(b[0] + 2)))
        L.append(lambda: k.I("v_add_f32", v(b[0] + 1), v(b[0] + 1), v(b[0] + 3)))
        L.append(lambda: k.I("v_mul_f32", v(b[0]), hex(f32bits(-1.0 / 576)), v(b[0])))
        L.append(lambda: k.I("v_mul_f32", v(b[0] + 1), hex(f32bits(1.0 / 576)), v(b[0] + 1)))
        L.append(lambda: k.I("v_fma_f32", v(b[0] + 1), f"-{v(b[0])}", v(b[0]), v(b[0] + 1)))
        L.append(lambda: k.I("v_max_f32", v(b[0] + 1), 0, v(b[0] + 1)))
        L.append(lambda: k.I("v_add_f32", v(b[0] + 1), hex(f32bits(1e-5)), v(b[0] + 1)))
        L.append(lambda: k.I("v_rsq_f32", v(drstd), v(b[0] + 1)))
        if dmean is not None:
            L.append(lambda: k.I("v_mov_b32", v(dmean), v(b[0])))
        return L

    k.I("v_and_b32", v(7), 15, v(2))
    k.I("v_lshlrev_b32", v(7), 6 if NG == 4 else 5, v(7))
    k.I("s_lshl_b32", s(23), s(22), 10 if NG == 4 else 9)
    k.I("s_add_u32", s(23), s(23), hex(WS_ST))
    k.I("v_min_u32", v(24), 143, v(0))
    k.I("v_lshlrev_b32", v(24), 4, v(24))
    k.I("s_mul_i32", s(31), s(20), 2304)
    k.I("s_add_u32", s(31), s(31), hex(WS_CS))
    k.I("v_lshrrev_b32", v(6), 4, v(2))
    k.I("v_lshlrev_b32", v(6), 4, v(6))
    k.I("v_add_u32", v(6), LDS_CS, v(6))

    def cs_loads():
        L = []
        for p in range(9):
            def f(p=p):
                k.I("buffer_load_dwordx4", r4(tC[p]), v(24), s(8, 4), s(31), mods=f"offen {SCI}")
                if p < 8:
                    k.I("s_add_u32", s(31), s(31), 36864)
            L.append(f)
        return L

    def startup_math():
        L = []
        for tt in range(2):
            L += stat_math(tS[NG * tt:NG * tt + NG], 8 + tt, 10 + tt)
            L.append(lambda tt=tt: k.I("v_mul_f32", v(10 + tt), hex(f32bits(-LOG2E)), v(10 + tt)))
            L.append(lambda tt=tt: k.I("v_mul_f32", v(12 + tt), v(10 + tt), v(8 + tt)))
        for p in range(1, 9):
            for i in range(4):
                L.append(lambda p=p, i=i: k.I("v_add_f32", v(tC[0][1] + i), v(tC[0][1] + i), v(tC[p][1] + i)))
        L.append(lambda: k.I("v_add_u32", v(24), LDS_CS, v(24)))
        L.append(lambda: k.I("ds_write_b128", v(24), r4(tC[0])))

        def rel():
            for g in tS + tC:
                P.put(g)
        L.append(rel)
        return L

    def w_read(q, tile):
        st, r = divmod(q, 4)
        slot = st % RING
        wtok[(q, tile)] = k.I("ds_read_b128", r4(WF[(q % 3, tile)]), v(3 + slot // 3),
                              mods=f"offset:{(slot % 3) * STAGE + r * 4096 + tile * 1024}")

    hh_store_tok = {}

    def epi_items(c):
        L = []
        st = c
        for tile in range(4):
            L.append(lambda tile=tile: k.I("ds_read_b128", r4(CS[tile]), v(6), mods=f"offset:{c * 256 + tile * 64}"))
        for tt in range(2):
            g = [ACC[(st, e // 4, tt)][1] + e % 4 for e in range(8)]
            u = [ACC[(st, 2 + e // 4, tt)][1] + e % 4 for e in range(8)]
            cg = [CS[e // 4][1] + e % 4 for e in range(8)]
            cu = [CS[2 + e // 4][1] + e % 4 for e in range(8)]
            for e in range(8):
                L.append(lambda e=e, g=g, tt=tt: k.I("v_mul_f32", v(g[e]), v(10 + tt), v(g[e])))
            for e in range(8):
                L.append(lambda e=e, g=g, cg=cg, tt=tt: k.I("v_fmac_f32", v(g[e]), v(12 + tt), v(cg[e])))
            for e in range(8):
                L.append(lambda e=e, g=g: k.I("v_exp_f32", v(g[e]), v(g[e])))
                L.append(lambda e=e, u=u, cu=cu, tt=tt: k.I("v_fmac_f32", v(u[e]), v(8 + tt), v(cu[e])))
            for e in range(8):
                L.append(lambda e=e, g=g: k.I("v_add_f32", v(g[e]), 1.0, v(g[e])))
            for e in range(8):
                L.append(lambda e=e, g=g: k.I("v_rcp_f32", v(g[e]), v(g[e])))
            for e in range(8):
                L.append(lambda e=e, g=g, u=u: k.I("v_mul_f32", v(u[e]), v(g[e]), v(u[e])))
            for i in range(4):
                L.append(lambda i=i, u=u, tt=tt: k.I("v_cvt_pk_bf16_f32", v(16 + 4 * tt + i), v(u[2 * i]), v(u[2 * i + 1])))

            def stf(tt=tt):
                if c % 4 == 0 and c and tt == 0:
                    k.I("s_add_u32", s(28), s(28), 4096)
                tk = k.I("buffer_store_dwordx4", v(16 + 4 * tt, 4), v(3 if tt == 0 else 14), s(8, 4), s(28),
                         mods=f"offen offset:{(c % 4) * 1024} {SC}")
                if tt == 1:
                    hh_store_tok[c] = tk
            L.append(stf)

        def rel():
            for tile in range(4):
                for tt in range(2):
                    P.put(ACC.pop((c, tile, tt)))
        L.append(rel)
        return L

    def flag_store(tokfn, sreg, val):
        def f():
            k.wait_vm(tokfn())
            k.I("v_mov_b32", v(25), val)
            k.I("buffer_store_dword", v(25), v(15), s(8, 4), s(sreg), mods=f"offen {SC}")
        return f

    npoll = [0]

    def poll_issue(sreg, dst):
        return k.I("buffer_load_dwordx4", r4(dst), v(15), s(8, 4), s(sreg), mods=f"offen {SC}")

    def poll_check(sreg, dst, level, skip_reg=None, skip2=None):
        npoll[0] += 1
        n = npoll[0]
        b = dst[1]

        def test():
            if skip_reg is not None:
                for i in range(4):
                    k.I("s_cmp_eq_u32", s(skip_reg), i)
                    k.I("s_cselect_b32", s(59), level, 0)
                    k.I("v_max_u32", v(b + i), s(59), v(b + i))
                    if skip2 is not None:
                        k.I("s_cmp_eq_u32", s(skip2), i)
                        k.I("s_cselect_b32", s(59), level, 0)
                        k.I("v_max_u32", v(b + i), s(59), v(b + i))
            k.I("v_min_u32", v(b), v(b), v(b + 1))
            k.I("v_min_u32", v(b + 2), v(b + 2), v(b + 3))
            k.I("v_min_u32", v(b), v(b), v(b + 2))
            k.I("v_readfirstlane_b32", s(59), v(b))
            k.I("s_cmp_ge_u32", s(59), level)
        test()
        k.I("s_cbranch_scc1", f"KCD_PD{n}")
        k.I("s_mov_b32", s(60), 20000)
        k.label(f"KCD_PL{n}")
        save = (list(k.vmq), list(k.dsq))
        k.I("s_sub_u32", s(60), s(60), 1)
        k.I("s_cmp_eq_u32", s(60), 0)
        k.I("s_cbranch_scc1", f"KCD_PD{n}")
        k.I("s_sleep", 1)
        poll_issue(sreg, dst)
        k.wait(vm=0)
        test()
        k.I("s_cbranch_scc0", f"KCD_PL{n}")
        k.vmq, k.dsq = save
        k.label(f"KCD_PD{n}")

    WD = {}
    HH = {}

    def wd_load(i, r):
        def f():
            WD[(i, r)] = P.get()
            k.I("s_add_u32", s(59), s(32), i * 36864 + (r // 4) * 4096)
            k.I("buffer_load_dwordx4", r4(WD[(i, r)]), v(3), s(8, 4), s(59), mods=f"offen offset:{(r % 4) * 1024} {SCI}")
        return f

    def hh_load(p, i, tt):
        def f():
            HH[(p, i, tt)] = P.get()
            if i >= 4:
                k.I("s_add_u32", s(59), s(36 + p), (i // 4) * 4096)
            k.I("buffer_load_dwordx4", r4(HH[(p, i, tt)]), v(3 if tt == 0 else 14), s(8, 4), s(59) if i >= 4 else s(36 + p),
                mods=f"offen offset:{(i % 4) * 1024} {SC}")
        return f

    def sync(st):
        k.wait_vm(dma_tok[st])
        k.I("s_barrier")

    staged = [(5, r) for r in range(9)] + [(6, r) for r in range(9)] + [(7, 0)]
    staged.sort(key=lambda x: (x[1], x[0]))
    stg_tok = {}

    def wd_stage(n):
        i, r = staged[n]

        def f():
            k.I("s_add_u32", "m0", s(61), n * 1024)
            k.I("s_add_u32", s(59), s(32), i * 36864 + r * 1024)
            stg_tok[n] = k.I("buffer_load_dwordx4", v(3), s(8, 4), s(59), mods=f"offen {SCI} lds")
        return f

    def wd_unstage(n):
        def f():
            WD[staged[n]] = P.get()
            k.wait_vm(stg_tok[n])
            k.I("ds_read_b128", r4(WD[staged[n]]), v(5), mods=f"offset:{n * 1024}")
        return f

    pre_tok = {}

    def prefill_items():
        L = []

        def init():
            k.I("v_lshl_add_u32", v(26), v(1), 10, v(3))
            k.I("v_and_b32", v(27), 1, v(1))
            k.I("v_lshl_add_u32", v(27), v(27), 10, v(3))
            k.I("v_add_u32", v(27), 16384, v(27))
            for i in range(4):
                k.I("v_mov_b32", v(16 + i), -1)
        L.append(init)
        for n in range(5):
            def f(n=n):
                if 0 < n < 4:
                    k.I("s_add_u32", s(59), s(47), n * 4096)
                pre_tok[0] = k.I("buffer_store_dwordx4", v(16, 4), v(26 if n < 4 else 27), s(8, 4),
                                 s(59) if 0 < n < 4 else s(47), mods=f"offen {SC}")
            L.append(f)
        return L

    seq = [(c, kb) for kb in range(18) for c in range(4)] + [(c, kb) for c in range(4, 9) for kb in range(18)]
    NU = len(seq)
    vq = deque()
    sync(0)
    ST.stamp()
    for q in range(2):
        for tile in range(4):
            w_read(q, tile)
    vq += dma_items(3) + x_items(3, 4)
    pollreg = None
    lateq = deque()
    side = deque()
    wdq = deque()
    pace = 1.0
    credit = 0.0
    allw = deque([wd_load(i, r) for r in range(9) for i in range(5)])
    for q, (c, kb) in enumerate(seq):
        if q == 24:
            vq += stat_loads(tS, 23) + cs_loads()
        if q == 40 and fused:
            vq += prefill_items()
        if q == 68 and fused:
            flag_store(lambda: pre_tok[0], 50, 1)()
        if q == 48:
            side += startup_math()
            pace = 1.0
        if q >= 72 and kb == 0:
            if "stC" in dbg:
                ST2.stamp()
            while side:
                it = side.popleft()
                if it is not None:
                    it()
            for tile in range(4):
                for tt in range(2):
                    ACC[(c, tile, tt)] = P.get("v")
            drain = {4: [0, 1], 5: [2, 3], 6: [4, 5], 7: [6], 8: [7]}[c]
            first_gap = True
            for d in drain:
                side += epi_items(d)
            pace = len(side) / (130.0 if len(drain) > 1 else 90.0)
            if c == 4:
                wdq += [wd_stage(n) for n in range(NSTG)]
        un = q + 2
        for m in range(8):
            tile, tt = divmod(m, 2)
            if m == 0:
                k.wait_ds(wtok[(q, 3)])
            ac = r4(ACC[(c, tile, tt)])
            k.I(MF, ac, r4(WF[(q % 3, tile)]), r4(X[(tt, kb)]), ac if kb else 0)
            nf = 0
            if un < NU and m % 2 == 0:
                if m == 0 and un % 4 == 0:
                    stn = un // 4
                    if stn == 17:
                        while side:
                            side.popleft()()
                        k.wait(lg=0)
                    sync(stn)
                    if stn + RING - 2 < NSTAGE:
                        vq += dma_items(stn + RING - 2)
                        if stn + RING - 2 < 18:
                            vq += x_items(stn + RING - 2, stn + RING - 1)
                w_read(un, m // 2)
                nf += 1
            elif vq:
                vq.popleft()()
                nf += 1
            elif wdq and m == 3:
                wdq.popleft()()
                nf += 1
            elif allw and q >= 72 and m == 5 and P.n() > (17 if c < 6 else 9):
                allw.popleft()()
                nf += 1
            elif lateq and P.n() > 0:
                lateq.popleft()()
                nf += 1
            credit += pace
            if q >= 72 and kb == 0 and m < 3:
                credit = 0.0
            while side and credit >= 1.0 and nf < 3:
                side.popleft()()
                credit -= 1.0
                nf += 1
            if not side:
                credit = 0.0
        if c == NA and kb == 16:
            assert not side
            flag_store(lambda: hh_store_tok[NA - 1], 44, 1)()
        if c == 8:
            for tt in range(2):
                P.put(X[(tt, kb)])
            if kb == 0:
                assert not allw and not wdq, (len(allw), len(wdq))
                pollreg = P.get("v")
                lateq += [wd_unstage(n) for n in range(6)]
            if kb == 6:
                poll_issue(40, pollreg)
            if kb == 8:
                poll_check(40, pollreg, 1)
                lateq.extendleft(reversed([hh_load(0, i, tt) for i in range(NA) for tt in range(2)]))
                lateq += [wd_unstage(n) for n in range(6, NSTG)]
    while side:
        side.popleft()()
    ST.stamp()
    for g in WF.values():
        P.put(g)
    while lateq:
        lateq.popleft()()

    k.I("v_mul_u32_u24", v(4), 18432, v(1))
    k.I("v_add_u32", v(4), v(4), v(3))
    k.I("v_add_u32", v(5), BUF, v(4))
    k.I("v_lshl_add_u32", v(26), v(1), 10, v(3))
    k.I("v_and_b32", v(27), 1, v(1))
    k.I("v_lshl_add_u32", v(27), v(27), 10, v(3))
    k.I("v_add_u32", v(27), 16384, v(27))
    lateq += [hh_load(1, i, tt) for i in range(NA) for tt in range(2)]
    lateq += [wd_load(i, r) for r in range(9) for i in range(NA, 9) if (i, r) not in staged]
    lateq += [hh_load(2, i, tt) for i in range(NA) for tt in range(2)]

    side = deque(epi_items(8))

    def rel_c():
        for g in CS:
            P.put(g)
    side.append(rel_c)

    red_tok = {}
    red_done = {}

    def reduce_items(p):
        L = []
        buf = (p % 2) * BUF
        T = [("v", 16), ("v", 20)]
        extra = []

        def start():
            extra.append(P.get("v"))
            extra.append(P.get("v"))
        L.append(start)
        for n in range(5):
            def rd(n=n):
                regs = T + extra
                k.I("v_add_u32", v(24), buf + (n * 4096 if n < 4 else 0), v(26 if n < 4 else 27))
                for w2 in range(4):
                    k.I("ds_read_b128", r4(regs[w2]), v(24), mods=f"offset:{w2 * 18432}")
            L.append(rd)
            L += [None] * 3
            for (x, y) in ((0, 1), (2, 3), (0, 2)):
                for i in range(4):
                    L.append(lambda x=x, y=y, i=i: k.I("v_add_f32", v((T + extra)[x][1] + i), v((T + extra)[x][1] + i), v((T + extra)[y][1] + i)))

            def stf(n=n):
                if n < 4 and n:
                    k.I("s_add_u32", s(59), s(45 + p), n * 4096)
                red_tok[p] = k.I("buffer_store_dwordx4", r4(T[0]), v(26 if n < 4 else 27), s(8, 4),
                                 s(59) if 0 < n < 4 else s(45 + p), mods=f"offen {SC}")
            L.append(stf)

        def fin():
            P.put(extra[0])
            P.put(extra[1])
            red_done[p] = red_tok[p]
        L.append(fin)
        return L

    passes = [(0, list(range(NA)), True), (1, list(range(NA)), True), (0, list(range(NA, 9)), False),
              (1, list(range(NA, 9)), False), (2, list(range(9)), True), (3, list(range(9)), True)]
    WDLY = 4
    pend_w = deque()
    events = {}

    def at(pi, mi, fn):
        events.setdefault((pi, mi), []).append(fn)

    def barrier():
        k.wait(lg=0)
        k.I("s_barrier")

    at(0, 2, barrier)
    at(0, 120, flag_store(lambda: hh_store_tok[8], 44, 2))
    nA = 18 * NA
    at(1, nA - 60, lambda: poll_issue(40, pollreg))

    def lvl2():
        poll_check(40, pollreg, 2)
        P.put(pollreg)
        lateq.extendleft(reversed([hh_load(p, i, tt) for p in range(2) for i in range(NA, 9) for tt in range(2)]))
        lateq.extend([hh_load(2, i, tt) for i in range(NA, 9) for tt in range(2)])
        lateq.extend([hh_load(3, i, tt) for i in range(9) for tt in range(2)])
    at(1, nA - 36, lvl2)

    def b_red(p):
        def f():
            while side:
                it = side.popleft()
                if it is not None:
                    it()
            barrier()
            side.extend(reduce_items(p))
        return f
    at(3, 8, b_red(0))
    at(4, 20, b_red(1))
    at(4, 90, flag_store(lambda: red_done[0], 48, 1))
    at(4, 158, flag_store(lambda: red_done[1], 49, 1))
    at(5, 8, b_red(2))
    if not fused:
        at(5, 100, flag_store(lambda: red_done[2], 50, 1))

    fin = {}

    def fin_setup():
        k.I("s_lshl_b32", s(53), s(21), 3)
        k.I("s_lshl_b32", s(54), s(16), 1)
        k.I("s_add_u32", s(53), s(53), s(54))
        k.I("s_and_b32", s(54), s(3), 1)
        k.I("s_add_u32", s(53), s(53), s(54))
        k.I("s_lshl_b32", s(23), s(53), 10 if NG == 4 else 9)
        k.I("s_add_u32", s(23), s(23), hex(WS_ST))
        fin["st"] = [P.get("v") for _ in range(NG)]
        for f in stat_loads(fin["st"], 23, 1):
            f()
        k.I("s_mul_i32", s(54), s(53), 72 * 256)
        k.I("s_mul_i32", s(55), s(17), 18 * 256)
        k.I("s_add_u32", s(54), s(54), s(55))
        k.I("s_add_u32", s(54), s(54), hex(WS_H))
        k.I("s_lshr_b32", s(56), s(3), 1)
        k.I("s_lshl_b32", s(55), s(56), 9)
        k.I("s_add_u32", s(55), s(55), s(54))
        k.I("s_add_u32", s(54), s(54), 4096)
        k.I("v_and_b32", v(8), 15, v(2))
        k.I("v_lshlrev_b32", v(9), 4, v(8))
        k.I("v_lshrrev_b32", v(10), 5, v(2))
        k.I("v_lshl_add_u32", v(9), v(10), 8, v(9))
        k.I("v_bfe_u32", v(10), v(2), 4, 1)
        k.I("v_lshl_add_u32", v(9), v(10), 3, v(9))
        fin["res"] = [P.get("v") for _ in range(3)]
        for n in range(5):
            g = fin["res"][n // 2]
            k.I("buffer_load_dwordx2", v(g[1] + 2 * (n % 2), 2), v(9), s(8, 4), s(55) if n < 4 else s(54),
                mods=f"offen offset:{n * 1024 if n < 4 else 0} {SCI}")
        k.I("v_mul_u32_u24", v(9), 1152, v(8))
        k.I("v_lshrrev_b32", v(10), 4, v(2))
        k.I("v_lshl_add_u32", v(9), v(10), 3, v(9))
        k.I("s_mul_i32", s(53), s(53), 16 * 1152)
        k.I("s_mul_i32", s(54), s(17), 288)
        k.I("s_add_u32", s(53), s(53), s(54))
        k.I("s_lshl_b32", s(54), s(56), 5)
        k.I("s_add_u32", s(54), s(54), s(53))
        fin["poll"] = P.get("v")
    at(5, 40, fin_setup)
    at(5, 100, lambda: side.extend(stat_math(fin["st"], None, 11)))
    fin["rp"] = {}

    def rp_loads(d, alloc=True):
        k.I("s_add_u32", s(57), s(16), d)
        k.I("s_and_b32", s(57), s(57), 3)
        k.I("s_mul_i32", s(57), s(57), 18432)
        k.I("s_add_u32", s(57), s(57), s(51))
        for n in range(5):
            if alloc:
                fin["rp"][(d, n)] = P.get("v")
            g = fin["rp"][(d, n)]
            if 0 < n < 4:
                k.I("s_add_u32", s(58), s(57), n * 4096)
            k.I("buffer_load_dwordx4", r4(g), v(26 if n < 4 else 27), s(8, 4), s(58) if 0 < n < 4 else s(57), mods=f"offen {SC}")

    if fused:
        def early_rp():
            poll_check(52, fin["poll"], 1, skip_reg=16)
            rp_loads(3)
            rp_loads(2)
        at(5, 60, lambda: poll_issue(52, fin["poll"]))
        at(5, 110, early_rp)
        at(5, 150, lambda: rp_loads(1))

        def fin_loads():
            k.I("s_mov_b32", s(60), 20000)
            k.label("KCD_SL")
            b = [fin["rp"][(1, n)][1] for n in range(5)]
            k.I("v_max3_u32", v(24), v(b[0]), v(b[0] + 1), v(b[0] + 2))
            regs = [b[0] + 3] + [b[n] + i for n in range(1, 5) for i in range(4)]
            while len(regs) >= 2:
                k.I("v_max3_u32", v(24), v(24), v(regs.pop()), v(regs.pop()))
            k.I("v_max_u32", v(24), v(24), v(regs.pop()))
            k.I("v_cmp_eq_u32", "vcc", -1, v(24))
            k.I("s_cbranch_vccz", "KCD_SD")
            k.I("s_sub_u32", s(60), s(60), 1)
            k.I("s_cmp_eq_u32", s(60), 0)
            k.I("s_cbranch_scc1", "KCD_SD")
            rp_loads(1, alloc=False)
            k.wait(vm=0)
            k.I("s_branch", "KCD_SL")
            k.label("KCD_SD")
    else:
        at(5, 120, lambda: poll_issue(52, fin["poll"]))

        def fin_loads():
            poll_check(52, fin["poll"], 1, skip_reg=16)
            for d in range(1, 4):
                rp_loads(d)

    for pi, (p, il, first) in enumerate(passes):
        wbase = 4 + p % 2
        accs = {}
        if "stD" in dbg:
            ST2.stamp()

        def acc_get(r):
            accs[r] = [P.get(), P.get()]
            if not first:
                for tt in range(2):
                    k.I("ds_read_b128", r4(accs[r][tt]), v(wbase), mods=f"offset:{(2 * r + tt) * 1024}")
        ahead = 1 if first else 4
        for r in range(ahead):
            acc_get(r)
        mi = 0
        for r in range(9):
            LS.stamp(f"p{pi}r{r}")
            for n_i, i in enumerate(il):
                for tt in range(2):
                    while (i, r) not in WD or (p, i, tt) not in HH:
                        lateq.popleft()()
                    ac = r4(accs[r][tt])
                    k.I(MF, ac, r4(WD[(i, r)]), r4(HH[(p, i, tt)]), 0 if (first and n_i == 0) else ac)
                    nf = 0
                    for fn in events.pop((pi, mi), []):
                        fn()
                        nf += 1
                    if pend_w and pend_w[0][0] <= 0:
                        pend_w.popleft()[1]()
                        nf += 1
                    pend_w = deque((cd - 1, fn) for cd, fn in pend_w)
                    if lateq and P.n() > 6 and nf < 2 and mi % 2 == 1:
                        lateq.popleft()()
                        nf += 1
                    while side and nf < 2:
                        it = side.popleft()
                        if it is None:
                            break
                        it()
                        nf += 1
                    if r == 8:
                        P.put(HH.pop((p, i, tt)))
                    if pi == 5 and tt == 1:
                        P.put(WD.pop((i, r)))
                    mi += 1
            for tt in range(2):
                def wr(r=r, tt=tt, g=accs[r][tt], wbase=wbase):
                    k.I("ds_write_b128", v(wbase), r4(g), mods=f"offset:{(2 * r + tt) * 1024}")
                    P.put(g)
                pend_w.append((WDLY + tt, wr))
            if r + ahead < 9:
                acc_get(r + ahead)
        if pi == 1 or pi == 2:
            pass
    assert not events, events.keys()
    ST.stamp()
    if "stD" in dbg:
        ST2.stamp()
    while pend_w:
        pend_w.popleft()[1]()
    while side:
        it = side.popleft()
        if it is not None:
            it()
    LS.stamp("mfma end")
    if not fused:
        fin_loads()
    if "stD" in dbg:
        ST2.stamp()
    barrier()
    ST.stamp()
    for n in range(5):
        regs = [P.get("v") for _ in range(4)]
        k.I("v_add_u32", v(24), BUF + (n * 4096 if n < 4 else 0), v(26 if n < 4 else 27))
        for w2 in range(4):
            k.I("ds_read_b128", r4(regs[w2]), v(24), mods=f"offset:{w2 * 18432}")
        fin[("own", n)] = regs
    if fused:
        k.wait(vm=0)
        fin_loads()
    LS.stamp("fin loads")
    for n in range(5):
        b = [g[1] for g in fin[("own", n)]]
        rp = [fin["rp"][(d, n)][1] for d in range(1, 4)]
        for i in range(4):
            k.I("v_add_f32", v(b[0] + i), v(b[0] + i), v(b[1] + i))
            k.I("v_add_f32", v(b[2] + i), v(b[2] + i), v(b[3] + i))
            k.I("v_add_f32", v(rp[0] + i), v(rp[0] + i), v(rp[1] + i))
        for i in range(4):
            k.I("v_add_f32", v(b[0] + i), v(b[0] + i), v(b[2] + i))
            k.I("v_add_f32", v(rp[0] + i), v(rp[0] + i), v(rp[2] + i))
        for i in range(4):
            k.I("v_add_f32", v(b[0] + i), v(b[0] + i), v(rp[0] + i))
        rs = fin["res"][n // 2][1] + 2 * (n % 2)
        for i in range(2):
            k.I("v_lshlrev_b32", v(b[1] + 2 * i), 16, v(rs + i))
            k.I("v_and_b32", v(b[1] + 2 * i + 1), "0xffff0000", v(rs + i))
        for i in range(4):
            k.I("v_fma_f32", v(b[0] + i), v(b[0] + i), v(11), v(b[1] + i))
        k.I("v_cvt_pk_bf16_f32", v(b[2]), v(b[0]), v(b[0] + 1))
        k.I("v_cvt_pk_bf16_f32", v(b[2] + 1), v(b[0] + 2), v(b[0] + 3))
        k.I("buffer_store_dwordx2", v(b[2], 2), v(9), s(12, 4), s(54) if n < 4 else s(53),
            mods=f"offen offset:{n * 64 if n < 4 else 256}")
    ST.stamp()
    ST.dump(8, 16, 2)
    if "stD" in dbg:
        ST2.stamp()
    ST2.dump(8, 16, 2)
    LS.stamp("end")
    LS.dump(8, 16, 1)
```

```python
from common import *
import k_ab3, k_cd
from k_ab3 import S_WS


def build_f(dbg=""):
    name = NAME + "_kernel"
    k = Kern(name)
    ST = Stamps(k, 64, "stamp" in dbg)
    k.I("s_cmp_ge_u32", s(2), 256)
    k.I("s_cbranch_scc1", "KF_END")
    ST.stamp()
    k.I("s_getpc_b64", s(36, 2))
    k.label("KF_PC")
    k.I("s_lshr_b32", s(38), s(2), 3)
    k.I("s_lshl_b32", s(38), s(38), 12)
    k.I("v_lshlrev_b32", v(4), 4, v(0))
    k.I("v_add_u32", v(4), s(38), v(4))
    k.raw("    v_min_u32 v4, KF_END-KF_PC-16, v4")
    if "nocode" not in dbg:
        k.I("global_load_dwordx4", v(196, 4), v(4), s(36, 2))
    STa = ST if "stA" in dbg else Stamps(k, 64, False)

    def zero_flags():
        k.I("v_lshlrev_b32", v(188), 2, v(2))
        k.I("s_lshl_b32", s(22), s(2), 7)
        k.I("s_add_u32", s(22), s(22), hex(WS_F1))
        k.I("s_add_u32", s(23), s(22), hex(WS_F2 - WS_F1))
        k.I("v_min_u32", v(188), 124, v(188))
        k.I("buffer_store_dword", v(3), v(188), s(S_WS, 4), s(22), mods="offen sc1")
        k.I("buffer_store_dword", v(3), v(188), s(S_WS, 4), s(23), mods="offen sc1")
        if "tlb" in dbg:
            k.I("v_lshlrev_b32", v(188), 18, v(0))
            k.I("buffer_load_dword", v(189), v(188), s(S_WS, 4), 0, mods="offen")
    k_ab3.emit_ab(k, "KAB", STa, dbg, sc="sc1", early=zero_flags, prepoll=True)
    htok = k.vmq[-1][0]
    k.I("s_lshl_b32", s(62), s(20), 6)
    k.I("s_lshl_b32", s(63), s(21), 3)
    k.I("s_add_u32", s(62), s(62), s(63))
    k.I("s_add_u32", s(62), s(62), hex(WS_FH))

    def publish():
        k.wait_vm(htok)
        k.I("s_barrier")
        k.I("s_cmp_lg_u32", s(3), 0)
        k.I("s_cbranch_scc1", "KF_NH")
        k.I("v_mov_b32", v(15), 0)
        k.I("buffer_store_dwordx2", v(248, 2), v(15), s(S_WS, 4), s(62), mods="offen sc1")
        k.vmq.pop()
        k.label("KF_NH")
    if "stA" in dbg:
        ST.dump(8, 100, 3)
        STc = Stamps(k, 64, False)
    else:
        ST.stamp()
        STc = ST
    k_cd.emit_cd(k, STc, dbg, 6 if "na6" in dbg else 7, True, publish=publish)
    if "dbgout" in dbg:
        k.I("s_cmp_lg_u32", s(2), 17)
        k.I("s_cbranch_scc1", "KF_END")
        k.I("s_cmp_lg_u32", s(3), 0)
        k.I("s_cbranch_scc1", "KF_END")
        k.I("s_load_dwordx2", s(4, 2), s(0, 2), KA_DBG)
        k.wait(lg=0)
        srd(k, 12, 4, 256)
        k.I("v_mov_b32", v(4), 0)
        for i in range(1, ST.n):
            k.I("s_sub_u32", s(20), s(64 + 4 * i + 2), s(66))
            k.I("v_mov_b32", v(5), s(20))
            k.I("buffer_store_dword", v(5), v(4), s(12, 4), 0, mods=f"offen offset:{12 + 4 * i}")
        k.I("s_sub_u32", s(20), s(64 + 4 * (ST.n - 1)), s(64))
        k.I("v_mov_b32", v(5), s(20))
        k.I("buffer_store_dword", v(5), v(4), s(12, 4), 0, mods="offen offset:56")
    k.label("KF_END")
    k.I("s_endpgm")
    return k, "grid=(256,1,1) block=(256,1,1) lds=%d" % k_cd.LDS_TOTAL
```

```python
from common import *
from k_frag import f32bits
import k_prep
from k_prep import PrepRegs
from k_a2 import reduce_groups

MF = "v_mfma_f32_16x16x32_bf16"
XB = 10240
WBLK = 3616
STG = XB + 29 * 1024
L_PREP = 122880
PQ = 440
L_WO = 0
L_QKV = 83968
L_ST = 119808
L_CS = 120576
LDS_TOTAL = 162048
LOG2E = 1.4426950408889634
NEG = -1e30
BC, B0, QM, ONES, AQ, AV, AKP, AVP, AO = 216, 224, 228, 236, 240, 241, 242, 243, 244
PVB = 160
NBG = 64
S_WS, S_X, S_QKV, S_WO, S_DBG, S_WG, S_WU, S_WD = 8, 12, 16, 44, 48, 52, 56, 60


def att_setup(k):
    k.I("v_and_b32", v(14), 15, v(2))
    k.I("v_lshrrev_b32", v(15), 4, v(2))
    k.I("v_mul_u32_u24", v(AQ), PQ, v(14))
    k.I("v_lshl_add_u32", v(AQ), v(15), 4, v(AQ))
    k.I("v_lshrrev_b32", v(AV), 2, v(2))
    k.I("v_mul_u32_u24", v(AV), PQ, v(AV))
    k.I("v_and_b32", v(16), 3, v(2))
    k.I("v_lshl_add_u32", v(AV), v(16), 3, v(AV))
    k.I("s_mul_i32", s(23), s(3), s(27))
    k.I("s_mul_i32", s(23), s(23), 16 * PQ)
    k.I("s_add_u32", s(23), s(23), L_QKV)
    k.I("s_add_u32", s(22), s(3), 1)
    k.I("s_mul_i32", s(22), s(22), 16 * PQ)
    k.I("s_add_u32", s(22), s(22), L_QKV)
    k.I("v_add_u32", v(AKP), s(23), v(AQ))
    k.I("v_add_u32", v(AVP), s(23), v(AV))
    k.I("v_add_u32", v(AQ), s(22), v(AQ))
    k.I("v_add_u32", v(AV), s(22), v(AV))
    k.I("v_mov_b32", v(16), hex(f32bits(NEG)))
    k.I("v_lshlrev_b32", v(17), 2, v(15))
    k.I("v_sub_u32", v(17), v(14), v(17))
    k.I("s_cmp_eq_u32", s(3), 0)
    k.I("s_cselect_b32", s(22), 8, 0)
    k.I("s_cselect_b32", s(23), 8, 16)
    k.I("s_or_b32", s(38), s(20), s(27))
    k.I("s_cmp_eq_u32", s(38), 0)
    k.I("s_cselect_b32", s(23), 0, s(23))
    for r in range(4):
        k.I("v_subrev_u32", v(246), r, v(17))
        k.I("v_cmp_gt_u32", "vcc", 8, v(246))
        k.I("v_cndmask_b32", v(BC + r), v(16), 0, "vcc")
        k.I("v_subrev_u32", v(247), s(22), v(246))
        k.I("v_cmp_gt_i32", "vcc", -8, v(247))
        k.I("v_lshl_add_u32", v(247), v(15), 2, r)
        k.I("v_cmp_gt_u32", s(40, 2), s(23), v(247))
        k.I("s_and_b64", "vcc", "vcc", s(40, 2))
        k.I("v_cndmask_b32", v(B0 + r), v(16), 0, "vcc")
        k.I("v_cmp_gt_u32", "vcc", 9, v(247))
        k.I("v_cndmask_b32", v(QM + r), 0, -1, "vcc")
        k.I("v_subrev_u32", v(247), 1, v(247))
        k.I("v_cmp_gt_u32", "vcc", 9, v(247))
        k.I("v_cndmask_b32", v(QM + 4 + r), 0, -1, "vcc")
        k.I("v_mov_b32", v(ONES + r), "0x3f803f80")
    k.I("v_lshlrev_b32", v(246), 1, v(14))
    k.I("v_add_u32", v(246), s(28), v(246))
    k.I("v_lshrrev_b32", v(247), 4, v(246))
    k.I("v_mul_u32_u24", v(247), 2304, v(247))
    k.I("v_and_b32", v(246), 15, v(246))
    k.I("v_lshl_add_u32", v(247), v(246), 4, v(247))
    k.I("s_mul_i32", s(22), s(27), 4608)
    k.I("s_add_u32", s(22), s(22), L_PREP)
    k.I("v_add_u32", v(247), s(22), v(247))
    k.I("v_lshrrev_b32", v(246), 1, v(15))
    k.I("v_lshl_add_u32", v(AO), v(246), 8, v(247))
    k.I("v_and_b32", v(246), 1, v(15))
    k.I("v_lshl_add_u32", v(AO), v(246), 3, v(AO))
    k.I("v_add_u32", v(16), 1, v(15))
    k.I("v_lshrrev_b32", v(246), 1, v(16))
    k.I("v_lshl_add_u32", v(AO + 1), v(246), 8, v(247))
    k.I("v_and_b32", v(246), 1, v(16))
    k.I("v_lshl_add_u32", v(AO + 1), v(246), 3, v(AO + 1))


class Prep:
    NSL = 6

    def __init__(self, k, U, sc):
        self.k, self.U, self.sc = k, U, sc
        self.tok = {}

    def decode(self):
        k = self.k
        k.I("s_lshl_b32", s(42), s(2), 2)
        k.I("s_add_u32", s(42), s(42), s(3))
        k.I("s_mul_i32", s(7), s(3), self.NSL * 1024)
        k.I("s_add_u32", s(7), s(7), L_PREP)
        k.I("v_lshrrev_b32", v(168), 3, v(2))
        k.I("v_and_b32", v(169), 7, v(2))
        k.I("v_lshrrev_b32", v(170), 4, v(2))
        k.I("v_bfe_u32", v(171), v(2), 2, 2)
        k.I("v_and_b32", v(172), 3, v(2))
        k.I("v_and_b32", v(173), 15, v(2))
        k.I("v_lshlrev_b32", v(161), 7, v(171))
        k.I("v_add_u32", v(161), s(7), v(161))
        k.I("v_mov_b32", v(164), 0)
        k.I("v_mov_b32", v(165), 0)
        k.I("v_mov_b32", v(166), "0x3f803f80")
        k.I("s_cmp_ge_u32", s(42), 648)
        k.I("s_cbranch_scc1", f"{self.U}_PW")
        k.I("s_mov_b32", s(4), 1)
        k.I("s_mul_i32", s(43), s(42), 911)
        k.I("s_lshr_b32", s(43), s(43), 16)
        k.I("s_mul_i32", s(5), s(43), 72)
        k.I("s_sub_u32", s(42), s(42), s(5))
        k.I("s_mul_i32", s(5), s(43), 64 * 9216)
        k.I("s_lshl_b32", s(6), s(42), 7)
        k.I("s_add_u32", s(5), s(5), s(6))
        k.I("s_mul_i32", s(6), s(42), 147456)
        k.I("s_lshl_b32", s(41), s(43), 13)
        k.I("s_add_u32", s(6), s(6), s(41))
        k.I("s_add_u32", s(6), s(6), hex(WS_WGU))
        k.I("s_mul_i32", s(43), s(43), 36864)
        k.I("s_lshl_b32", s(42), s(42), 9)
        k.I("s_add_u32", s(43), s(43), s(42))
        k.I("s_add_u32", s(43), s(43), hex(WS_CS))
        k.I("v_mov_b32", v(163), s(43))
        k.I("v_mul_u32_u24", v(160), 9216, v(168))
        k.I("v_lshrrev_b32", v(174), 1, v(170))
        k.I("v_and_b32", v(175), 1, v(170))
        k.I("v_lshl_add_u32", v(161), v(174), 6, v(161))
        k.I("v_lshl_add_u32", v(161), v(172), 4, v(161))
        k.I("v_lshl_add_u32", v(161), v(175), 3, v(161))
        k.I("v_mul_u32_u24", v(162), 73728, v(174))
        k.I("v_lshl_add_u32", v(162), v(175), 10, v(162))
        k.I("v_lshl_add_u32", v(163), v(174), 8, v(163))
        k.I("v_lshl_add_u32", v(163), v(175), 6, v(163))
        k.I("v_lshl_add_u32", v(163), v(173), 2, v(163))
        k.I("s_branch", f"{self.U}_PD")
        k.label(f"{self.U}_PW")
        k.I("s_mov_b32", s(4), 0)
        k.I("s_sub_u32", s(42), s(42), 648)
        k.I("s_mul_i32", s(43), s(42), 7282)
        k.I("s_lshr_b32", s(43), s(43), 16)
        k.I("s_mul_i32", s(5), s(43), 9)
        k.I("s_sub_u32", s(41), s(42), s(5))
        k.I("s_cmp_ge_u32", s(42), 324)
        k.I("s_cselect_b32", s(43), "0x1000", s(43))
        k.I("s_mul_i32", s(5), s(43), 16 * 9216)
        k.I("s_lshl_b32", s(6), s(41), 7)
        k.I("s_add_u32", s(5), s(5), s(6))
        k.I("s_mul_i32", s(6), s(43), 4 * 36864)
        k.I("s_lshl_b32", s(41), s(41), 12)
        k.I("s_add_u32", s(6), s(6), s(41))
        k.I("s_add_u32", s(6), s(6), hex(WS_WD))
        k.I("v_mov_b32", v(163), "0x7fffff00")
        k.I("v_mul_u32_u24", v(160), 1152, v(168))
        k.I("v_lshl_add_u32", v(161), v(170), 5, v(161))
        k.I("v_lshl_add_u32", v(161), v(172), 3, v(161))
        k.I("v_lshlrev_b32", v(162), 10, v(170))
        for sr in (S_WG, S_WU):
            k.I("s_mov_b32", s(sr), s(S_WD))
            k.I("s_mov_b32", s(sr + 1), s(S_WD + 1))
        k.label(f"{self.U}_PD")
        k.I("v_lshl_add_u32", v(160), v(169), 4, v(160))
        k.I("v_lshl_add_u32", v(162), v(173), 4, v(162))

    def _off(self, base, cg, cw):
        k = self.k
        k.I("s_mul_i32", s(42), s(4), cg - cw)
        k.I("s_add_u32", s(42), s(42), s(base))
        if cw:
            k.I("s_add_u32", s(42), s(42), cw)

    def load(self, t):
        def f():
            k = self.k
            self._off(5, (t // 2) * 73728, t * 9216)
            k.I("s_add_u32", "m0", s(7), (t % self.NSL) * 1024)
            if "pnold" in self.dbg:
                self.tok[t] = None
                return
            self.tok[t] = k.I("buffer_load_dwordx4", v(160), s(S_WG if t % 2 == 0 else S_WU, 4), s(42),
                              mods="offen nt lds")
        return f

    def read(self, t):
        def f():
            k = self.k
            k.wait_vm(self.tok[t])
            d = 168 + 4 * (t % 4)
            for h in range(2):
                k.I("ds_read_b64_tr_b16", v(d + 2 * h, 2), v(161), mods=f"offset:{(t % self.NSL) * 1024 + h * 512}")
        return f

    def store(self, t):
        def f():
            k = self.k
            d = 168 + 4 * (t % 4)
            for j in range(4):
                k.I("v_dot2c_f32_bf16", v(164 + t % 2), v(d + j), v(166))
            if self.defer:
                for j in range(4):
                    k.I("v_accvgpr_write_b32", a(128 + 4 * t + j), v(d + j))
            else:
                self._st(t, v(d, 4))
        return f

    def _st(self, t, reg):
        self._off(6, (t // 8) * 4096 + (t % 2) * 2048 + ((t // 2) % 4) * 256, (t // 4) * 36864 + (t % 4) * 256)
        self.k.I("buffer_store_dwordx4", reg, v(162), s(S_WS, 4), s(42), mods=f"offen {self.sc}")

    def fin_items(self):
        k = self.k
        L = [lambda t=t: self._st(t, a(128 + 4 * t, 4)) for t in range(16)]
        L += [lambda m=m: k.I("buffer_store_dword", v(164 + m), v(163), s(S_WS, 4), 0, mods=f"offen offset:{m * 128} {self.sc}")
              for m in range(2)]
        return L

    def finish(self):
        k = self.k
        if self.defer:
            for t in range(16):
                self._st(t, a(128 + 4 * t, 4))
        for m in range(2):
            k.I("buffer_store_dword", v(164 + m), v(163), s(S_WS, 4), 0, mods=f"offen offset:{m * 128} {self.sc}")


def nonce_wait(k, L):
    k.I("s_mov_b32", s(43), 20000)
    k.label(f"{L}_NL")
    k.I("v_readfirstlane_b32", s(22), v(248))
    k.I("s_cmp_lg_u32", s(22), 0)
    k.I("s_cbranch_scc1", f"{L}_NOK")
    k.I("s_sub_u32", s(43), s(43), 1)
    k.I("s_cmp_eq_u32", s(43), 0)
    k.I("s_cbranch_scc1", f"{L}_NOK")
    k.I("buffer_load_dwordx2", v(248, 2), v(3), s(S_DBG, 4), 0, mods="offen sc1")
    k.I("s_waitcnt", "vmcnt(0)")
    k.I("s_branch", f"{L}_NL")
    k.label(f"{L}_NOK")


def gemm(k, U, cls, ST, prep, wo_items, touch_items, wofrag, dbg, LS):
    VX, VW = 4, 6
    L = f"{U}_G{cls}"
    xt = [0, 1, 2] if cls == 0 else [3, 4]
    tconst = lambda t: 32 * ((t - 1) & 1) + ((t - 1) >> 1)
    nW = 7 if cls == 0 else 8
    tok = {}

    def wvoff(n):
        k.I("v_add_u32", v(14), 128 * n, v(18))
        if n == 7:
            k.I("v_add_u32", v(15), 28 * 64, v(2))
            k.I("v_min_u32", v(14), v(14), v(15))
            k.I("v_min_u32", v(14), 1807, v(14))
        k.I("v_mul_u32_u24", v(15), 18559, v(14))
        k.I("v_lshrrev_b32", v(15), 22, v(15))
        k.I("v_mul_u32_u24", v(16), 226, v(15))
        k.I("v_sub_u32", v(14), v(14), v(16))
        k.I("v_mul_u32_u24", v(16), 2341, v(14))
        k.I("v_lshrrev_b32", v(16), 16, v(16))
        k.I("v_min_u32", v(16), 7, v(16))
        k.I("v_lshl_add_u32", v(15), v(15), 3, v(16))
        k.I("v_mul_u32_u24", v(16), 28, v(16))
        k.I("v_sub_u32", v(14), v(14), v(16))
        k.I("v_min_u32", v(14), 26, v(14))
        k.I("v_mul_u32_u24", v(16), 57, v(14))
        k.I("v_lshrrev_b32", v(16), 9, v(16))
        k.I("v_mul_u32_u24", v(15), 3456, v(15))
        k.I("v_lshl_add_u32", v(15), v(14), 4, v(15))
        k.I("v_mul_u32_u24", v(16), 1152 - 144, v(16))
        k.I("v_add_u32", v(VW + n), v(15), v(16))

    def dma_items(st):
        base = (st % 3) * STG
        I = []
        for t in xt:
            def f(t=t):
                k.I("s_add_u32", "m0", s(37), base + t * 2048)
                k.I("s_add_u32", s(38), s(34), (tconst(t) * 1152 if t else 0))
                k.I("buffer_load_dwordx4", v(VX + (t == 0)), s(S_X, 4), s(38), mods="offen lds")
            I.append(f)
        for n in range(nW):
            def f(n=n):
                if st == 0:
                    wvoff(n)
                if n < 7:
                    k.I("s_add_u32", "m0", s(24), base + n * 2048)
                else:
                    k.I("s_mov_b32", "m0", base + XB + 28 * 1024)
                tok[st] = k.I("buffer_load_dwordx4", v(VW + n), s(S_QKV, 4), s(25), mods="offen lds")
                if n == nW - 1:
                    k.I("s_add_u32", s(25), s(25), 64 * 3456)
                    k.I("s_add_u32", s(34), s(34), 128)
                    k.I("s_cmp_ge_u32", s(34), 1152)
                    k.I("s_cselect_b32", s(34), 0, s(34))
                    k.I("s_cselect_b32", s(25), s(26), s(25))
            I.append(f)
        return I

    for f in dma_items(0):
        f()
    LS.stamp("S0 issued")
    AX, AP, AW = 20, 26, 38
    k.I("v_and_b32", v(14), 15, v(2))
    k.I("v_lshrrev_b32", v(15), 1, v(14))
    k.I("v_lshrrev_b32", v(16), 4, v(2))
    k.I("v_xor_b32", v(15), v(15), v(16))
    k.I("v_lshlrev_b32", v(14), 7, v(14))
    k.I("v_lshl_add_u32", v(AX), v(15), 4, v(14))
    k.I("v_xor_b32", v(AX + 1), 64, v(AX))
    for sl in range(1, 3):
        k.I("v_add_u32", v(AX + 2 * sl), sl * STG, v(AX))
        k.I("v_add_u32", v(AX + 2 * sl + 1), sl * STG, v(AX + 1))
    k.I("s_add_u32", s(39), s(27), 1 + 2 * cls)
    k.I("s_xor_b32", s(36), s(27), 1)
    k.I("s_add_u32", s(36), s(36), 1 + 2 * cls)
    for pr, sr in enumerate((39, 36)):
        k.I("s_lshl_b32", s(22), s(sr), 11)
        for i in range(6):
            k.I("v_add_u32", v(AP + 6 * pr + i), s(22), v(AX + i))
    k.I("v_lshrrev_b32", v(14), 4, v(2))
    k.I("v_mul_u32_u24", v(14), WBLK, v(14))
    k.I("v_bfe_u32", v(15), v(2), 2, 2)
    k.I("v_mul_u32_u24", v(15), 448, v(15))
    k.I("v_add_u32", v(14), v(14), v(15))
    k.I("v_and_b32", v(15), 3, v(2))
    k.I("v_lshl_add_u32", v(14), v(15), 3, v(14))
    k.I("s_mul_i32", s(22), s(27), 7 * 32)
    k.I("s_add_u32", s(22), s(22), XB)
    k.I("v_add_u32", v(AW), s(22), v(14))
    for sl in range(1, 3):
        k.I("v_add_u32", v(AW + sl), sl * STG, v(AW))
    k.I("v_and_b32", v(14), 15, v(2))
    k.I("v_cmp_eq_u32", s(30, 2), 0, v(14))
    k.I("s_lshl_b32", s(22), s(27), 3)
    k.I("v_add_u32", v(14), s(22), v(14))
    k.I("v_cmp_le_u32", s(32, 2), 16, v(14))
    att_setup(k)
    for f in dma_items(1):
        f()
    hs = list(range(0, 4)) if cls == 0 else list(range(4, 7))
    tiles = [(s_, t) for s_ in range(7) for t in range(2)] + [(s_, "h") for s_ in hs]
    ACC = {t: 72 + 4 * n for n, t in enumerate(tiles)}
    SA = 44
    HF, W6 = 144, 200

    def xf(p, t):
        return v(HF + 4 * p, 4) if t == "h" else a(32 * p + 4 * t, 4)

    def wf(p, s_, h=None):
        if s_ == 6:
            return v(W6 + 4 * p, 4) if h is None else v(W6 + 4 * p + 2 * h, 2)
        return a(32 * p + 8 + 4 * s_, 4) if h is None else a(32 * p + 8 + 4 * s_ + 2 * h, 2)

    def read_items(st):
        I = []
        sl = st % 3
        for ks in range(2):
            p = (2 * st + ks) % 4
            for t in range(2):
                I.append(lambda t=t, p=p, ks=ks: k.I("ds_read_b128", xf(p, t), v(AP + 6 * t + 2 * sl + ks)))
            I.append(lambda p=p, ks=ks: k.I("ds_read_b128", xf(p, "h"), v(AX + 2 * sl + ks)))
            for s_ in range(7):
                for h in range(2):
                    I.append(lambda s_=s_, h=h, p=p, ks=ks: k.I("ds_read_b64_tr_b16", wf(p, s_, h), v(AW + sl),
                                                                mods=f"offset:{ks * 4 * WBLK + h * 4 * 448 + s_ * 32}"))
        return I

    def compute(kb, fill, per):
        p = kb % 4
        z = kb == 0
        mm = [(v(SA, 4), xf(p, 0), xf(p, 0))]
        if cls == 1:
            mm.append((v(SA + 4, 4), xf(p, "h"), xf(p, "h")))
        pre = [lambda: [k.I("v_cndmask_b32", v(HF + 4 * p + j), v(HF + 4 * p + j), v(ONES), s(30, 2)) for j in range(4)],
               lambda: [k.I("v_cndmask_b32", v(W6 + 4 * p + j), v(W6 + 4 * p + j), v(ONES), s(32, 2)) for j in range(4)]]
        fill2 = [None, None] + pre
        for t in tiles:
            mm.append((v(ACC[t], 4), wf(p, t[0]), xf(p, t[1])))
        n = n2 = 0
        for (ac, A_, B_) in mm:
            k.I(MF, ac, A_, B_, 0 if z else ac)
            for _ in range(per):
                if n < len(fill):
                    fill[n]()
                    n += 1
            if n2 < len(fill2):
                if fill2[n2] is not None:
                    fill2[n2]()
                n2 += 1
        while n < len(fill):
            fill[n]()
            n += 1

    def later(st):
        if st < 9:
            return dma_items(st)
        if st == 9:
            return wo_items[0:10]
        if st == 10:
            return wo_items[10:20]
        return []

    LS.stamp("S2 issued")
    k.wait_vm(tok[0])
    k.I("s_barrier")
    LS.stamp("S0 landed")
    ST.stamp()
    for f in read_items(0):
        f()
    for f in dma_items(2):
        f()
    k.wait(lg=0)
    k.I("s_barrier")
    for f in later(3):
        f()
    def early_stuff():
      if prep.early is not None:
        prep.early()
      if prep.sent:
        k.I("s_lshl_b32", s(22), s(20), 2)
        k.I("s_add_u32", s(22), s(22), s(3))
        k.I("s_mul_i32", s(22), s(22), 72 * 256)
        k.I("s_mul_i32", s(23), s(21), 9 * 256)
        k.I("s_add_u32", s(22), s(22), s(23))
        k.I("s_add_u32", s(22), s(22), hex(WS_O))
        k.I("v_lshlrev_b32", v(188), 4, v(2))
        k.I("v_min_u32", v(189), 240, v(188))
        for i in range(4):
            k.I("v_mov_b32", v(184 + i), -1)
        for i in range(3):
            k.I("buffer_store_dwordx4", v(184, 4), v(188 + (i == 2)), s(S_WS, 4), s(22), mods=f"offen offset:{1024 * i} sc1")
    if "late" not in dbg:
        early_stuff()
    def pl(st):
        return [prep.load(2 * st), prep.load(2 * st + 1)] if (0 <= st < 8 and not prep.off) else []

    def pr(st):
        return [prep.read(2 * st), prep.read(2 * st + 1)] if (0 <= st < 8 and not prep.off) else []

    def ps(st):
        return [prep.store(2 * st), prep.store(2 * st + 1)] if (0 <= st < 8 and not prep.off) else []
    LAG = 2 if "late" in dbg else 0
    if not LAG:
        for f in pl(0) + pl(1):
            f()
    for st in range(9):
        if st < 8:
            k.wait_vm(tok[st + 1])
            k.I("s_barrier")
            if st == 1 and "late" in dbg:
                early_stuff()
            if st == 2 and prep.sent:
                k.I("buffer_load_dwordx2", v(248, 2), v(3), s(S_DBG, 4), 0, mods="offen sc1")
            if st == 6 and prep.sent:
                sv = list(k.vmq)
                nonce_wait(k, f"{L}_S")
                k.vmq = sv
                k.I("s_cmp_lg_u32", s(3), 0)
                k.I("s_cbranch_scc1", f"{L}_NFS")
                k.I("s_lshl_b32", s(22), s(20), 6)
                k.I("s_lshl_b32", s(23), s(21), 3)
                k.I("s_add_u32", s(22), s(22), s(23))
                k.I("s_add_u32", s(22), s(22), hex(WS_FP))
                k.I("buffer_store_dwordx2", v(248, 2), v(3), s(S_WS, 4), s(22), mods="offen sc1")
                k.vmq.pop()
                k.label(f"{L}_NFS")
            compute(2 * st, read_items(st + 1) + pr(st - 1 - LAG // 2), 2)
            k.wait(lg=0)
            k.I("s_barrier")
            compute(2 * st + 1, later(st + 4) + ps(st - 1 - LAG // 2) + pl(st + 2 - LAG), 2)
        else:
            fi = prep.fin_items() if prep.defer else []
            compute(2 * st, pr(st - 1 - LAG // 2) + [f for x in fi[:6] for f in (x, lambda: None, lambda: None)], 1)
            compute(2 * st + 1, ps(st - 1 - LAG // 2) + [f for x in fi[6:12] for f in (x, lambda: None, lambda: None)], 1)
        LS.stamp(f"st{st}")
    ST.stamp()
    nt = 1 if cls == 0 else 2
    k.I("v_and_b32", v(14), 15, v(2))
    k.I("v_lshrrev_b32", v(17), 4, v(2))
    k.I("v_lshlrev_b32", v(15), 3, v(14))
    k.I("v_add_u32", v(15), L_ST, v(15))
    k.I("s_lshl_b32", s(22), s(39), 7)
    k.I("v_add_u32", v(20), s(22), v(15))
    k.I("s_lshl_b32", s(22), s(36), 7)
    k.I("v_add_u32", v(21), s(22), v(15))
    k.I("v_and_b32", v(18), 3, v(14))
    for r in range(1, 4):
        k.I("v_cmp_eq_u32", "vcc", r, v(18))
        for t in range(nt):
            k.I("v_cndmask_b32", v(SA + 4 * t), v(SA + 4 * t), v(SA + 4 * t + r), "vcc")
    k.I("v_lshrrev_b32", v(18), 2, v(14))
    k.I("v_cmp_eq_u32", s(34, 2), v(18), v(17))
    k.I("v_lshlrev_b32", v(18), 4, v(17))
    k.I("s_mul_i32", s(22), s(27), 7 * 64)
    k.I("s_add_u32", s(22), s(22), L_CS)
    k.I("v_add_u32", v(18), s(22), v(18))
    k.I("s_lshl_b32", s(22), s(27), 2)
    k.I("v_add_u32", v(25), s(22), v(17))
    k.I("v_cmp_eq_u32", s(40, 2), 6, v(25))
    k.I("s_lshl_b32", s(22), s(27), 1)
    k.I("v_add_u32", v(25), s(22), v(17))
    k.I("v_cmp_gt_u32", s(32, 2), 4, v(25))
    k.I("s_mov_b64", "exec", s(34, 2))
    k.I("ds_write_b32", v(20), v(SA), mods="offset:4")
    if cls == 1:
        k.I("ds_write_b32", v(15), v(SA + 4), mods="offset:4")
    k.I("s_mov_b64", "exec", s(30, 2))
    for s_ in hs:
        k.I("ds_write_b128", v(18), v(ACC[(s_, "h")], 4), mods=f"offset:{64 * s_}")
    k.I("s_cmp_eq_u32", s(27), 0)
    k.I("s_cbranch_scc1", f"{L}_NS")
    k.I("s_mov_b64", "exec", s(40, 2))
    for t in range(2):
        k.I("ds_write_b32", v(20 + t), v(ACC[(6, t)]))
    if cls == 1:
        k.I("ds_write_b32", v(15), v(ACC[(6, "h")]))
    k.label(f"{L}_NS")
    k.I("s_mov_b64", "exec", -1)
    wo_items[20]()
    if not prep.off and not prep.defer:
        prep.finish()
    k.I("v_mov_b32", v(26), hex(f32bits(1.0 / 576)))
    k.I("v_mov_b32", v(27), hex(f32bits(1.0 / 576)))
    k.I("v_mul_u32_u24", v(22), PQ, v(14))
    k.I("v_lshl_add_u32", v(22), v(17), 3, v(22))
    k.I("s_mul_i32", s(22), s(27), 7 * 32)
    k.I("s_add_u32", s(22), s(22), L_QKV)
    k.I("v_add_u32", v(22), s(22), v(22))
    k.I("s_mul_i32", s(22), s(39), 16 * PQ)
    k.I("v_add_u32", v(23), s(22), v(22))
    k.I("s_mul_i32", s(22), s(36), 16 * PQ)
    k.I("v_add_u32", v(24), s(22), v(22))
    k.dsq.append((-2, set()))
    k.wait(lg=0)
    k.I("s_barrier")
    STT = {0: 28, 1: 30, "h": 32}
    CSR = 40
    for t in range(2):
        k.I("ds_read_b64", v(STT[t], 2), v(20 + t))
    k.I("ds_read_b64", v(STT["h"], 2), v(15))
    for s_ in range(7):
        k.I("ds_read_b128", v(CSR + 4 * s_, 4), v(18), mods=f"offset:{64 * s_}")
    if LAG:
        for f in pr(7) + ps(7):
            f()
    B = list(STT.values())
    for b in B:
        k.I("v_pk_mul_f32", v(b, 2), v(b, 2), v(26, 2))
    for b in B:
        k.I("v_fma_f32", v(b + 1), f"-{v(b)}", v(b), v(b + 1))
    for b in B:
        k.I("v_max_f32", v(b + 1), 0, v(b + 1))
    for b in B:
        k.I("v_add_f32", v(b + 1), hex(f32bits(1e-5)), v(b + 1))
    for b in B:
        k.I("v_rsq_f32", v(b + 1), v(b + 1))
    for b in B:
        k.I("v_mul_f32", v(b), f"-{v(b)}", v(b + 1))
    for n, t in enumerate(tiles):
        s_, T = t
        x = ACC[t]
        cs = CSR + 4 * s_
        for hh in range(2):
            k.I("v_pk_mul_f32", v(x + 2 * hh, 2), v(x + 2 * hh, 2), v(STT[T], 2), mods="op_sel:[0,1] op_sel_hi:[1,1]")
        for hh in range(2):
            k.I("v_pk_fma_f32", v(x + 2 * hh, 2), v(cs + 2 * hh, 2), v(STT[T], 2), v(x + 2 * hh, 2),
                mods="op_sel:[0,0,0] op_sel_hi:[1,0,1]")
        k.I("v_cvt_pk_bf16_f32", v(x), v(x), v(x + 1))
        k.I("v_cvt_pk_bf16_f32", v(x + 1), v(x + 2), v(x + 3))
        if s_ == 6:
            k.I("s_mov_b64", "exec", s(32, 2))
        k.I("ds_write_b64", v(22 if T == "h" else 23 + T), v(x, 2), mods=f"offset:{s_ * 32}")
        if s_ == 6:
            k.I("s_mov_b64", "exec", -1)
        if prep.defer and n % 2 == 1 and 12 + n // 2 < 18:
            fi[12 + n // 2]()


def attention(k, wo_items):
    QF, KF, VF, SS, MX = 20, 36, 68, 100, 4
    c0 = [4 * (18 * h // 4) for h in range(4)]
    for h in range(4):
        for hf in range(2):
            k.I("ds_read_b64", v(QF + 4 * h + 2 * hf, 2), v(AQ), mods=f"offset:{2 * c0[h] + 8 * hf}")
        for t in range(2):
            for hf in range(2):
                k.I("ds_read_b64", v(KF + 16 * t + 4 * h + 2 * hf, 2), v(AKP if t == 0 else AQ),
                    mods=f"offset:{144 + 2 * c0[h] + 8 * hf}")
    k.I("s_lshl_b32", s(22), s(20), 2)
    k.I("s_add_u32", s(22), s(22), s(3))
    k.I("s_mul_i32", s(22), s(22), 72 * 256)
    k.I("s_mul_i32", s(23), s(21), 9 * 256)
    k.I("s_add_u32", s(22), s(22), s(23))
    k.I("s_add_u32", s(22), s(22), hex(WS_O))
    k.I("v_cmp_gt_u32", s(40, 2), 16, v(2))
    k.I("s_mov_b32", s(24), hex(f32bits(LOG2E * 18 ** -0.5)))
    k.bgq = list(wo_items)
    k.bg_period = 3
    for h in range(4):
        for e in range(4):
            x = QF + 4 * h + e
            k.I("v_and_b32", v(x), v(QM + 4 * (h % 2) + e), v(x))
        k.I(MF, v(SS + 8 * h, 4), v(KF + 4 * h, 4), v(QF + 4 * h, 4), v(B0, 4))
        k.I(MF, v(SS + 8 * h + 4, 4), v(KF + 16 + 4 * h, 4), v(QF + 4 * h, 4), v(BC, 4))
    for h in range(4):
        for rt in range(2):
            for kt in range(2):
                k.I("ds_read_b64_tr_b16", v(VF + 8 * h + 4 * rt + 2 * kt, 2), v(AVP if kt == 0 else AV),
                    mods=f"offset:{288 + 2 * c0[h] + 32 * rt}")
    for h in range(4):
        b = SS + 8 * h
        k.I("v_max3_f32", v(MX + h), v(b), v(b + 1), v(b + 2))
    for h in range(4):
        b = SS + 8 * h
        k.I("v_max3_f32", v(MX + h), v(MX + h), v(b + 3), v(b + 4))
    for h in range(4):
        b = SS + 8 * h
        k.I("v_max3_f32", v(MX + 4 + h), v(b + 5), v(b + 6), v(b + 7))
    for h in range(4):
        k.I("v_max_f32", v(MX + h), v(MX + h), v(MX + 4 + h))
    reduce_groups(k, [MX + h for h in range(4)], MX + 4, op="v_max_f32")
    for h in range(4):
        k.I("v_mul_f32", v(MX + h), s(24), v(MX + h))
    OA, OB = QF, KF

    def pv(hp):
        k.I(MF, v(SS + 8 * hp + 4, 4), v(ONES, 4), v(SS + 8 * hp, 4), 0)
        k.I(MF, v(OA + 4 * hp, 4), v(VF + 8 * hp, 4), v(SS + 8 * hp, 4), 0)
        k.I(MF, v(OB + 4 * hp, 4), v(VF + 8 * hp + 4, 4), v(SS + 8 * hp, 4), 0)
    for h in range(4):
        for e in range(8):
            k.I("v_fma_f32", v(SS + 8 * h + e), v(SS + 8 * h + e), s(24), f"-{v(MX + h)}")
        for e in range(8):
            k.I("v_exp_f32", v(SS + 8 * h + e), v(SS + 8 * h + e))
        for e in range(4):
            k.I("v_cvt_pk_bf16_f32", v(SS + 8 * h + e), v(SS + 8 * h + 2 * e), v(SS + 8 * h + 2 * e + 1))
        if h > 0:
            pv(h - 1)
    pv(3)
    while k.bgq:
        k.bgq.pop(0)()

    def scale(g):
        for r in range(4):
            k.I("v_mul_f32", v(OA + 4 * g + r), v(MX + g), v(OA + 4 * g + r))
        for r in range(2 if g % 2 == 0 else 4):
            k.I("v_mul_f32", v(OB + 4 * g + r), v(MX + g), v(OB + 4 * g + r))
    for h in range(4):
        k.I("v_rcp_f32", v(MX + h), v(SS + 8 * h + 4))
        if h:
            scale(h - 1)
    scale(3)
    for hp in range(2):
        e_, o_ = 2 * hp, 2 * hp + 1
        for r in range(2):
            k.I("v_cndmask_b32", v(OA + 4 * o_ + r), v(OA + 4 * o_ + r), v(OB + 4 * e_ + r), s(40, 2))
        for (reg, G) in ((OA + 4 * e_, 9 * hp), (OA + 4 * o_, 9 * hp + 4), (OB + 4 * o_, 9 * hp + 8)):
            k.I("v_cvt_pk_bf16_f32", v(reg), v(reg), v(reg + 1))
            k.I("v_cvt_pk_bf16_f32", v(reg + 1), v(reg + 2), v(reg + 3))
            last = G % 9 == 8
            if last:
                k.I("s_mov_b64", "exec", s(40, 2))
            k.I("ds_write_b64", v(AO + G % 2), v(reg, 2), mods=f"offset:{(G // 2) * 256}")
            if last:
                k.I("s_mov_b64", "exec", -1)
    k.I("v_lshlrev_b32", v(4), 4, v(2))
    k.I("s_mul_i32", s(23), s(3), 2304)
    k.I("s_add_u32", s(23), s(23), L_PREP)
    k.I("v_add_u32", v(5), s(23), v(4))
    k.wait(lg=0)
    k.I("s_barrier")
    tile_out(k, 5, 4, 22, 20, "sc1")


def tile_out(k, vl, vo, so, tmp, sc):
    for i in range(3):
        k.I("ds_read_b128", v(tmp + 4 * i, 4), v(vl), mods=f"offset:{1024 * i}")
    for i in range(3):
        if i == 2:
            k.I("s_mov_b64", "exec", "0xffff")
        k.I("buffer_store_dwordx4", v(tmp + 4 * i, 4), v(vo), s(S_WS, 4), s(so), mods=f"offen offset:{1024 * i} {sc}")
    k.I("s_mov_b64", "exec", -1)


def emit_ab(k, U, ST, dbg="", sc="", early=None, prepoll=False):
    LS = LStamps(k, 255, 100, "lst" in dbg)
    LS.stamp("start")
    k.I("s_load_dwordx4", s(20, 4), s(0, 2), KA_X)
    k.I("s_load_dwordx4", s(24, 4), s(0, 2), KA_DBG)
    k.I("s_load_dwordx2", s(28, 2), s(0, 2), KA_WO)
    k.I("s_load_dwordx4", s(32, 4), s(0, 2), KA_WG)
    k.I("s_load_dwordx2", s(30, 2), s(0, 2), KA_WD)
    k.I("v_lshrrev_b32", v(1), 6, v(0))
    k.I("v_and_b32", v(2), 63, v(0))
    k.I("v_readfirstlane_b32", s(3), v(1))
    k.I("v_mov_b32", v(3), 0)
    k.I("v_lshrrev_b32", v(14), 3, v(2))
    k.I("v_lshrrev_b32", v(15), 1, v(14))
    k.I("v_and_b32", v(16), 7, v(2))
    k.wait(lg=0)
    LS.stamp("kernarg")
    srd(k, S_X, 20, S * D * 2)
    srd(k, S_QKV, 22, D * 3 * D * 2)
    srd(k, S_WS, 26, WS_SIZE)
    srd(k, S_DBG, 24, 256)
    srd(k, S_WO, 28, D * D * 2)
    srd(k, S_WG, 32, D * F * 2)
    srd(k, S_WU, 34, D * F * 2)
    srd(k, S_WD, 30, D * F * 2)
    k.I("s_bfe_u32", s(20), s(2), hex((2 << 16) | 1))
    k.I("s_lshl_b32", s(20), s(20), 3)
    k.I("s_bfe_u32", s(21), s(2), hex((3 << 16) | 3))
    k.I("s_add_u32", s(20), s(20), s(21))
    k.I("s_and_b32", s(21), s(2), 1)
    k.I("s_lshl_b32", s(21), s(21), 2)
    k.I("s_lshr_b32", s(22), s(2), 6)
    k.I("s_add_u32", s(21), s(21), s(22))
    k.I("s_and_b32", s(27), s(3), 1)
    k.I("s_lshr_b32", s(28), s(3), 1)
    VX = 4
    k.I("s_mov_b32", s(23), 1152)
    k.I("s_lshl_b32", s(22), s(27), 2)
    k.I("v_add_u32", v(15), s(22), v(15))
    k.I("v_xor_b32", v(15), v(15), v(16))
    k.I("s_lshl_b32", s(22), s(20), 6)
    k.I("s_lshl_b32", s(24), s(27), 4)
    k.I("s_add_u32", s(24), s(24), s(22))
    k.I("v_lshl_add_u32", v(16), v(14), 1, s(24))
    k.I("v_mul_lo_u32", v(16), v(16), s(23))
    k.I("v_lshl_add_u32", v(VX), v(15), 4, v(16))
    k.I("s_add_u32", s(24), s(22), s(27))
    k.I("s_sub_u32", s(24), s(24), 16)
    k.I("v_lshl_add_u32", v(16), v(14), 1, s(24))
    k.I("v_mul_lo_u32", v(16), v(16), s(23))
    k.I("v_lshl_add_u32", v(VX + 1), v(15), 4, v(16))
    k.I("s_mul_i32", s(22), s(28), 14)
    k.I("s_add_u32", s(22), s(22), s(27))
    k.I("s_lshl_b32", s(24), s(22), 6)
    k.I("v_add_u32", v(18), s(24), v(2))
    k.I("s_lshl_b32", s(24), s(22), 10)
    k.I("s_add_u32", s(24), s(24), XB)
    k.I("s_lshl_b32", s(37), s(27), 10)
    k.I("s_mul_i32", s(25), s(21), 144)
    k.I("s_mov_b32", s(26), s(25))
    k.I("s_and_b32", s(34), s(20), 7)
    k.I("s_and_b32", s(35), s(21), 3)
    k.I("s_lshl_b32", s(35), s(35), 1)
    k.I("s_add_u32", s(34), s(34), s(35))
    k.I("s_sub_u32", s(35), s(34), 9)
    k.I("s_cmp_ge_u32", s(34), 9)
    k.I("s_cselect_b32", s(34), s(35), s(34))
    if "norot" in dbg:
        k.I("s_mov_b32", s(34), 0)
    k.I("s_mul_i32", s(35), s(34), 64 * 3456)
    k.I("s_add_u32", s(25), s(25), s(35))
    k.I("s_lshl_b32", s(34), s(34), 7)
    k.I("s_or_b32", s(22), s(2), s(3))
    k.I("s_cmp_lg_u32", s(22), 0)
    k.I("s_cbranch_scc1", f"{U}_NN")
    k.I("s_memrealtime", s(22, 2))
    k.wait(lg=0)
    k.I("s_or_b32", s(22), s(22), 1)
    k.I("v_mov_b32", v(248), s(22))
    k.I("v_mov_b32", v(249), s(23))
    k.I("buffer_store_dwordx2", v(248, 2), v(3), s(S_DBG, 4), 0, mods="offen sc1")
    k.vmq.pop()
    k.label(f"{U}_NN")
    prep = Prep(k, U, sc)
    prep.early = early
    prep.off = "noprep" in dbg
    prep.dbg = dbg
    prep.sent = prepoll and "sent" in dbg
    prep.defer = prepoll and "nodefer" not in dbg
    prep.decode()

    wo_tok = prep.wo_tok = {}

    def wo_item(n):
        def f():
            base, lim, off = (0, 38, 4 * n) if n < 10 else ((39, 38, 4 * (n - 10)) if n < 20 else (78, 2, 0))
            if off + 3 > lim or (n < 20 and "worot" in dbg):
                k.I("s_add_u32", s(29), s(3), off)
                if n < 20 and "worot" in dbg:
                    k.I("s_and_b32", s(38), s(20), 7)
                    k.I("s_mul_i32", s(38), s(38), 5)
                    k.I("s_add_u32", s(29), s(29), s(38))
                    k.I("s_sub_u32", s(38), s(29), 40)
                    k.I("s_cmp_ge_u32", s(29), 40)
                    k.I("s_cselect_b32", s(29), s(38), s(29))
                k.I("s_min_u32", s(29), s(29), lim)
                k.I("s_add_u32", s(29), s(29), base)
                k.I("s_lshl_b32", "m0", s(29), 10)
                k.I("s_lshl_b32", s(29), s(29), 6)
                k.I("v_add_u32", v(250), s(29), v(2))
            else:
                k.I("v_add_u32", v(250), 64 * (base + off), v(0))
                k.I("s_lshl_b32", s(29), s(3), 10)
                k.I("s_add_u32", "m0", s(29), (base + off) * 1024)
            k.I("v_mul_u32_u24", v(251), 7282, v(250))
            k.I("v_lshrrev_b32", v(251), 16, v(251))
            k.I("v_mul_u32_u24", v(251), 1152 - 144, v(251))
            k.I("v_lshl_add_u32", v(251), v(250), 4, v(251))
            wo_tok[n] = k.I("buffer_load_dwordx4", v(251), s(S_WO, 4), s(26), mods="offen lds")
        return f
    wo_items = [wo_item(n) for n in range(21)]

    def touch_w(n):
        def f():
            k.I("v_add_u32", v(250), 256 * n, v(0))
            k.I("v_min_u32", v(250), 431, v(250))
            k.I("v_mul_u32_u24", v(251), 10923, v(250))
            k.I("v_lshrrev_b32", v(251), 16, v(251))
            k.I("v_mul_u32_u24", v(252), 6, v(251))
            k.I("v_sub_u32", v(250), v(250), v(252))
            k.I("v_mul_u32_u24", v(251), 8 * 3456, v(251))
            k.I("v_lshrrev_b32", v(252), 1, v(250))
            k.I("v_mul_u32_u24", v(252), 1152, v(252))
            k.I("v_add_u32", v(251), v(251), v(252))
            k.I("v_and_b32", v(250), 1, v(250))
            k.I("v_mul_u32_u24", v(250), 140, v(250))
            k.I("v_add_u32", v(251), v(251), v(250))
            k.I("s_and_b32", s(29), s(20), 7)
            k.I("s_mul_i32", s(29), s(29), 3456)
            k.I("s_add_u32", s(29), s(29), s(26))
            k.I("buffer_load_dword", v(194 + n), v(251), s(S_QKV, 4), s(29), mods="offen")
        return f

    def touch_x():
        k.I("v_mul_u32_u24", v(251), 1152, v(2))
        k.I("s_and_b32", s(29), s(21), 3)
        k.I("s_lshl_b32", s(38), s(3), 2)
        k.I("s_add_u32", s(29), s(29), s(38))
        k.I("s_min_u32", s(29), s(29), 8)
        k.I("s_lshl_b32", s(29), s(29), 7)
        k.I("s_mul_i32", s(38), s(20), 64 * 1152)
        k.I("s_add_u32", s(29), s(29), s(38))
        k.I("buffer_load_dword", v(196), v(251), s(S_X, 4), s(29), mods="offen")

    def touch_wo():
        k.I("v_min_u32", v(250), 143, v(0))
        k.I("v_lshrrev_b32", v(251), 1, v(250))
        k.I("v_mul_u32_u24", v(251), 8 * 1152, v(251))
        k.I("v_and_b32", v(250), 1, v(250))
        k.I("v_mul_u32_u24", v(250), 140, v(250))
        k.I("v_add_u32", v(251), v(251), v(250))
        k.I("s_and_b32", s(29), s(20), 7)
        k.I("s_mul_i32", s(29), s(29), 1152)
        k.I("s_add_u32", s(29), s(29), s(26))
        k.I("buffer_load_dword", v(197), v(251), s(S_WO, 4), s(29), mods="offen")
    touch_items = [touch_w(0), touch_x, touch_w(1), touch_wo] if "touch" in dbg else []
    k.I("v_lshrrev_b32", v(52), 4, v(2))
    k.I("v_lshlrev_b32", v(52), 3, v(52))
    k.I("v_bfe_u32", v(53), v(2), 2, 2)
    k.I("v_add_u32", v(52), v(52), v(53))
    k.I("v_mul_u32_u24", v(52), 144, v(52))
    k.I("v_and_b32", v(53), 3, v(2))
    k.I("v_lshl_add_u32", v(192), v(53), 3, v(52))
    k.I("v_add_u32", v(193), 9 * 4608, v(192))

    def wo(kb, r, h=None):
        n = 5 * kb + r
        vg = list(range(88, 160, 4)) + list(range(168, 184, 4)) + list(range(232, 248, 4))
        f, b = ("a", 4 * n) if n < 64 else ("v", vg[n - 64])
        return R(f, b, 4) if h is None else R(f, b + 2 * h, 2)
    wofrag = [lambda kb=kb, r=r, h=h: k.I("ds_read_b64_tr_b16", wo(kb, r, h), v(192 + kb // 9),
                                          mods=f"offset:{(kb % 9) * 4608 + h * 576 + r * 32}")
              for kb in range(18) for r in range(5) for h in range(2)]
    LS.stamp("setup")
    n0 = LS.n
    k.I("s_cmp_lg_u32", s(28), 0)
    k.I("s_cbranch_scc1", f"{U}_A1")
    for cls in range(2):
        if cls == 1:
            k.label(f"{U}_A1")
            k.vmq, k.dsq = [], []
        if cls == 1:
            LS.n, LS.names = n0, LS.names[:n0]
        gemm(k, U, cls, ST if cls == 0 else ST.clone(), prep, wo_items, touch_items, wofrag, dbg, LS)
        if cls == 0:
            k.I("s_branch", f"{U}_AJ")
    k.label(f"{U}_AJ")
    k.dsq = [(-2, set())]
    k.wait(lg=0)
    k.I("s_barrier")
    ST.stamp()
    LS.stamp("norm")
    k.I("s_lshl_b32", s(36), s(20), 6)
    k.I("v_and_b32", v(12), 7, v(2))
    k.I("v_lshlrev_b32", v(12), 3, v(12))
    if prep.sent:
        k.I("s_add_u32", s(37), s(36), hex(WS_FP))
        k.I("buffer_load_dwordx2", v(14, 2), v(12), s(S_WS, 4), s(37), mods="offen sc1")
    else:
        k.I("buffer_load_dwordx2", v(248, 2), v(3), s(S_DBG, 4), 0, mods="offen sc1")
    k.I("s_add_u32", s(36), s(36), hex(WS_F0))
    wo_last = k.vmq[-1][0]
    attention(k, [])
    ST.stamp()
    LS.stamp("attn")

    def f0_flag():
        k.I("s_cmp_lg_u32", s(3), 0)
        k.I("s_cbranch_scc1", f"{U}_NF")
        k.I("s_lshl_b32", s(23), s(21), 3)
        k.I("s_add_u32", s(23), s(23), s(36))
        k.I("buffer_store_dwordx2", v(248, 2), v(3), s(S_WS, 4), s(23), mods="offen sc1")
        k.vmq.pop()
        k.label(f"{U}_NF")
    if prep.sent:
        k.wait_vm(wo_last)
        k.I("s_barrier")
        f0_flag()
    else:
        k.wait(vm=0)
        LS.stamp("drain")
        k.I("s_barrier")
        nonce_wait(k, U)
        k.vmq = []
        f0_flag()
    ST.stamp()
    k.I("s_lshl_b32", s(22), s(20), 2)
    k.I("s_add_u32", s(22), s(22), s(3))
    k.I("v_and_b32", v(8), 15, v(2))
    k.I("v_lshrrev_b32", v(9), 4, v(2))
    k.I("v_mul_u32_u24", v(10), 1152, v(8))
    k.I("v_lshl_add_u32", v(10), v(9), 3, v(10))
    k.I("s_mul_i32", s(23), s(22), 16 * 1152)
    k.I("s_add_u32", s(23), s(23), s(26))
    RES = 200
    for r in range(5):
        k.I("buffer_load_dwordx2", v(RES + 2 * r, 2), v(10), s(S_X, 4), s(23), mods=f"offen offset:{32 * r}")
    LS.stamp("flag")

    for f in wofrag:
        f()
    def spin(tag, load, test):
        k.I("s_mov_b32", s(33), 40000)
        k.label(f"{U}_PL{tag}")
        load()
        k.wait(vm=0)
        test()
        k.I("s_cbranch_scc1", f"{U}_POK{tag}")
        k.I("s_sub_u32", s(33), s(33), 1)
        k.I("s_cmp_eq_u32", s(33), 0)
        k.I("s_cbranch_scc1", f"{U}_POK{tag}")
        k.I("s_branch", f"{U}_PL{tag}")
        k.label(f"{U}_POK{tag}")

    def eq_nonce(r):
        k.I("v_cmp_eq_u64", "vcc", v(248, 2), v(r, 2))
        k.I("s_cmp_eq_u64", "vcc", -1)
    k.I("s_mul_i32", s(38), s(22), 18 * 1024)
    k.I("s_add_u32", s(38), s(38), hex(WS_O))
    if prep.sent:
        eq_nonce(14)
        k.I("s_cbranch_scc1", f"{U}_POKs")
        spin("s", lambda: k.I("buffer_load_dwordx2", v(14, 2), v(12), s(S_WS, 4), s(37), mods="offen sc1"), lambda: eq_nonce(14))
        k.I("v_mul_u32_u24", v(11), 288, v(2))
        k.I("v_add_u32", v(11), 284, v(11))

        def t2():
            k.I("v_cmp_ne_u32", "vcc", -1, v(6))
            k.I("s_cmp_eq_u64", "vcc", -1)
        spin("h", lambda: k.I("buffer_load_dword", v(6), v(11), s(S_WS, 4), s(38), mods="offen sc1"), t2)
    else:
        spin("f", lambda: k.I("buffer_load_dwordx2", v(6, 2), v(12), s(S_WS, 4), s(36), mods="offen sc1"), lambda: eq_nonce(6))
    LS.stamp("poll")
    ST.stamp()
    OF = 16
    k.I("v_lshlrev_b32", v(13), 4, v(2))
    k.I("s_mov_b32", s(33), 2000)
    k.label(f"{U}_BL")
    k.I("s_mov_b32", s(24), s(38))
    for kb in range(18):
        if kb % 4 == 0 and kb:
            k.I("s_add_u32", s(24), s(24), 4096)
        k.I("buffer_load_dwordx4", v(OF + 4 * kb, 4), v(13), s(S_WS, 4), s(24), mods=f"offen offset:{(kb % 4) * 1024} sc1")
    k.I("v_lshlrev_b32", v(10), 4, v(8))
    k.I("v_lshrrev_b32", v(11), 1, v(9))
    k.I("v_lshl_add_u32", v(10), v(11), 8, v(10))
    k.I("v_and_b32", v(11), 1, v(9))
    k.I("v_lshl_add_u32", v(10), v(11), 3, v(10))
    k.I("s_mul_i32", s(23), s(3), 2304)
    k.I("s_add_u32", s(23), s(23), L_PREP + 9216)
    k.I("v_add_u32", v(10), s(23), v(10))
    k.I("v_lshlrev_b32", v(14), 4, v(2))
    k.I("v_add_u32", v(15), s(23), v(14))
    k.I("s_mul_i32", s(23), s(22), 72 * 256)
    k.I("s_mul_i32", s(24), s(21), 9 * 256)
    k.I("s_add_u32", s(23), s(23), s(24))
    k.I("s_add_u32", s(23), s(23), hex(WS_H))
    k.I("v_cmp_gt_u32", s(40, 2), 32, v(2))
    k.I("v_mov_b32", v(4), 0)
    k.I("v_mov_b32", v(5), 0)
    k.I("v_mov_b32", v(6), "0x3f803f80")
    BACC = 212
    for kb in range(18):
        if kb == 12 and prepoll:
            k.I("v_lshlrev_b32", v(7), 5, v(2))
            k.I("s_mov_b32", s(25), hex(WS_F0))
            for i in range(2):
                k.I("buffer_load_dwordx4", v(192 + 4 * i, 4), v(7), s(S_WS, 4), s(25), mods=f"offen offset:{16 * i} sc1")
        for r in range(5):
            ac = v(BACC + 4 * r, 4)
            k.I(MF, ac, wo(kb, r), v(OF + 4 * kb, 4), ac if kb else 0)
            if prep.sent and r < 2:
                x = OF + 4 * kb + 2 * r
                if kb == 0 and r == 0:
                    k.I("v_max_u32", v(210), v(x), v(x + 1))
                else:
                    k.I("v_max3_u32", v(210), v(210), v(x), v(x + 1))
    if prep.sent:
        k.I("v_cmp_eq_u32", "vcc", -1, v(210))
        k.I("s_cbranch_vccz", f"{U}_BOK")
        k.I("s_sub_u32", s(33), s(33), 1)
        k.I("s_cmp_eq_u32", s(33), 0)
        k.I("s_cbranch_scc1", f"{U}_BOK")
        k.I("s_waitcnt", "vmcnt(0)")
        k.I("s_branch", f"{U}_BL")
        k.label(f"{U}_BOK")
    LS.stamp("B mfma")
    ST.stamp()
    for r in range(5):
        x = BACC + 4 * r
        t = 16 + 4 * (r % 2)
        for i in range(2):
            k.I("v_lshlrev_b32", v(t + 2 * i), 16, v(RES + 2 * r + i))
            k.I("v_and_b32", v(t + 2 * i + 1), "0xffff0000", v(RES + 2 * r + i))
        for i in range(4):
            k.I("v_add_f32", v(x + i), v(x + i), v(t + i))
        k.I("v_cvt_pk_bf16_f32", v(x), v(x), v(x + 1))
        k.I("v_cvt_pk_bf16_f32", v(x + 1), v(x + 2), v(x + 3))
        if r == 4:
            k.I("s_mov_b64", "exec", s(40, 2))
        k.I("ds_write_b64", v(10), v(x, 2), mods=f"offset:{r * 512}")
        for i in range(2):
            k.I("v_dot2c_f32_bf16", v(4), v(x + i), v(6))
            k.I("v_dot2c_f32_bf16", v(5), v(x + i), v(x + i))
        if r == 4:
            k.I("s_mov_b64", "exec", -1)
    tile_out(k, 15, 14, 23, 28, sc)
    reduce_groups(k, [4, 5], 24)
    k.I("v_lshlrev_b32", v(10), 6, v(8))
    k.I("s_lshl_b32", s(23), s(22), 10)
    k.I("s_lshl_b32", s(24), s(21), 3)
    k.I("s_add_u32", s(23), s(23), s(24))
    k.I("s_add_u32", s(23), s(23), hex(WS_ST))
    k.I("buffer_store_dwordx2", v(4, 2), v(10), s(S_WS, 4), s(23), mods=f"offen {sc}")
    LS.stamp("B done")
    LS.dump(S_WS, 254, 1)


def build_ab(dbg=""):
    k = Kern("kab_kernel")
    ST = Stamps(k, 64, "stamp" in dbg)
    k.I("s_cmp_ge_u32", s(2), 256)
    k.I("s_cbranch_scc1", "KAB_END")
    ST.stamp()
    emit_ab(k, "KAB", ST, dbg)
    k.I("v_lshlrev_b32", v(8), 2, v(2))
    k.I("s_lshl_b32", s(22), s(2), 7)
    k.I("s_add_u32", s(22), s(22), hex(WS_F1))
    k.I("s_add_u32", s(23), s(22), hex(WS_F2 - WS_F1))
    k.I("v_cmp_gt_u32", "vcc", 32, v(2))
    k.I("s_and_saveexec_b64", s(30, 2), "vcc")
    k.I("buffer_store_dword", v(3), v(8), s(S_WS, 4), s(22), mods="offen")
    k.I("buffer_store_dword", v(3), v(8), s(S_WS, 4), s(23), mods="offen")
    k.I("s_mov_b64", "exec", s(30, 2))
    ST.stamp()
    ST.dump(S_WS, 100, 3)
    k.label("KAB_END")
    k.I("s_endpgm")
    return k, "grid=(256,1,1) block=(256,1,1) lds=%d" % LDS_TOTAL
```

```python
from common import *
from k_frag import f32bits
import k_prep
from k_prep import PrepRegs
from k_a2 import reduce_groups

MF = "v_mfma_f32_16x16x32_bf16"
XB = 10240
WBLK = 3616
STG = XB + 29 * 1024
L_PREP = 122880
PQ = 440
L_WO = 0
L_QKV = 83968
L_ST = 119808
L_CS = 120576
LDS_TOTAL = 162048
LOG2E = 1.4426950408889634
NEG = -1e30
BC, B0, QM, ONES, AQ, AV, AKP, AVP, AO = 216, 224, 228, 236, 240, 241, 242, 243, 244
PVB = 160
NBG = 64
S_WS, S_X, S_QKV, S_WO, S_DBG, S_WG, S_WU, S_WD = 8, 12, 16, 44, 48, 52, 56, 60


def att_setup(k):
    k.I("v_and_b32", v(14), 15, v(2))
    k.I("v_lshrrev_b32", v(15), 4, v(2))
    k.I("v_mul_u32_u24", v(AQ), PQ, v(14))
    k.I("v_lshl_add_u32", v(AQ), v(15), 4, v(AQ))
    k.I("v_lshrrev_b32", v(AV), 2, v(2))
    k.I("v_mul_u32_u24", v(AV), PQ, v(AV))
    k.I("v_and_b32", v(16), 3, v(2))
    k.I("v_lshl_add_u32", v(AV), v(16), 3, v(AV))
    k.I("s_mul_i32", s(23), s(3), s(27))
    k.I("s_mul_i32", s(23), s(23), 16 * PQ)
    k.I("s_add_u32", s(23), s(23), L_QKV)
    k.I("s_add_u32", s(22), s(3), 1)
    k.I("s_mul_i32", s(22), s(22), 16 * PQ)
    k.I("s_add_u32", s(22), s(22), L_QKV)
    k.I("v_add_u32", v(AKP), s(23), v(AQ))
    k.I("v_add_u32", v(AVP), s(23), v(AV))
    k.I("v_add_u32", v(AQ), s(22), v(AQ))
    k.I("v_add_u32", v(AV), s(22), v(AV))
    k.I("v_mov_b32", v(16), hex(f32bits(NEG)))
    k.I("v_lshlrev_b32", v(17), 2, v(15))
    k.I("v_sub_u32", v(17), v(14), v(17))
    k.I("s_cmp_eq_u32", s(3), 0)
    k.I("s_cselect_b32", s(22), 8, 0)
    k.I("s_cselect_b32", s(23), 8, 16)
    k.I("s_or_b32", s(38), s(20), s(27))
    k.I("s_cmp_eq_u32", s(38), 0)
    k.I("s_cselect_b32", s(23), 0, s(23))
    for r in range(4):
        k.I("v_subrev_u32", v(246), r, v(17))
        k.I("v_cmp_gt_u32", "vcc", 8, v(246))
        k.I("v_cndmask_b32", v(BC + r), v(16), 0, "vcc")
        k.I("v_subrev_u32", v(247), s(22), v(246))
        k.I("v_cmp_gt_i32", "vcc", -8, v(247))
        k.I("v_lshl_add_u32", v(247), v(15), 2, r)
        k.I("v_cmp_gt_u32", s(40, 2), s(23), v(247))
        k.I("s_and_b64", "vcc", "vcc", s(40, 2))
        k.I("v_cndmask_b32", v(B0 + r), v(16), 0, "vcc")
        k.I("v_cmp_gt_u32", "vcc", 9, v(247))
        k.I("v_cndmask_b32", v(QM + r), 0, -1, "vcc")
        k.I("v_subrev_u32", v(247), 1, v(247))
        k.I("v_cmp_gt_u32", "vcc", 9, v(247))
        k.I("v_cndmask_b32", v(QM + 4 + r), 0, -1, "vcc")
        k.I("v_mov_b32", v(ONES + r), "0x3f803f80")
    k.I("v_lshlrev_b32", v(246), 1, v(14))
    k.I("v_add_u32", v(246), s(28), v(246))
    k.I("v_lshrrev_b32", v(247), 4, v(246))
    k.I("v_mul_u32_u24", v(247), 2304, v(247))
    k.I("v_and_b32", v(246), 15, v(246))
    k.I("v_lshl_add_u32", v(247), v(246), 4, v(247))
    k.I("s_mul_i32", s(22), s(27), 4608)
    k.I("s_add_u32", s(22), s(22), L_PREP)
    k.I("v_add_u32", v(247), s(22), v(247))
    k.I("v_lshrrev_b32", v(246), 1, v(15))
    k.I("v_lshl_add_u32", v(AO), v(246), 8, v(247))
    k.I("v_and_b32", v(246), 1, v(15))
    k.I("v_lshl_add_u32", v(AO), v(246), 3, v(AO))
    k.I("v_add_u32", v(16), 1, v(15))
    k.I("v_lshrrev_b32", v(246), 1, v(16))
    k.I("v_lshl_add_u32", v(AO + 1), v(246), 8, v(247))
    k.I("v_and_b32", v(246), 1, v(16))
    k.I("v_lshl_add_u32", v(AO + 1), v(246), 3, v(AO + 1))


class Prep:
    NSL = 6

    def __init__(self, k, U, sc):
        self.k, self.U, self.sc = k, U, sc
        self.tok = {}

    def decode(self):
        k = self.k
        if "ubal" in self.dbg:
            k.I("s_lshl_b32", s(42), s(3), 8)
            k.I("s_add_u32", s(42), s(42), s(2))
        else:
            k.I("s_lshl_b32", s(42), s(2), 2)
            k.I("s_add_u32", s(42), s(42), s(3))
        k.I("s_mul_i32", s(7), s(3), self.NSL * 1024)
        k.I("s_add_u32", s(7), s(7), L_PREP)
        k.I("v_lshrrev_b32", v(168), 3, v(2))
        k.I("v_and_b32", v(169), 7, v(2))
        k.I("v_lshrrev_b32", v(170), 4, v(2))
        k.I("v_bfe_u32", v(171), v(2), 2, 2)
        k.I("v_and_b32", v(172), 3, v(2))
        k.I("v_and_b32", v(173), 15, v(2))
        k.I("v_lshlrev_b32", v(161), 7, v(171))
        k.I("v_add_u32", v(161), s(7), v(161))
        k.I("v_mov_b32", v(164), 0)
        k.I("v_mov_b32", v(165), 0)
        k.I("v_mov_b32", v(166), "0x3f803f80")
        k.I("s_cmp_ge_u32", s(42), 648)
        k.I("s_cbranch_scc1", f"{self.U}_PW")
        k.I("s_mov_b32", s(4), 1)
        k.I("s_mul_i32", s(43), s(42), 911)
        k.I("s_lshr_b32", s(43), s(43), 16)
        k.I("s_mul_i32", s(5), s(43), 72)
        k.I("s_sub_u32", s(42), s(42), s(5))
        k.I("s_mul_i32", s(5), s(43), 64 * 9216)
        k.I("s_lshl_b32", s(6), s(42), 7)
        k.I("s_add_u32", s(5), s(5), s(6))
        k.I("s_mul_i32", s(6), s(42), 147456)
        k.I("s_lshl_b32", s(41), s(43), 13)
        k.I("s_add_u32", s(6), s(6), s(41))
        k.I("s_add_u32", s(6), s(6), hex(WS_WGU))
        k.I("s_mul_i32", s(43), s(43), 36864)
        k.I("s_lshl_b32", s(42), s(42), 9)
        k.I("s_add_u32", s(43), s(43), s(42))
        k.I("s_add_u32", s(43), s(43), hex(WS_CS))
        k.I("v_mov_b32", v(163), s(43))
        k.I("v_mul_u32_u24", v(160), 9216, v(168))
        k.I("v_lshrrev_b32", v(174), 1, v(170))
        k.I("v_and_b32", v(175), 1, v(170))
        k.I("v_lshl_add_u32", v(161), v(174), 6, v(161))
        k.I("v_lshl_add_u32", v(161), v(172), 4, v(161))
        k.I("v_lshl_add_u32", v(161), v(175), 3, v(161))
        k.I("v_mul_u32_u24", v(162), 73728, v(174))
        k.I("v_lshl_add_u32", v(162), v(175), 10, v(162))
        k.I("v_lshl_add_u32", v(163), v(174), 8, v(163))
        k.I("v_lshl_add_u32", v(163), v(175), 6, v(163))
        k.I("v_lshl_add_u32", v(163), v(173), 2, v(163))
        k.I("s_branch", f"{self.U}_PD")
        k.label(f"{self.U}_PW")
        k.I("s_mov_b32", s(4), 0)
        k.I("s_sub_u32", s(42), s(42), 648)
        k.I("s_mul_i32", s(43), s(42), 7282)
        k.I("s_lshr_b32", s(43), s(43), 16)
        k.I("s_mul_i32", s(5), s(43), 9)
        k.I("s_sub_u32", s(41), s(42), s(5))
        k.I("s_cmp_ge_u32", s(42), 324)
        k.I("s_cselect_b32", s(43), "0x1000", s(43))
        k.I("s_mul_i32", s(5), s(43), 16 * 9216)
        k.I("s_lshl_b32", s(6), s(41), 7)
        k.I("s_add_u32", s(5), s(5), s(6))
        k.I("s_mul_i32", s(6), s(43), 4 * 36864)
        k.I("s_lshl_b32", s(41), s(41), 12)
        k.I("s_add_u32", s(6), s(6), s(41))
        k.I("s_add_u32", s(6), s(6), hex(WS_WD))
        k.I("v_mov_b32", v(163), "0x7fffff00")
        k.I("v_mul_u32_u24", v(160), 1152, v(168))
        k.I("v_lshl_add_u32", v(161), v(170), 5, v(161))
        k.I("v_lshl_add_u32", v(161), v(172), 3, v(161))
        k.I("v_lshlrev_b32", v(162), 10, v(170))
        for sr in (S_WG, S_WU):
            k.I("s_mov_b32", s(sr), s(S_WD))
            k.I("s_mov_b32", s(sr + 1), s(S_WD + 1))
        k.label(f"{self.U}_PD")
        k.I("v_lshl_add_u32", v(160), v(169), 4, v(160))
        k.I("v_lshl_add_u32", v(162), v(173), 4, v(162))

    def _off(self, base, cg, cw):
        k = self.k
        k.I("s_mul_i32", s(42), s(4), cg - cw)
        k.I("s_add_u32", s(42), s(42), s(base))
        if cw:
            k.I("s_add_u32", s(42), s(42), cw)

    def load(self, t):
        def f():
            k = self.k
            self._off(5, (t // 2) * 73728, t * 9216)
            k.I("s_add_u32", "m0", s(7), (t % self.NSL) * 1024)
            if "pnold" in self.dbg:
                self.tok[t] = None
                return
            self.tok[t] = k.I("buffer_load_dwordx4", v(160), s(S_WG if t % 2 == 0 else S_WU, 4), s(42),
                              mods="offen nt lds")
        return f

    def read(self, t):
        def f():
            k = self.k
            k.wait_vm(self.tok[t])
            d = 168 + 4 * (t % 4)
            for h in range(2):
                k.I("ds_read_b64_tr_b16", v(d + 2 * h, 2), v(161), mods=f"offset:{(t % self.NSL) * 1024 + h * 512}")
        return f

    def store(self, t):
        def f():
            k = self.k
            d = 168 + 4 * (t % 4)
            for j in range(4):
                k.I("v_dot2c_f32_bf16", v(164 + t % 2), v(d + j), v(166))
            if self.defer:
                for j in range(4):
                    k.I("v_accvgpr_write_b32", a(128 + 4 * t + j), v(d + j))
            else:
                self._st(t, v(d, 4))
        return f

    def _st(self, t, reg):
        self._off(6, (t // 8) * 4096 + (t % 2) * 2048 + ((t // 2) % 4) * 256, (t // 4) * 36864 + (t % 4) * 256)
        self.k.I("buffer_store_dwordx4", reg, v(162), s(S_WS, 4), s(42), mods=f"offen {self.sc}")

    def fin_items(self):
        k = self.k
        L = [lambda t=t: self._st(t, a(128 + 4 * t, 4)) for t in range(16)]
        L += [lambda m=m: k.I("buffer_store_dword", v(164 + m), v(163), s(S_WS, 4), 0, mods=f"offen offset:{m * 128} {self.sc}")
              for m in range(2)]
        return L

    def finish(self):
        k = self.k
        if self.defer:
            for t in range(16):
                self._st(t, a(128 + 4 * t, 4))
        for m in range(2):
            k.I("buffer_store_dword", v(164 + m), v(163), s(S_WS, 4), 0, mods=f"offen offset:{m * 128} {self.sc}")


def nonce_wait(k, L):
    k.I("s_mov_b32", s(43), 20000)
    k.label(f"{L}_NL")
    k.I("v_readfirstlane_b32", s(22), v(248))
    k.I("s_cmp_lg_u32", s(22), 0)
    k.I("s_cbranch_scc1", f"{L}_NOK")
    k.I("s_sub_u32", s(43), s(43), 1)
    k.I("s_cmp_eq_u32", s(43), 0)
    k.I("s_cbranch_scc1", f"{L}_NOK")
    k.I("buffer_load_dwordx2", v(248, 2), v(3), s(S_DBG, 4), 0, mods="offen sc1")
    k.I("s_waitcnt", "vmcnt(0)")
    k.I("s_branch", f"{L}_NL")
    k.label(f"{L}_NOK")


def gemm(k, U, cls, ST, prep, wo_items, touch_items, wofrag, dbg, LS):
    VX, VW = 4, 6
    L = f"{U}_G{cls}"
    xt = [0, 1, 2] if cls == 0 else [3, 4]
    tconst = lambda t: 32 * ((t - 1) & 1) + ((t - 1) >> 1)
    nW = 7 if cls == 0 else 8
    tok = {}

    def wvoff(n):
        k.I("v_add_u32", v(14), 128 * n, v(18))
        if n == 7:
            k.I("v_add_u32", v(15), 28 * 64, v(2))
            k.I("v_min_u32", v(14), v(14), v(15))
            k.I("v_min_u32", v(14), 1807, v(14))
        k.I("v_mul_u32_u24", v(15), 18559, v(14))
        k.I("v_lshrrev_b32", v(15), 22, v(15))
        k.I("v_mul_u32_u24", v(16), 226, v(15))
        k.I("v_sub_u32", v(14), v(14), v(16))
        k.I("v_mul_u32_u24", v(16), 2341, v(14))
        k.I("v_lshrrev_b32", v(16), 16, v(16))
        k.I("v_min_u32", v(16), 7, v(16))
        k.I("v_lshl_add_u32", v(15), v(15), 3, v(16))
        k.I("v_mul_u32_u24", v(16), 28, v(16))
        k.I("v_sub_u32", v(14), v(14), v(16))
        k.I("v_min_u32", v(14), 26, v(14))
        k.I("v_mul_u32_u24", v(16), 57, v(14))
        k.I("v_lshrrev_b32", v(16), 9, v(16))
        k.I("v_mul_u32_u24", v(15), 3456, v(15))
        k.I("v_lshl_add_u32", v(15), v(14), 4, v(15))
        k.I("v_mul_u32_u24", v(16), 1152 - 144, v(16))
        k.I("v_add_u32", v(VW + n), v(15), v(16))

    def dma_items(st):
        base = (st % 3) * STG
        I = []
        for t in xt:
            def f(t=t):
                k.I("s_add_u32", "m0", s(37), base + t * 2048)
                k.I("s_add_u32", s(38), s(34), (tconst(t) * 1152 if t else 0))
                k.I("buffer_load_dwordx4", v(VX + (t == 0)), s(S_X, 4), s(38), mods="offen lds")
            I.append(f)
        for n in range(nW):
            def f(n=n):
                if st == 0:
                    wvoff(n)
                if n < 7:
                    k.I("s_add_u32", "m0", s(24), base + n * 2048)
                else:
                    k.I("s_mov_b32", "m0", base + XB + 28 * 1024)
                tok[st] = k.I("buffer_load_dwordx4", v(VW + n), s(S_QKV, 4), s(25), mods="offen lds")
                if n == nW - 1:
                    k.I("s_add_u32", s(25), s(25), 64 * 3456)
                    k.I("s_add_u32", s(34), s(34), 128)
                    k.I("s_cmp_ge_u32", s(34), 1152)
                    k.I("s_cselect_b32", s(34), 0, s(34))
                    k.I("s_cselect_b32", s(25), s(26), s(25))
            I.append(f)
        return I

    for f in dma_items(0):
        f()
    LS.stamp("S0 issued")
    AX, AP, AW = 20, 26, 38
    k.I("v_and_b32", v(14), 15, v(2))
    k.I("v_lshrrev_b32", v(15), 1, v(14))
    k.I("v_lshrrev_b32", v(16), 4, v(2))
    k.I("v_xor_b32", v(15), v(15), v(16))
    k.I("v_lshlrev_b32", v(14), 7, v(14))
    k.I("v_lshl_add_u32", v(AX), v(15), 4, v(14))
    k.I("v_xor_b32", v(AX + 1), 64, v(AX))
    for sl in range(1, 3):
        k.I("v_add_u32", v(AX + 2 * sl), sl * STG, v(AX))
        k.I("v_add_u32", v(AX + 2 * sl + 1), sl * STG, v(AX + 1))
    k.I("s_add_u32", s(39), s(27), 1 + 2 * cls)
    k.I("s_xor_b32", s(36), s(27), 1)
    k.I("s_add_u32", s(36), s(36), 1 + 2 * cls)
    for pr, sr in enumerate((39, 36)):
        k.I("s_lshl_b32", s(22), s(sr), 11)
        for i in range(6):
            k.I("v_add_u32", v(AP + 6 * pr + i), s(22), v(AX + i))
    k.I("v_lshrrev_b32", v(14), 4, v(2))
    k.I("v_mul_u32_u24", v(14), WBLK, v(14))
    k.I("v_bfe_u32", v(15), v(2), 2, 2)
    k.I("v_mul_u32_u24", v(15), 448, v(15))
    k.I("v_add_u32", v(14), v(14), v(15))
    k.I("v_and_b32", v(15), 3, v(2))
    k.I("v_lshl_add_u32", v(14), v(15), 3, v(14))
    k.I("s_mul_i32", s(22), s(27), 7 * 32)
    k.I("s_add_u32", s(22), s(22), XB)
    k.I("v_add_u32", v(AW), s(22), v(14))
    for sl in range(1, 3):
        k.I("v_add_u32", v(AW + sl), sl * STG, v(AW))
    k.I("v_and_b32", v(14), 15, v(2))
    k.I("v_cmp_eq_u32", s(30, 2), 0, v(14))
    k.I("s_lshl_b32", s(22), s(27), 3)
    k.I("v_add_u32", v(14), s(22), v(14))
    k.I("v_cmp_le_u32", s(32, 2), 16, v(14))
    att_setup(k)
    for f in dma_items(1):
        f()
    hs = list(range(0, 4)) if cls == 0 else list(range(4, 7))
    tiles = [(s_, t) for s_ in range(7) for t in range(2)] + [(s_, "h") for s_ in hs]
    ACC = {t: 72 + 4 * n for n, t in enumerate(tiles)}
    SA = 44
    HF, W6 = 144, 200

    def xf(p, t):
        return v(HF + 4 * p, 4) if t == "h" else a(32 * p + 4 * t, 4)

    def wf(p, s_, h=None):
        if s_ == 6:
            return v(W6 + 4 * p, 4) if h is None else v(W6 + 4 * p + 2 * h, 2)
        return a(32 * p + 8 + 4 * s_, 4) if h is None else a(32 * p + 8 + 4 * s_ + 2 * h, 2)

    def read_items(st):
        I = []
        sl = st % 3
        for ks in range(2):
            p = (2 * st + ks) % 4
            for t in range(2):
                I.append(lambda t=t, p=p, ks=ks: k.I("ds_read_b128", xf(p, t), v(AP + 6 * t + 2 * sl + ks)))
            I.append(lambda p=p, ks=ks: k.I("ds_read_b128", xf(p, "h"), v(AX + 2 * sl + ks)))
            for s_ in range(7):
                for h in range(2):
                    I.append(lambda s_=s_, h=h, p=p, ks=ks: k.I("ds_read_b64_tr_b16", wf(p, s_, h), v(AW + sl),
                                                                mods=f"offset:{ks * 4 * WBLK + h * 4 * 448 + s_ * 32}"))
        return I

    def compute(kb, fill, per):
        p = kb % 4
        z = kb == 0
        mm = [(v(SA, 4), xf(p, 0), xf(p, 0))]
        if cls == 1:
            mm.append((v(SA + 4, 4), xf(p, "h"), xf(p, "h")))
        pre = [lambda: [k.I("v_cndmask_b32", v(HF + 4 * p + j), v(HF + 4 * p + j), v(ONES), s(30, 2)) for j in range(4)],
               lambda: [k.I("v_cndmask_b32", v(W6 + 4 * p + j), v(W6 + 4 * p + j), v(ONES), s(32, 2)) for j in range(4)]]
        fill2 = [None, None] + pre
        for t in tiles:
            mm.append((v(ACC[t], 4), wf(p, t[0]), xf(p, t[1])))
        n = n2 = 0
        for (ac, A_, B_) in mm:
            k.I(MF, ac, A_, B_, 0 if z else ac)
            for _ in range(per):
                if n < len(fill):
                    fill[n]()
                    n += 1
            if n2 < len(fill2):
                if fill2[n2] is not None:
                    fill2[n2]()
                n2 += 1
        while n < len(fill):
            fill[n]()
            n += 1

    def later(st):
        if st < 9:
            return dma_items(st)
        if st == 9:
            return wo_items[0:10]
        if st == 10:
            return wo_items[10:20]
        return []

    LS.stamp("S2 issued")
    k.wait_vm(tok[0])
    k.I("s_barrier")
    LS.stamp("S0 landed")
    ST.stamp()
    for f in read_items(0):
        f()
    for f in dma_items(2):
        f()
    k.wait(lg=0)
    k.I("s_barrier")
    for f in later(3):
        f()
    def early_stuff():
      if prep.early is not None:
        prep.early()
      if prep.sent:
        k.I("s_lshl_b32", s(22), s(20), 2)
        k.I("s_add_u32", s(22), s(22), s(3))
        k.I("s_mul_i32", s(22), s(22), 72 * 256)
        k.I("s_mul_i32", s(23), s(21), 9 * 256)
        k.I("s_add_u32", s(22), s(22), s(23))
        k.I("s_add_u32", s(22), s(22), hex(WS_O))
        k.I("v_lshlrev_b32", v(188), 4, v(2))
        k.I("v_min_u32", v(189), 240, v(188))
        for i in range(4):
            k.I("v_mov_b32", v(184 + i), -1)
        for i in range(3):
            k.I("buffer_store_dwordx4", v(184, 4), v(188 + (i == 2)), s(S_WS, 4), s(22), mods=f"offen offset:{1024 * i} sc1")
    if "late" not in dbg:
        early_stuff()
    def pl(st):
        return [prep.load(2 * st), prep.load(2 * st + 1)] if (0 <= st < 8 and not prep.off) else []

    def pr(st):
        return [prep.read(2 * st), prep.read(2 * st + 1)] if (0 <= st < 8 and not prep.off) else []

    def ps(st):
        return [prep.store(2 * st), prep.store(2 * st + 1)] if (0 <= st < 8 and not prep.off) else []
    LAG = 2 if "late" in dbg else 0
    if not LAG:
        for f in pl(0) + pl(1):
            f()
    for st in range(9):
        if st < 8:
            k.wait_vm(tok[st + 1])
            k.I("s_barrier")
            if st == 1 and "late" in dbg:
                early_stuff()
            if st == 2 and prep.sent:
                k.I("buffer_load_dwordx2", v(248, 2), v(3), s(S_DBG, 4), 0, mods="offen sc1")
            if st == 6 and prep.sent:
                sv = list(k.vmq)
                nonce_wait(k, f"{L}_S")
                k.vmq = sv
                k.I("s_cmp_lg_u32", s(3), 0)
                k.I("s_cbranch_scc1", f"{L}_NFS")
                k.I("s_lshl_b32", s(22), s(20), 6)
                k.I("s_lshl_b32", s(23), s(21), 3)
                k.I("s_add_u32", s(22), s(22), s(23))
                k.I("s_add_u32", s(22), s(22), hex(WS_FP))
                k.I("buffer_store_dwordx2", v(248, 2), v(3), s(S_WS, 4), s(22), mods="offen sc1")
                k.vmq.pop()
                k.label(f"{L}_NFS")
            compute(2 * st, read_items(st + 1) + pr(st - 1 - LAG // 2), 3 if "rd3" in dbg else 2)
            k.wait(lg=0)
            k.I("s_barrier")
            compute(2 * st + 1, later(st + 4) + ps(st - 1 - LAG // 2) + pl(st + 2 - LAG), 5 if "burst" in dbg else (1 if "slow" in dbg else 2))
        else:
            fi = prep.fin_items() if prep.defer else []
            compute(2 * st, pr(st - 1 - LAG // 2) + [f for x in fi[:6] for f in (x, lambda: None, lambda: None)], 1)
            compute(2 * st + 1, ps(st - 1 - LAG // 2) + [f for x in fi[6:12] for f in (x, lambda: None, lambda: None)], 1)
        LS.stamp(f"st{st}")
    ST.stamp()
    nt = 1 if cls == 0 else 2
    k.I("v_and_b32", v(14), 15, v(2))
    k.I("v_lshrrev_b32", v(17), 4, v(2))
    k.I("v_lshlrev_b32", v(15), 3, v(14))
    k.I("v_add_u32", v(15), L_ST, v(15))
    k.I("s_lshl_b32", s(22), s(39), 7)
    k.I("v_add_u32", v(20), s(22), v(15))
    k.I("s_lshl_b32", s(22), s(36), 7)
    k.I("v_add_u32", v(21), s(22), v(15))
    k.I("v_and_b32", v(18), 3, v(14))
    for r in range(1, 4):
        k.I("v_cmp_eq_u32", "vcc", r, v(18))
        for t in range(nt):
            k.I("v_cndmask_b32", v(SA + 4 * t), v(SA + 4 * t), v(SA + 4 * t + r), "vcc")
    k.I("v_lshrrev_b32", v(18), 2, v(14))
    k.I("v_cmp_eq_u32", s(34, 2), v(18), v(17))
    k.I("v_lshlrev_b32", v(18), 4, v(17))
    k.I("s_mul_i32", s(22), s(27), 7 * 64)
    k.I("s_add_u32", s(22), s(22), L_CS)
    k.I("v_add_u32", v(18), s(22), v(18))
    k.I("s_lshl_b32", s(22), s(27), 2)
    k.I("v_add_u32", v(25), s(22), v(17))
    k.I("v_cmp_eq_u32", s(40, 2), 6, v(25))
    k.I("s_lshl_b32", s(22), s(27), 1)
    k.I("v_add_u32", v(25), s(22), v(17))
    k.I("v_cmp_gt_u32", s(32, 2), 4, v(25))
    k.I("s_mov_b64", "exec", s(34, 2))
    k.I("ds_write_b32", v(20), v(SA), mods="offset:4")
    if cls == 1:
        k.I("ds_write_b32", v(15), v(SA + 4), mods="offset:4")
    k.I("s_mov_b64", "exec", s(30, 2))
    for s_ in hs:
        k.I("ds_write_b128", v(18), v(ACC[(s_, "h")], 4), mods=f"offset:{64 * s_}")
    k.I("s_cmp_eq_u32", s(27), 0)
    k.I("s_cbranch_scc1", f"{L}_NS")
    k.I("s_mov_b64", "exec", s(40, 2))
    for t in range(2):
        k.I("ds_write_b32", v(20 + t), v(ACC[(6, t)]))
    if cls == 1:
        k.I("ds_write_b32", v(15), v(ACC[(6, "h")]))
    k.label(f"{L}_NS")
    k.I("s_mov_b64", "exec", -1)
    wo_items[20]()
    if not prep.off and not prep.defer:
        prep.finish()
    k.I("v_mov_b32", v(26), hex(f32bits(1.0 / 576)))
    k.I("v_mov_b32", v(27), hex(f32bits(1.0 / 576)))
    k.I("v_mul_u32_u24", v(22), PQ, v(14))
    k.I("v_lshl_add_u32", v(22), v(17), 3, v(22))
    k.I("s_mul_i32", s(22), s(27), 7 * 32)
    k.I("s_add_u32", s(22), s(22), L_QKV)
    k.I("v_add_u32", v(22), s(22), v(22))
    k.I("s_mul_i32", s(22), s(39), 16 * PQ)
    k.I("v_add_u32", v(23), s(22), v(22))
    k.I("s_mul_i32", s(22), s(36), 16 * PQ)
    k.I("v_add_u32", v(24), s(22), v(22))
    k.dsq.append((-2, set()))
    k.wait(lg=0)
    k.I("s_barrier")
    STT = {0: 28, 1: 30, "h": 32}
    CSR = 40
    for t in range(2):
        k.I("ds_read_b64", v(STT[t], 2), v(20 + t))
    k.I("ds_read_b64", v(STT["h"], 2), v(15))
    for s_ in range(7):
        k.I("ds_read_b128", v(CSR + 4 * s_, 4), v(18), mods=f"offset:{64 * s_}")
    if LAG:
        for f in pr(7) + ps(7):
            f()
    B = list(STT.values())
    for b in B:
        k.I("v_pk_mul_f32", v(b, 2), v(b, 2), v(26, 2))
    for b in B:
        k.I("v_fma_f32", v(b + 1), f"-{v(b)}", v(b), v(b + 1))
    for b in B:
        k.I("v_max_f32", v(b + 1), 0, v(b + 1))
    for b in B:
        k.I("v_add_f32", v(b + 1), hex(f32bits(1e-5)), v(b + 1))
    for b in B:
        k.I("v_rsq_f32", v(b + 1), v(b + 1))
    for b in B:
        k.I("v_mul_f32", v(b), f"-{v(b)}", v(b + 1))
    for n, t in enumerate(tiles):
        s_, T = t
        x = ACC[t]
        cs = CSR + 4 * s_
        for hh in range(2):
            k.I("v_pk_mul_f32", v(x + 2 * hh, 2), v(x + 2 * hh, 2), v(STT[T], 2), mods="op_sel:[0,1] op_sel_hi:[1,1]")
        for hh in range(2):
            k.I("v_pk_fma_f32", v(x + 2 * hh, 2), v(cs + 2 * hh, 2), v(STT[T], 2), v(x + 2 * hh, 2),
                mods="op_sel:[0,0,0] op_sel_hi:[1,0,1]")
        k.I("v_cvt_pk_bf16_f32", v(x), v(x), v(x + 1))
        k.I("v_cvt_pk_bf16_f32", v(x + 1), v(x + 2), v(x + 3))
        if s_ == 6:
            k.I("s_mov_b64", "exec", s(32, 2))
        k.I("ds_write_b64", v(22 if T == "h" else 23 + T), v(x, 2), mods=f"offset:{s_ * 32}")
        if s_ == 6:
            k.I("s_mov_b64", "exec", -1)
        if prep.defer and n % 2 == 1 and 12 + n // 2 < 18:
            fi[12 + n // 2]()


def attention(k, wo_items):
    QF, KF, VF, SS, MX = 20, 36, 68, 100, 4
    c0 = [4 * (18 * h // 4) for h in range(4)]
    for h in range(4):
        for hf in range(2):
            k.I("ds_read_b64", v(QF + 4 * h + 2 * hf, 2), v(AQ), mods=f"offset:{2 * c0[h] + 8 * hf}")
        for t in range(2):
            for hf in range(2):
                k.I("ds_read_b64", v(KF + 16 * t + 4 * h + 2 * hf, 2), v(AKP if t == 0 else AQ),
                    mods=f"offset:{144 + 2 * c0[h] + 8 * hf}")
    k.I("s_lshl_b32", s(22), s(20), 2)
    k.I("s_add_u32", s(22), s(22), s(3))
    k.I("s_mul_i32", s(22), s(22), 72 * 256)
    k.I("s_mul_i32", s(23), s(21), 9 * 256)
    k.I("s_add_u32", s(22), s(22), s(23))
    k.I("s_add_u32", s(22), s(22), hex(WS_O))
    k.I("v_cmp_gt_u32", s(40, 2), 16, v(2))
    k.I("s_mov_b32", s(24), hex(f32bits(LOG2E * 18 ** -0.5)))
    k.bgq = list(wo_items)
    k.bg_period = 3
    for h in range(4):
        for e in range(4):
            x = QF + 4 * h + e
            k.I("v_and_b32", v(x), v(QM + 4 * (h % 2) + e), v(x))
        k.I(MF, v(SS + 8 * h, 4), v(KF + 4 * h, 4), v(QF + 4 * h, 4), v(B0, 4))
        k.I(MF, v(SS + 8 * h + 4, 4), v(KF + 16 + 4 * h, 4), v(QF + 4 * h, 4), v(BC, 4))
    for h in range(4):
        for rt in range(2):
            for kt in range(2):
                k.I("ds_read_b64_tr_b16", v(VF + 8 * h + 4 * rt + 2 * kt, 2), v(AVP if kt == 0 else AV),
                    mods=f"offset:{288 + 2 * c0[h] + 32 * rt}")
    for h in range(4):
        b = SS + 8 * h
        k.I("v_max3_f32", v(MX + h), v(b), v(b + 1), v(b + 2))
    for h in range(4):
        b = SS + 8 * h
        k.I("v_max3_f32", v(MX + h), v(MX + h), v(b + 3), v(b + 4))
    for h in range(4):
        b = SS + 8 * h
        k.I("v_max3_f32", v(MX + 4 + h), v(b + 5), v(b + 6), v(b + 7))
    for h in range(4):
        k.I("v_max_f32", v(MX + h), v(MX + h), v(MX + 4 + h))
    reduce_groups(k, [MX + h for h in range(4)], MX + 4, op="v_max_f32")
    for h in range(4):
        k.I("v_mul_f32", v(MX + h), s(24), v(MX + h))
    OA, OB = QF, KF

    def pv(hp):
        k.I(MF, v(SS + 8 * hp + 4, 4), v(ONES, 4), v(SS + 8 * hp, 4), 0)
        k.I(MF, v(OA + 4 * hp, 4), v(VF + 8 * hp, 4), v(SS + 8 * hp, 4), 0)
        k.I(MF, v(OB + 4 * hp, 4), v(VF + 8 * hp + 4, 4), v(SS + 8 * hp, 4), 0)
    for h in range(4):
        for e in range(8):
            k.I("v_fma_f32", v(SS + 8 * h + e), v(SS + 8 * h + e), s(24), f"-{v(MX + h)}")
        for e in range(8):
            k.I("v_exp_f32", v(SS + 8 * h + e), v(SS + 8 * h + e))
        for e in range(4):
            k.I("v_cvt_pk_bf16_f32", v(SS + 8 * h + e), v(SS + 8 * h + 2 * e), v(SS + 8 * h + 2 * e + 1))
        if h > 0:
            pv(h - 1)
    pv(3)
    while k.bgq:
        k.bgq.pop(0)()

    def scale(g):
        for r in range(4):
            k.I("v_mul_f32", v(OA + 4 * g + r), v(MX + g), v(OA + 4 * g + r))
        for r in range(2 if g % 2 == 0 else 4):
            k.I("v_mul_f32", v(OB + 4 * g + r), v(MX + g), v(OB + 4 * g + r))
    for h in range(4):
        k.I("v_rcp_f32", v(MX + h), v(SS + 8 * h + 4))
        if h:
            scale(h - 1)
    scale(3)
    for hp in range(2):
        e_, o_ = 2 * hp, 2 * hp + 1
        for r in range(2):
            k.I("v_cndmask_b32", v(OA + 4 * o_ + r), v(OA + 4 * o_ + r), v(OB + 4 * e_ + r), s(40, 2))
        for (reg, G) in ((OA + 4 * e_, 9 * hp), (OA + 4 * o_, 9 * hp + 4), (OB + 4 * o_, 9 * hp + 8)):
            k.I("v_cvt_pk_bf16_f32", v(reg), v(reg), v(reg + 1))
            k.I("v_cvt_pk_bf16_f32", v(reg + 1), v(reg + 2), v(reg + 3))
            last = G % 9 == 8
            if last:
                k.I("s_mov_b64", "exec", s(40, 2))
            k.I("ds_write_b64", v(AO + G % 2), v(reg, 2), mods=f"offset:{(G // 2) * 256}")
            if last:
                k.I("s_mov_b64", "exec", -1)
    k.I("v_lshlrev_b32", v(4), 4, v(2))
    k.I("s_mul_i32", s(23), s(3), 2304)
    k.I("s_add_u32", s(23), s(23), L_PREP)
    k.I("v_add_u32", v(5), s(23), v(4))
    k.wait(lg=0)
    k.I("s_barrier")
    tile_out(k, 5, 4, 22, 20, "sc1")


def tile_out(k, vl, vo, so, tmp, sc):
    for i in range(3):
        k.I("ds_read_b128", v(tmp + 4 * i, 4), v(vl), mods=f"offset:{1024 * i}")
    for i in range(3):
        if i == 2:
            k.I("s_mov_b64", "exec", "0xffff")
        k.I("buffer_store_dwordx4", v(tmp + 4 * i, 4), v(vo), s(S_WS, 4), s(so), mods=f"offen offset:{1024 * i} {sc}")
    k.I("s_mov_b64", "exec", -1)


def emit_ab(k, U, ST, dbg="", sc="", early=None, prepoll=False):
    LS = LStamps(k, 255, 100, "lst" in dbg)
    LS.stamp("start")
    k.I("s_load_dwordx4", s(20, 4), s(0, 2), KA_X)
    k.I("s_load_dwordx4", s(24, 4), s(0, 2), KA_DBG)
    k.I("s_load_dwordx2", s(28, 2), s(0, 2), KA_WO)
    k.I("s_load_dwordx4", s(32, 4), s(0, 2), KA_WG)
    k.I("s_load_dwordx2", s(30, 2), s(0, 2), KA_WD)
    k.I("v_lshrrev_b32", v(1), 6, v(0))
    k.I("v_and_b32", v(2), 63, v(0))
    k.I("v_readfirstlane_b32", s(3), v(1))
    k.I("v_mov_b32", v(3), 0)
    k.I("v_lshrrev_b32", v(14), 3, v(2))
    k.I("v_lshrrev_b32", v(15), 1, v(14))
    k.I("v_and_b32", v(16), 7, v(2))
    k.wait(lg=0)
    LS.stamp("kernarg")
    srd(k, S_X, 20, S * D * 2)
    srd(k, S_QKV, 22, D * 3 * D * 2)
    srd(k, S_WS, 26, WS_SIZE)
    srd(k, S_DBG, 24, 256)
    srd(k, S_WO, 28, D * D * 2)
    srd(k, S_WG, 32, D * F * 2)
    srd(k, S_WU, 34, D * F * 2)
    srd(k, S_WD, 30, D * F * 2)
    k.I("s_bfe_u32", s(20), s(2), hex((2 << 16) | 1))
    k.I("s_lshl_b32", s(20), s(20), 3)
    k.I("s_bfe_u32", s(21), s(2), hex((3 << 16) | 3))
    k.I("s_add_u32", s(20), s(20), s(21))
    k.I("s_and_b32", s(21), s(2), 1)
    k.I("s_lshl_b32", s(21), s(21), 2)
    k.I("s_lshr_b32", s(22), s(2), 6)
    k.I("s_add_u32", s(21), s(21), s(22))
    k.I("s_and_b32", s(27), s(3), 1)
    k.I("s_lshr_b32", s(28), s(3), 1)
    VX = 4
    k.I("s_mov_b32", s(23), 1152)
    k.I("s_lshl_b32", s(22), s(27), 2)
    k.I("v_add_u32", v(15), s(22), v(15))
    k.I("v_xor_b32", v(15), v(15), v(16))
    k.I("s_lshl_b32", s(22), s(20), 6)
    k.I("s_lshl_b32", s(24), s(27), 4)
    k.I("s_add_u32", s(24), s(24), s(22))
    k.I("v_lshl_add_u32", v(16), v(14), 1, s(24))
    k.I("v_mul_lo_u32", v(16), v(16), s(23))
    k.I("v_lshl_add_u32", v(VX), v(15), 4, v(16))
    k.I("s_add_u32", s(24), s(22), s(27))
    k.I("s_sub_u32", s(24), s(24), 16)
    k.I("v_lshl_add_u32", v(16), v(14), 1, s(24))
    k.I("v_mul_lo_u32", v(16), v(16), s(23))
    k.I("v_lshl_add_u32", v(VX + 1), v(15), 4, v(16))
    k.I("s_mul_i32", s(22), s(28), 14)
    k.I("s_add_u32", s(22), s(22), s(27))
    k.I("s_lshl_b32", s(24), s(22), 6)
    k.I("v_add_u32", v(18), s(24), v(2))
    k.I("s_lshl_b32", s(24), s(22), 10)
    k.I("s_add_u32", s(24), s(24), XB)
    k.I("s_lshl_b32", s(37), s(27), 10)
    k.I("s_mul_i32", s(25), s(21), 144)
    k.I("s_mov_b32", s(26), s(25))
    k.I("s_and_b32", s(34), s(20), 7)
    k.I("s_and_b32", s(35), s(21), 3)
    k.I("s_lshl_b32", s(35), s(35), 1)
    k.I("s_add_u32", s(34), s(34), s(35))
    k.I("s_sub_u32", s(35), s(34), 9)
    k.I("s_cmp_ge_u32", s(34), 9)
    k.I("s_cselect_b32", s(34), s(35), s(34))
    if "norot" in dbg:
        k.I("s_mov_b32", s(34), 0)
    k.I("s_mul_i32", s(35), s(34), 64 * 3456)
    k.I("s_add_u32", s(25), s(25), s(35))
    k.I("s_lshl_b32", s(34), s(34), 7)
    k.I("s_or_b32", s(22), s(2), s(3))
    k.I("s_cmp_lg_u32", s(22), 0)
    k.I("s_cbranch_scc1", f"{U}_NN")
    k.I("s_memrealtime", s(22, 2))
    k.wait(lg=0)
    k.I("s_or_b32", s(22), s(22), 1)
    k.I("v_mov_b32", v(248), s(22))
    k.I("v_mov_b32", v(249), s(23))
    k.I("buffer_store_dwordx2", v(248, 2), v(3), s(S_DBG, 4), 0, mods="offen sc1")
    k.vmq.pop()
    k.label(f"{U}_NN")
    prep = Prep(k, U, sc)
    prep.early = early
    prep.off = "noprep" in dbg
    prep.dbg = dbg
    prep.sent = prepoll and "sent" in dbg
    prep.defer = prepoll and "nodefer" not in dbg
    prep.decode()

    wo_tok = prep.wo_tok = {}

    def wo_item(n):
        def f():
            base, lim, off = (0, 38, 4 * n) if n < 10 else ((39, 38, 4 * (n - 10)) if n < 20 else (78, 2, 0))
            if off + 3 > lim or (n < 20 and "worot" in dbg):
                k.I("s_add_u32", s(29), s(3), off)
                if n < 20 and "worot" in dbg:
                    k.I("s_and_b32", s(38), s(20), 7)
                    k.I("s_mul_i32", s(38), s(38), 5)
                    k.I("s_add_u32", s(29), s(29), s(38))
                    k.I("s_sub_u32", s(38), s(29), 40)
                    k.I("s_cmp_ge_u32", s(29), 40)
                    k.I("s_cselect_b32", s(29), s(38), s(29))
                k.I("s_min_u32", s(29), s(29), lim)
                k.I("s_add_u32", s(29), s(29), base)
                k.I("s_lshl_b32", "m0", s(29), 10)
                k.I("s_lshl_b32", s(29), s(29), 6)
                k.I("v_add_u32", v(250), s(29), v(2))
            else:
                k.I("v_add_u32", v(250), 64 * (base + off), v(0))
                k.I("s_lshl_b32", s(29), s(3), 10)
                k.I("s_add_u32", "m0", s(29), (base + off) * 1024)
            k.I("v_mul_u32_u24", v(251), 7282, v(250))
            k.I("v_lshrrev_b32", v(251), 16, v(251))
            k.I("v_mul_u32_u24", v(251), 1152 - 144, v(251))
            k.I("v_lshl_add_u32", v(251), v(250), 4, v(251))
            wo_tok[n] = k.I("buffer_load_dwordx4", v(251), s(S_WO, 4), s(26), mods="offen lds")
        return f
    wo_items = [wo_item(n) for n in range(21)]

    def touch_w(n):
        def f():
            k.I("v_add_u32", v(250), 256 * n, v(0))
            k.I("v_min_u32", v(250), 431, v(250))
            k.I("v_mul_u32_u24", v(251), 10923, v(250))
            k.I("v_lshrrev_b32", v(251), 16, v(251))
            k.I("v_mul_u32_u24", v(252), 6, v(251))
            k.I("v_sub_u32", v(250), v(250), v(252))
            k.I("v_mul_u32_u24", v(251), 8 * 3456, v(251))
            k.I("v_lshrrev_b32", v(252), 1, v(250))
            k.I("v_mul_u32_u24", v(252), 1152, v(252))
            k.I("v_add_u32", v(251), v(251), v(252))
            k.I("v_and_b32", v(250), 1, v(250))
            k.I("v_mul_u32_u24", v(250), 140, v(250))
            k.I("v_add_u32", v(251), v(251), v(250))
            k.I("s_and_b32", s(29), s(20), 7)
            k.I("s_mul_i32", s(29), s(29), 3456)
            k.I("s_add_u32", s(29), s(29), s(26))
            k.I("buffer_load_dword", v(194 + n), v(251), s(S_QKV, 4), s(29), mods="offen")
        return f

    def touch_x():
        k.I("v_mul_u32_u24", v(251), 1152, v(2))
        k.I("s_and_b32", s(29), s(21), 3)
        k.I("s_lshl_b32", s(38), s(3), 2)
        k.I("s_add_u32", s(29), s(29), s(38))
        k.I("s_min_u32", s(29), s(29), 8)
        k.I("s_lshl_b32", s(29), s(29), 7)
        k.I("s_mul_i32", s(38), s(20), 64 * 1152)
        k.I("s_add_u32", s(29), s(29), s(38))
        k.I("buffer_load_dword", v(196), v(251), s(S_X, 4), s(29), mods="offen")

    def touch_wo():
        k.I("v_min_u32", v(250), 143, v(0))
        k.I("v_lshrrev_b32", v(251), 1, v(250))
        k.I("v_mul_u32_u24", v(251), 8 * 1152, v(251))
        k.I("v_and_b32", v(250), 1, v(250))
        k.I("v_mul_u32_u24", v(250), 140, v(250))
        k.I("v_add_u32", v(251), v(251), v(250))
        k.I("s_and_b32", s(29), s(20), 7)
        k.I("s_mul_i32", s(29), s(29), 1152)
        k.I("s_add_u32", s(29), s(29), s(26))
        k.I("buffer_load_dword", v(197), v(251), s(S_WO, 4), s(29), mods="offen")
    touch_items = [touch_w(0), touch_x, touch_w(1), touch_wo] if "touch" in dbg else []
    k.I("v_lshrrev_b32", v(52), 4, v(2))
    k.I("v_lshlrev_b32", v(52), 3, v(52))
    k.I("v_bfe_u32", v(53), v(2), 2, 2)
    k.I("v_add_u32", v(52), v(52), v(53))
    k.I("v_mul_u32_u24", v(52), 144, v(52))
    k.I("v_and_b32", v(53), 3, v(2))
    k.I("v_lshl_add_u32", v(192), v(53), 3, v(52))
    k.I("v_add_u32", v(193), 9 * 4608, v(192))

    def wo(kb, r, h=None):
        n = 5 * kb + r
        vg = list(range(88, 160, 4)) + list(range(168, 184, 4)) + list(range(232, 248, 4))
        f, b = ("a", 4 * n) if n < 64 else ("v", vg[n - 64])
        return R(f, b, 4) if h is None else R(f, b + 2 * h, 2)
    wofrag = [lambda kb=kb, r=r, h=h: k.I("ds_read_b64_tr_b16", wo(kb, r, h), v(192 + kb // 9),
                                          mods=f"offset:{(kb % 9) * 4608 + h * 576 + r * 32}")
              for kb in range(18) for r in range(5) for h in range(2)]
    LS.stamp("setup")
    n0 = LS.n
    k.I("s_cmp_lg_u32", s(28), 0)
    k.I("s_cbranch_scc1", f"{U}_A1")
    for cls in range(2):
        if cls == 1:
            k.label(f"{U}_A1")
            k.vmq, k.dsq = [], []
        if cls == 1:
            LS.n, LS.names = n0, LS.names[:n0]
        gemm(k, U, cls, ST if cls == 0 else ST.clone(), prep, wo_items, touch_items, wofrag, dbg, LS)
        if cls == 0:
            k.I("s_branch", f"{U}_AJ")
    k.label(f"{U}_AJ")
    k.dsq = [(-2, set())]
    k.wait(lg=0)
    k.I("s_barrier")
    ST.stamp()
    LS.stamp("norm")
    k.I("s_lshl_b32", s(36), s(20), 6)
    k.I("v_and_b32", v(12), 7, v(2))
    k.I("v_lshlrev_b32", v(12), 3, v(12))
    if prep.sent:
        k.I("s_add_u32", s(37), s(36), hex(WS_FP))
        k.I("buffer_load_dwordx2", v(14, 2), v(12), s(S_WS, 4), s(37), mods="offen sc1")
    else:
        k.I("buffer_load_dwordx2", v(248, 2), v(3), s(S_DBG, 4), 0, mods="offen sc1")
    k.I("s_add_u32", s(36), s(36), hex(WS_F0))
    wo_last = k.vmq[-1][0]
    attention(k, [])
    ST.stamp()
    LS.stamp("attn")

    def f0_flag():
        k.I("s_cmp_lg_u32", s(3), 0)
        k.I("s_cbranch_scc1", f"{U}_NF")
        k.I("s_lshl_b32", s(23), s(21), 3)
        k.I("s_add_u32", s(23), s(23), s(36))
        k.I("buffer_store_dwordx2", v(248, 2), v(3), s(S_WS, 4), s(23), mods="offen sc1")
        k.vmq.pop()
        k.label(f"{U}_NF")
    if prep.sent:
        k.wait_vm(wo_last)
        k.I("s_barrier")
        f0_flag()
    else:
        k.wait(vm=0)
        LS.stamp("drain")
        k.I("s_barrier")
        nonce_wait(k, U)
        k.vmq = []
        f0_flag()
    ST.stamp()
    k.I("s_lshl_b32", s(22), s(20), 2)
    k.I("s_add_u32", s(22), s(22), s(3))
    k.I("v_and_b32", v(8), 15, v(2))
    k.I("v_lshrrev_b32", v(9), 4, v(2))
    k.I("v_mul_u32_u24", v(10), 1152, v(8))
    k.I("v_lshl_add_u32", v(10), v(9), 3, v(10))
    k.I("s_mul_i32", s(23), s(22), 16 * 1152)
    k.I("s_add_u32", s(23), s(23), s(26))
    RES = 200
    for r in range(5):
        k.I("buffer_load_dwordx2", v(RES + 2 * r, 2), v(10), s(S_X, 4), s(23), mods=f"offen offset:{32 * r}")
    LS.stamp("flag")

    NPRE = 80 if prep.sent else 180
    for f in wofrag[:NPRE]:
        f()
    def spin(tag, load, test):
        k.I("s_mov_b32", s(33), 40000)
        k.label(f"{U}_PL{tag}")
        load()
        k.wait(vm=0)
        test()
        k.I("s_cbranch_scc1", f"{U}_POK{tag}")
        k.I("s_sub_u32", s(33), s(33), 1)
        k.I("s_cmp_eq_u32", s(33), 0)
        k.I("s_cbranch_scc1", f"{U}_POK{tag}")
        k.I("s_branch", f"{U}_PL{tag}")
        k.label(f"{U}_POK{tag}")

    def eq_nonce(r):
        k.I("v_cmp_eq_u64", "vcc", v(248, 2), v(r, 2))
        k.I("s_cmp_eq_u64", "vcc", -1)
    k.I("s_mul_i32", s(38), s(22), 18 * 1024)
    k.I("s_add_u32", s(38), s(38), hex(WS_O))
    if prep.sent:
        eq_nonce(14)
        k.I("s_cbranch_scc1", f"{U}_POKs")
        spin("s", lambda: k.I("buffer_load_dwordx2", v(14, 2), v(12), s(S_WS, 4), s(37), mods="offen sc1"), lambda: eq_nonce(14))
        k.I("v_mul_u32_u24", v(11), 288, v(2))
        k.I("v_add_u32", v(11), 284, v(11))

        def t2():
            k.I("v_cmp_ne_u32", "vcc", -1, v(6))
            k.I("s_cmp_eq_u64", "vcc", -1)
        spin("h", lambda: k.I("buffer_load_dword", v(6), v(11), s(S_WS, 4), s(38), mods="offen sc1"), t2)
    else:
        spin("f", lambda: k.I("buffer_load_dwordx2", v(6, 2), v(12), s(S_WS, 4), s(36), mods="offen sc1"), lambda: eq_nonce(6))
    LS.stamp("poll")
    ST.stamp()
    OF = 16
    k.I("v_lshlrev_b32", v(13), 4, v(2))
    k.I("s_mov_b32", s(33), 2000)
    k.label(f"{U}_BL")
    k.I("s_mov_b32", s(24), s(38))
    for kb in range(18):
        if kb % 4 == 0 and kb:
            k.I("s_add_u32", s(24), s(24), 4096)
        k.I("buffer_load_dwordx4", v(OF + 4 * kb, 4), v(13), s(S_WS, 4), s(24), mods=f"offen offset:{(kb % 4) * 1024} sc1")
    for f in wofrag[NPRE:]:
        f()
    k.I("v_lshlrev_b32", v(10), 4, v(8))
    k.I("v_lshrrev_b32", v(11), 1, v(9))
    k.I("v_lshl_add_u32", v(10), v(11), 8, v(10))
    k.I("v_and_b32", v(11), 1, v(9))
    k.I("v_lshl_add_u32", v(10), v(11), 3, v(10))
    k.I("s_mul_i32", s(23), s(3), 2304)
    k.I("s_add_u32", s(23), s(23), L_PREP + 9216)
    k.I("v_add_u32", v(10), s(23), v(10))
    k.I("v_lshlrev_b32", v(14), 4, v(2))
    k.I("v_add_u32", v(15), s(23), v(14))
    k.I("s_mul_i32", s(23), s(22), 72 * 256)
    k.I("s_mul_i32", s(24), s(21), 9 * 256)
    k.I("s_add_u32", s(23), s(23), s(24))
    k.I("s_add_u32", s(23), s(23), hex(WS_H))
    k.I("v_cmp_gt_u32", s(40, 2), 32, v(2))
    k.I("v_mov_b32", v(4), 0)
    k.I("v_mov_b32", v(5), 0)
    k.I("v_mov_b32", v(6), "0x3f803f80")
    BACC = 212
    for kb in range(18):
        if kb == 12 and prepoll:
            k.I("v_lshlrev_b32", v(7), 5, v(2))
            k.I("s_mov_b32", s(25), hex(WS_F0))
            for i in range(2):
                k.I("buffer_load_dwordx4", v(192 + 4 * i, 4), v(7), s(S_WS, 4), s(25), mods=f"offen offset:{16 * i} sc1")
        for r in range(5):
            ac = v(BACC + 4 * r, 4)
            k.I(MF, ac, wo(kb, r), v(OF + 4 * kb, 4), ac if kb else 0)
            if prep.sent and r < 2:
                x = OF + 4 * kb + 2 * r
                if kb == 0 and r == 0:
                    k.I("v_max_u32", v(210), v(x), v(x + 1))
                else:
                    k.I("v_max3_u32", v(210), v(210), v(x), v(x + 1))
    if prep.sent:
        k.I("v_cmp_eq_u32", "vcc", -1, v(210))
        k.I("s_cbranch_vccz", f"{U}_BOK")
        k.I("s_sub_u32", s(33), s(33), 1)
        k.I("s_cmp_eq_u32", s(33), 0)
        k.I("s_cbranch_scc1", f"{U}_BOK")
        k.I("s_waitcnt", "vmcnt(0)")
        k.I("s_branch", f"{U}_BL")
        k.label(f"{U}_BOK")
    LS.stamp("B mfma")
    ST.stamp()
    for r in range(5):
        x = BACC + 4 * r
        t = 16 + 4 * (r % 2)
        for i in range(2):
            k.I("v_lshlrev_b32", v(t + 2 * i), 16, v(RES + 2 * r + i))
            k.I("v_and_b32", v(t + 2 * i + 1), "0xffff0000", v(RES + 2 * r + i))
        for i in range(4):
            k.I("v_add_f32", v(x + i), v(x + i), v(t + i))
        k.I("v_cvt_pk_bf16_f32", v(x), v(x), v(x + 1))
        k.I("v_cvt_pk_bf16_f32", v(x + 1), v(x + 2), v(x + 3))
        if r == 4:
            k.I("s_mov_b64", "exec", s(40, 2))
        k.I("ds_write_b64", v(10), v(x, 2), mods=f"offset:{r * 512}")
        for i in range(2):
            k.I("v_dot2c_f32_bf16", v(4), v(x + i), v(6))
            k.I("v_dot2c_f32_bf16", v(5), v(x + i), v(x + i))
        if r == 4:
            k.I("s_mov_b64", "exec", -1)
    tile_out(k, 15, 14, 23, 28, sc)
    reduce_groups(k, [4, 5], 24)
    k.I("v_lshlrev_b32", v(10), 6, v(8))
    k.I("s_lshl_b32", s(23), s(22), 10)
    k.I("s_lshl_b32", s(24), s(21), 3)
    k.I("s_add_u32", s(23), s(23), s(24))
    k.I("s_add_u32", s(23), s(23), hex(WS_ST))
    k.I("buffer_store_dwordx2", v(4, 2), v(10), s(S_WS, 4), s(23), mods=f"offen {sc}")
    LS.stamp("B done")
    LS.dump(S_WS, 254, 1)


def build_ab(dbg=""):
    k = Kern("kab_kernel")
    ST = Stamps(k, 64, "stamp" in dbg)
    k.I("s_cmp_ge_u32", s(2), 256)
    k.I("s_cbranch_scc1", "KAB_END")
    ST.stamp()
    emit_ab(k, "KAB", ST, dbg)
    k.I("v_lshlrev_b32", v(8), 2, v(2))
    k.I("s_lshl_b32", s(22), s(2), 7)
    k.I("s_add_u32", s(22), s(22), hex(WS_F1))
    k.I("s_add_u32", s(23), s(22), hex(WS_F2 - WS_F1))
    k.I("v_cmp_gt_u32", "vcc", 32, v(2))
    k.I("s_and_saveexec_b64", s(30, 2), "vcc")
    k.I("buffer_store_dword", v(3), v(8), s(S_WS, 4), s(22), mods="offen")
    k.I("buffer_store_dword", v(3), v(8), s(S_WS, 4), s(23), mods="offen")
    k.I("s_mov_b64", "exec", s(30, 2))
    ST.stamp()
    ST.dump(S_WS, 100, 3)
    k.label("KAB_END")
    k.I("s_endpgm")
    return k, "grid=(256,1,1) block=(256,1,1) lds=%d" % LDS_TOTAL
```

```python
from common import *
from k_frag import f32bits
from collections import deque

RING = 5
STAGE = 16384
NSTG = 19
LDS_WD = RING * STAGE
LDS_CS = LDS_WD + 4 * NSTG * 1024
LDS_TOTAL = LDS_CS + 2304
BUF = 73728
MF = "v_mfma_f32_16x16x32_bf16"
LOG2E = 1.4426950408889634
NSTAT = 8


class Pool:
    def __init__(self, vlo, vhi, alo, ahi):
        self.v = deque(range(vlo, vhi, 4))
        self.a = deque(range(alo, ahi, 4))

    def get(self, kind="any"):
        if kind == "v" or (kind == "any" and not self.a):
            return ("v", self.v.popleft())
        return ("a", self.a.popleft())

    def put(self, r):
        (self.v if r[0] == "v" else self.a).append(r[1])

    def n(self):
        return len(self.v) + len(self.a)


def r4(r):
    return R(r[0], r[1], 4)


def build_cd(dbg="", NA=7):
    k = Kern("kcd_kernel")
    ST = Stamps(k, 64, "stamp" in dbg)
    k.I("s_cmp_ge_u32", s(2), 256)
    k.I("s_cbranch_scc1", "KCD_END")
    ST.stamp()
    emit_cd(k, ST, dbg, NA, False)
    k.label("KCD_END")
    k.I("s_endpgm")
    return k, "grid=(256,1,1) block=(256,1,1) lds=%d" % LDS_TOTAL


def emit_cd(k, ST, dbg, NA, fused, roles=False, publish=None):
    NG = 2 if roles else 4
    if "stC" in dbg or "stD" in dbg:
        ST2 = Stamps(k, 64, True)
    else:
        ST2 = Stamps(k, 64, False)
    SC = "sc1" if "nosc" not in dbg else ""
    SCI = "sc1" if fused else ""
    SCW = SCI if "wplain" not in dbg else ""
    LS = LStamps(k, 1, 100, "lsd" in dbg)
    LC = LStamps(k, 0, 100, "lsc" in dbg)
    if not fused:
        k.I("s_load_dwordx2", s(4, 2), s(0, 2), KA_WS)
        k.I("v_lshrrev_b32", v(1), 6, v(0))
        k.I("v_and_b32", v(2), 63, v(0))
        k.I("v_readfirstlane_b32", s(3), v(1))
    k.I("s_load_dwordx2", s(6, 2), s(0, 2), KA_OUT)
    k.I("s_bfe_u32", s(16), s(2), hex((2 << 16) | 1))
    k.I("s_bfe_u32", s(17), s(2), hex((2 << 16) | 3))
    k.I("s_and_b32", s(21), s(2), 1)
    k.I("s_lshl_b32", s(21), s(21), 3)
    k.I("s_lshr_b32", s(20), s(2), 5)
    k.I("s_add_u32", s(21), s(21), s(20))
    if "map0" in dbg:
        k.I("s_and_b32", s(17), s(2), 1)
        k.I("s_lshl_b32", s(17), s(17), 1)
        k.I("s_bfe_u32", s(21), s(2), hex((1 << 16) | 3))
        k.I("s_add_u32", s(17), s(17), s(21))
        k.I("s_lshr_b32", s(21), s(2), 4)
    if "map2" in dbg:
        k.I("s_and_b32", s(16), s(2), 1)
        k.I("s_lshl_b32", s(16), s(16), 1)
        k.I("s_bfe_u32", s(21), s(2), hex((1 << 16) | 5))
        k.I("s_add_u32", s(16), s(16), s(21))
        k.I("s_bfe_u32", s(21), s(2), hex((2 << 16) | 1))
        k.I("s_lshl_b32", s(21), s(21), 2)
        k.I("s_lshr_b32", s(20), s(2), 6)
        k.I("s_add_u32", s(21), s(21), s(20))
    k.I("s_lshl_b32", s(20), s(16), 2)
    k.I("s_add_u32", s(20), s(20), s(17))
    k.I("v_lshlrev_b32", v(3), 4, v(2))
    k.I("s_lshl_b32", s(22), s(21), 3)
    k.I("s_lshl_b32", s(23), s(3), 1)
    k.I("s_add_u32", s(22), s(22), s(23))
    k.I("s_mul_i32", s(24), s(20), 9 * 18 * 4096)
    k.I("s_add_u32", s(24), s(24), hex(WS_WGU))
    k.I("s_lshl_b32", s(25), s(3), 12)
    k.I("s_add_u32", s(30), s(24), s(25))
    k.I("s_add_u32", s(30), s(30), 72 * 4096)
    k.I("s_mul_i32", s(31), s(3), 18 * 4096)
    k.I("s_add_u32", s(24), s(24), s(31))
    k.I("s_mul_i32", s(26), s(22), 18 * 1024)
    k.I("s_add_u32", s(26), s(26), hex(WS_H))
    k.I("s_add_u32", s(27), s(26), 18 * 1024)
    k.wait(lg=0)
    if not fused:
        srd(k, 8, 4, WS_SIZE)
    srd(k, 12, 6, S * D * 2)

    def nonce_poll(tag, vo, sreg, nld, pre=None):
        b = 28 if pre is None else pre

        def test():
            for i in range(2 * nld):
                k.I("v_cmp_eq_u64", "vcc" if i == 0 else s(56, 2), v(248, 2), v(b + 2 * i, 2))
                if i:
                    k.I("s_and_b64", "vcc", "vcc", s(56, 2))
            k.I("s_cmp_eq_u64", "vcc", -1)
            k.I("s_cbranch_scc1", f"KCD_R{tag}")
        k.I("s_mov_b32", s(60), 40000)
        if pre is not None:
            test()
        save = list(k.vmq)
        k.label(f"KCD_Q{tag}")
        for i in range(nld):
            k.I("buffer_load_dwordx4", v(b + 4 * i, 4), v(vo), s(8, 4), s(sreg), mods=f"offen offset:{16 * i} sc1")
        k.wait(vm=0)
        test()
        k.I("s_sub_u32", s(60), s(60), 1)
        k.I("s_cmp_eq_u32", s(60), 0)
        k.I("s_cbranch_scc1", f"KCD_R{tag}")
        k.I("s_branch", f"KCD_Q{tag}")
        k.label(f"KCD_R{tag}")
        if pre is not None:
            k.vmq = save

    P = Pool(28, 256, 0, 256)
    X = {(tt, kb): P.get("a") for kb in range(18) for tt in range(2)}
    ACC = {(c, tile, tt): P.get("v") for c in range(4) for tile in range(4) for tt in range(2)}
    CS = [P.get("v") for _ in range(4)]
    WF = {(b, tile): P.get("a" if "wfv" not in dbg else "v") for b in range(3) for tile in range(4)}

    dma_tok = {}
    wtok = {}

    NSTAGE = 18 + 23

    def dma_items(st):
        slot = st % RING

        def one(i):
            def f():
                if i == 0:
                    k.I("s_add_u32", "m0", s(25), slot * STAGE)
                    if st == NSTAGE - 1:
                        k.I("s_and_b32", s(59), s(3), 2)
                        k.I("s_lshl_b32", s(59), s(59), 12)
                        k.I("s_sub_u32", s(30), s(30), s(59))
                sr = 24 if st < 18 else 30
                t = k.I("buffer_load_dwordx4", v(3), s(8, 4), s(sr), mods=f"offen offset:{i * 1024} {SCW} lds")
                if i == 3:
                    dma_tok[st] = t
                    k.I("s_add_u32", s(sr), s(sr), 4096 if st < 18 else STAGE)
            return f
        return [one(i) for i in range(4)]

    def x_items(kb0, kb1):
        L = []
        for kb in range(kb0, kb1):
            for tt in range(2):
                def f(kb=kb, tt=tt):
                    if kb % 4 == 0 and kb:
                        k.I("s_add_u32", s(26 + tt), s(26 + tt), 4096)
                    k.I("buffer_load_dwordx4", r4(X[(tt, kb)]), v(3), s(8, 4), s(26 + tt), mods=f"offen offset:{(kb % 4) * 1024} {SCI}")
                L.append(f)
        return L

    if fused:
        k.I("v_lshlrev_b32", v(4), 5 if not roles else 4, v(2))
        k.I("s_mov_b32", s(59), hex(WS_F0 if not roles else WS_FP))
        if publish is not None:
            publish()
            nonce_poll("a", 4, 59, 2, pre=192)
        else:
            nonce_poll("a", 4, 59, 2 if not roles else 1)
        for st in range(3):
            for f in dma_items(st):
                f()
        k.I("v_and_b32", v(4), 7 if not roles else 3, v(2))
        k.I("v_lshlrev_b32", v(4), 4, v(4))
        k.I("s_lshl_b32", s(59), s(21), 7 if not roles else 6)
        k.I("s_add_u32", s(59), s(59), hex(WS_FH))
        nonce_poll("b", 4, 59, 1)
        ST.stamp()
        for f in x_items(0, 3):
            f()
    else:
        for st in range(3):
            for f in dma_items(st) + x_items(st, st + 1):
                f()
    k.I("v_add_u32", v(4), 3 * STAGE, v(3))
    k.I("s_mul_i32", s(61), s(3), NSTG * 1024)
    k.I("s_add_u32", s(61), s(61), LDS_WD)
    k.I("v_add_u32", v(5), s(61), v(3))
    k.I("v_add_u32", v(14), 144 * 1024, v(3))
    k.I("v_mov_b32", v(15), 0)
    k.I("s_mul_i32", s(28), s(22), 144 * 1024)
    k.I("s_mul_i32", s(29), s(20), 9 * 1024)
    k.I("s_add_u32", s(28), s(28), s(29))
    k.I("s_add_u32", s(28), s(28), hex(WS_HH))
    k.I("s_mul_i32", s(53), s(16), 36)
    k.I("s_mul_i32", s(54), s(3), 9)
    k.I("s_add_u32", s(53), s(53), s(54))
    k.I("s_mul_i32", s(32), s(53), 36864)
    k.I("s_mul_i32", s(54), s(17), 9216)
    k.I("s_add_u32", s(32), s(32), s(54))
    k.I("s_add_u32", s(32), s(32), hex(WS_WD))
    k.I("s_lshl_b32", s(54), s(21), 2)
    k.I("s_add_u32", s(55), s(54), s(16))
    k.I("s_lshl_b32", s(55), s(55), 2)
    k.I("s_add_u32", s(40), s(55), s(3))
    k.I("s_lshl_b32", s(40), s(40), 7)
    k.I("s_add_u32", s(40), s(40), hex(WS_F1))
    k.I("s_add_u32", s(44), s(55), s(17))
    k.I("s_lshl_b32", s(44), s(44), 7)
    k.I("s_lshl_b32", s(56), s(3), 2)
    k.I("s_add_u32", s(44), s(44), s(56))
    k.I("s_add_u32", s(44), s(44), hex(WS_F1))
    k.I("s_add_u32", s(55), s(54), s(17))
    k.I("s_lshl_b32", s(55), s(55), 2)
    for p in range(4):
        k.I("s_add_u32", s(56), s(16), p + 1)
        k.I("s_and_b32", s(56), s(56), 3)
        k.I("s_lshl_b32", s(57), s(21), 2)
        k.I("s_add_u32", s(57), s(57), s(56))
        k.I("s_mul_i32", s(57), s(57), 288)
        k.I("s_add_u32", s(57), s(57), s(53))
        k.I("s_lshl_b32", s(57), s(57), 10)
        k.I("s_add_u32", s(36 + p), s(57), hex(WS_HH))
        k.I("s_add_u32", s(57), s(55), s(56))
        if p < 3:
            k.I("s_lshl_b32", s(58), s(57), 2)
            k.I("s_add_u32", s(58), s(58), s(16))
            k.I("s_mul_i32", s(58), s(58), 18432)
            k.I("s_add_u32", s(45 + p), s(58), hex(WS_PART))
            k.I("s_lshl_b32", s(58), s(57), 5)
            k.I("s_lshl_b32", s(59), s(3), 2)
            k.I("s_add_u32", s(58), s(58), s(59))
            k.I("s_add_u32", s(58), s(58), s(16))
            k.I("s_lshl_b32", s(58), s(58), 2)
            k.I("s_add_u32", s(48 + p), s(58), hex(WS_F2))
        else:
            k.I("s_mul_i32", s(51), s(57), 4 * 18432)
            k.I("s_add_u32", s(51), s(51), hex(WS_PART))
            k.I("s_lshl_b32", s(52), s(57), 7)
            k.I("s_lshl_b32", s(59), s(3), 4)
            k.I("s_add_u32", s(52), s(52), s(59))
            k.I("s_add_u32", s(52), s(52), hex(WS_F2))

    tS = [P.get("v") for _ in range(2 * NG)]
    tC = [P.get("v") for _ in range(9)]

    def stat_loads(tS, sbase_reg, ntt=2):
        L = []
        for tt in range(ntt):
            for i in range(NG):
                L.append(lambda tt=tt, i=i: k.I("buffer_load_dwordx4", r4(tS[NG * tt + i]), v(7), s(8, 4), s(sbase_reg),
                                                mods=f"offen offset:{tt * 256 * NG + 16 * i} {SCI}"))
        return L

    def stat_math(t4, dmean, drstd):
        b = [g[1] for g in t4]
        L = []
        for (x, y) in (((0, 1), (2, 3), (0, 2)) if NG == 4 else ((0, 1),)):
            for i in range(4):
                L.append(lambda x=x, y=y, i=i: k.I("v_add_f32", v(b[x] + i), v(b[x] + i), v(b[y] + i)))
        L.append(lambda: k.I("v_add_f32", v(b[0]), v(b[0]), v(b[0] + 2)))
        L.append(lambda: k.I("v_add_f32", v(b[0] + 1), v(b[0] + 1), v(b[0] + 3)))
        L.append(lambda: k.I("v_mul_f32", v(b[0]), hex(f32bits(-1.0 / 576)), v(b[0])))
        L.append(lambda: k.I("v_mul_f32", v(b[0] + 1), hex(f32bits(1.0 / 576)), v(b[0] + 1)))
        L.append(lambda: k.I("v_fma_f32", v(b[0] + 1), f"-{v(b[0])}", v(b[0]), v(b[0] + 1)))
        L.append(lambda: k.I("v_max_f32", v(b[0] + 1), 0, v(b[0] + 1)))
        L.append(lambda: k.I("v_add_f32", v(b[0] + 1), hex(f32bits(1e-5)), v(b[0] + 1)))
        L.append(lambda: k.I("v_rsq_f32", v(drstd), v(b[0] + 1)))
        if dmean is not None:
            L.append(lambda: k.I("v_mov_b32", v(dmean), v(b[0])))
        return L

    k.I("v_and_b32", v(7), 15, v(2))
    k.I("v_lshlrev_b32", v(7), 6 if NG == 4 else 5, v(7))
    k.I("s_lshl_b32", s(23), s(22), 10 if NG == 4 else 9)
    k.I("s_add_u32", s(23), s(23), hex(WS_ST))
    k.I("v_min_u32", v(24), 143, v(0))
    k.I("v_lshlrev_b32", v(24), 4, v(24))
    k.I("s_mul_i32", s(31), s(20), 2304)
    k.I("s_add_u32", s(31), s(31), hex(WS_CS))
    k.I("v_lshrrev_b32", v(6), 4, v(2))
    k.I("v_lshlrev_b32", v(6), 4, v(6))
    k.I("v_add_u32", v(6), LDS_CS, v(6))

    def cs_loads():
        L = []
        for p in range(9):
            def f(p=p):
                k.I("buffer_load_dwordx4", r4(tC[p]), v(24), s(8, 4), s(31), mods=f"offen {SCI}")
                if p < 8:
                    k.I("s_add_u32", s(31), s(31), 36864)
            L.append(f)
        return L

    def startup_math():
        L = []
        for tt in range(2):
            L += stat_math(tS[NG * tt:NG * tt + NG], 8 + tt, 10 + tt)
            L.append(lambda tt=tt: k.I("v_mul_f32", v(10 + tt), hex(f32bits(-LOG2E)), v(10 + tt)))
            L.append(lambda tt=tt: k.I("v_mul_f32", v(12 + tt), v(10 + tt), v(8 + tt)))
        for p in range(1, 9):
            for i in range(4):
                L.append(lambda p=p, i=i: k.I("v_add_f32", v(tC[0][1] + i), v(tC[0][1] + i), v(tC[p][1] + i)))
        L.append(lambda: k.I("v_add_u32", v(24), LDS_CS, v(24)))
        L.append(lambda: k.I("ds_write_b128", v(24), r4(tC[0])))

        def rel():
            for g in tS + tC:
                P.put(g)
        L.append(rel)
        return L

    def w_read(q, tile):
        st, r = divmod(q, 4)
        slot = st % RING
        wtok[(q, tile)] = k.I("ds_read_b128", r4(WF[(q % 3, tile)]), v(3 + slot // 3),
                              mods=f"offset:{(slot % 3) * STAGE + r * 4096 + tile * 1024}")

    hh_store_tok = {}

    def epi_items(c):
        L = []
        st = c
        for tile in range(4):
            L.append(lambda tile=tile: k.I("ds_read_b128", r4(CS[tile]), v(6), mods=f"offset:{c * 256 + tile * 64}"))
        for tt in range(2):
            g = [ACC[(st, e // 4, tt)][1] + e % 4 for e in range(8)]
            u = [ACC[(st, 2 + e // 4, tt)][1] + e % 4 for e in range(8)]
            cg = [CS[e // 4][1] + e % 4 for e in range(8)]
            cu = [CS[2 + e // 4][1] + e % 4 for e in range(8)]
            for e in range(8):
                L.append(lambda e=e, g=g, tt=tt: k.I("v_mul_f32", v(g[e]), v(10 + tt), v(g[e])))
            for e in range(8):
                L.append(lambda e=e, g=g, cg=cg, tt=tt: k.I("v_fmac_f32", v(g[e]), v(12 + tt), v(cg[e])))
            for e in range(8):
                L.append(lambda e=e, g=g: k.I("v_exp_f32", v(g[e]), v(g[e])))
                L.append(lambda e=e, u=u, cu=cu, tt=tt: k.I("v_fmac_f32", v(u[e]), v(8 + tt), v(cu[e])))
            for e in range(8):
                L.append(lambda e=e, g=g: k.I("v_add_f32", v(g[e]), 1.0, v(g[e])))
            for e in range(8):
                L.append(lambda e=e, g=g: k.I("v_rcp_f32", v(g[e]), v(g[e])))
            for e in range(8):
                L.append(lambda e=e, g=g, u=u: k.I("v_mul_f32", v(u[e]), v(g[e]), v(u[e])))
            for i in range(4):
                L.append(lambda i=i, u=u, tt=tt: k.I("v_cvt_pk_bf16_f32", v(16 + 4 * tt + i), v(u[2 * i]), v(u[2 * i + 1])))

            def stf(tt=tt):
                if c % 4 == 0 and c and tt == 0:
                    k.I("s_add_u32", s(28), s(28), 4096)
                tk = k.I("buffer_store_dwordx4", v(16 + 4 * tt, 4), v(3 if tt == 0 else 14), s(8, 4), s(28),
                         mods=f"offen offset:{(c % 4) * 1024} {SC}")
                if tt == 1:
                    hh_store_tok[c] = tk
            L.append(stf)

        def rel():
            for tile in range(4):
                for tt in range(2):
                    P.put(ACC.pop((c, tile, tt)))
        L.append(rel)
        return L

    def flag_store(tokfn, sreg, val):
        def f():
            k.wait_vm(tokfn())
            k.I("v_mov_b32", v(25), val)
            k.I("buffer_store_dword", v(25), v(15), s(8, 4), s(sreg), mods=f"offen {SC}")
        return f

    npoll = [0]

    def poll_issue(sreg, dst):
        return k.I("buffer_load_dwordx4", r4(dst), v(15), s(8, 4), s(sreg), mods=f"offen {SC}")

    def poll_check(sreg, dst, level, skip_reg=None, skip2=None):
        npoll[0] += 1
        n = npoll[0]
        b = dst[1]

        def test():
            if skip_reg is not None:
                for i in range(4):
                    k.I("s_cmp_eq_u32", s(skip_reg), i)
                    k.I("s_cselect_b32", s(59), level, 0)
                    k.I("v_max_u32", v(b + i), s(59), v(b + i))
                    if skip2 is not None:
                        k.I("s_cmp_eq_u32", s(skip2), i)
                        k.I("s_cselect_b32", s(59), level, 0)
                        k.I("v_max_u32", v(b + i), s(59), v(b + i))
            k.I("v_min_u32", v(b), v(b), v(b + 1))
            k.I("v_min_u32", v(b + 2), v(b + 2), v(b + 3))
            k.I("v_min_u32", v(b), v(b), v(b + 2))
            k.I("v_readfirstlane_b32", s(59), v(b))
            k.I("s_cmp_ge_u32", s(59), level)
        test()
        k.I("s_cbranch_scc1", f"KCD_PD{n}")
        k.I("s_mov_b32", s(60), 20000)
        k.label(f"KCD_PL{n}")
        save = (list(k.vmq), list(k.dsq))
        k.I("s_sub_u32", s(60), s(60), 1)
        k.I("s_cmp_eq_u32", s(60), 0)
        k.I("s_cbranch_scc1", f"KCD_PD{n}")
        k.I("s_sleep", 1)
        poll_issue(sreg, dst)
        k.wait(vm=0)
        test()
        k.I("s_cbranch_scc0", f"KCD_PL{n}")
        k.vmq, k.dsq = save
        k.label(f"KCD_PD{n}")

    WD = {}
    HH = {}

    def wd_load(i, r):
        def f():
            WD[(i, r)] = P.get()
            k.I("s_add_u32", s(59), s(32), i * 36864 + (r // 4) * 4096)
            k.I("buffer_load_dwordx4", r4(WD[(i, r)]), v(3), s(8, 4), s(59), mods=f"offen offset:{(r % 4) * 1024} {SCW}")
        return f

    def hh_load(p, i, tt):
        def f():
            HH[(p, i, tt)] = P.get()
            if i >= 4:
                k.I("s_add_u32", s(59), s(36 + p), (i // 4) * 4096)
            k.I("buffer_load_dwordx4", r4(HH[(p, i, tt)]), v(3 if tt == 0 else 14), s(8, 4), s(59) if i >= 4 else s(36 + p),
                mods=f"offen offset:{(i % 4) * 1024} {SC}")
        return f

    def sync(st):
        k.wait_vm(dma_tok[st])
        k.I("s_barrier")

    staged = [(5, r) for r in range(9)] + [(6, r) for r in range(9)] + [(7, 0)]
    staged.sort(key=lambda x: (x[1], x[0]))
    stg_tok = {}

    def wd_stage(n):
        i, r = staged[n]

        def f():
            k.I("s_add_u32", "m0", s(61), n * 1024)
            k.I("s_add_u32", s(59), s(32), i * 36864 + r * 1024)
            stg_tok[n] = k.I("buffer_load_dwordx4", v(3), s(8, 4), s(59), mods=f"offen {SCW} lds")
        return f

    def wd_unstage(n):
        def f():
            WD[staged[n]] = P.get()
            k.wait_vm(stg_tok[n])
            k.I("ds_read_b128", r4(WD[staged[n]]), v(5), mods=f"offset:{n * 1024}")
        return f

    pre_tok = {}

    def prefill_items():
        L = []

        def init():
            k.I("v_lshl_add_u32", v(26), v(1), 10, v(3))
            k.I("v_and_b32", v(27), 1, v(1))
            k.I("v_lshl_add_u32", v(27), v(27), 10, v(3))
            k.I("v_add_u32", v(27), 16384, v(27))
            for i in range(4):
                k.I("v_mov_b32", v(16 + i), -1)
        L.append(init)
        for n in range(5):
            def f(n=n):
                if 0 < n < 4:
                    k.I("s_add_u32", s(59), s(47), n * 4096)
                pre_tok[0] = k.I("buffer_store_dwordx4", v(16, 4), v(26 if n < 4 else 27), s(8, 4),
                                 s(59) if 0 < n < 4 else s(47), mods=f"offen {SC}")
            L.append(f)
        return L

    seq = [(c, kb) for kb in range(18) for c in range(4)] + [(c, kb) for c in range(4, 9) for kb in range(18)]
    NU = len(seq)
    vq = deque()
    sync(0)
    ST.stamp()
    for q in range(2):
        for tile in range(4):
            w_read(q, tile)
    vq += dma_items(3) + x_items(3, 4)
    pollreg = None
    lateq = deque()
    side = deque()
    wdq = deque()
    pace = 1.0
    credit = 0.0
    allw = deque([wd_load(i, r) for r in range(9) for i in range(5)])
    for q, (c, kb) in enumerate(seq):
        if q % 6 == 0 and q >= 48:
            LC.stamp(f"u{q}")
        if q == 24:
            vq += stat_loads(tS, 23) + cs_loads()
        if q == 40 and fused:
            vq += prefill_items()
        if q == 68 and fused:
            flag_store(lambda: pre_tok[0], 50, 1)()
        if q == 48:
            side += startup_math()
            pace = 1.0
        if q >= 72 and kb == 0:
            if "stC" in dbg:
                ST2.stamp()
            while side:
                it = side.popleft()
                if it is not None:
                    it()
            for tile in range(4):
                for tt in range(2):
                    ACC[(c, tile, tt)] = P.get("v")
            drain = {4: [0, 1], 5: [2, 3], 6: [4, 5], 7: [6], 8: [7]}[c]
            first_gap = True
            for d in drain:
                side += epi_items(d)
            pace = len(side) / (130.0 if len(drain) > 1 else 90.0)
            if c == 4:
                wdq += [wd_stage(n) for n in range(NSTG)]
        un = q + 2
        for m in range(8):
            tile, tt = divmod(m, 2)
            if "swap" in dbg:
                tt, tile = divmod(m, 4)
            if m == 0:
                k.wait_ds(wtok[(q, 3)])
            ac = r4(ACC[(c, tile, tt)])
            k.I(MF, ac, r4(WF[(q % 3, tile)]), r4(X[(tt, kb)]), ac if kb else 0)
            nf = 0
            if un < NU and m % 2 == 0:
                if m == 0 and un % 4 == 0:
                    stn = un // 4
                    if stn == 17:
                        while side:
                            side.popleft()()
                        k.wait(lg=0)
                    sync(stn)
                    if stn + RING - 2 < NSTAGE:
                        vq += dma_items(stn + RING - 2)
                        if stn + RING - 2 < 18:
                            vq += x_items(stn + RING - 2, stn + RING - 1)
                w_read(un, m // 2)
                nf += 1
            elif vq:
                vq.popleft()()
                nf += 1
            elif wdq and m == 3:
                wdq.popleft()()
                nf += 1
            elif allw and q >= 72 and m == 5 and P.n() > (17 if c < 6 else 9):
                allw.popleft()()
                nf += 1
            elif lateq and P.n() > 0:
                lateq.popleft()()
                nf += 1
            credit += pace
            if q >= 72 and kb == 0 and m < 3:
                credit = 0.0
            while side and credit >= 1.0 and nf < 3:
                side.popleft()()
                credit -= 1.0
                nf += 1
            if not side:
                credit = 0.0
        if (c == NA and kb == 16 and NA == 7) or (NA == 6 and c == 7 and kb == 4):
            assert (NA - 1) in hh_store_tok
            flag_store(lambda: hh_store_tok[NA - 1], 44, 1)()
        if c == 8:
            for tt in range(2):
                P.put(X[(tt, kb)])
            if kb == 0:
                assert not allw and not wdq, (len(allw), len(wdq))
                pollreg = P.get("v")
                lateq += [wd_unstage(n) for n in range(6)]
            if kb == (6 if NA == 7 else 1):
                poll_issue(40, pollreg)
            if kb == (8 if NA == 7 else 4):
                poll_check(40, pollreg, 1)
                lateq.extendleft(reversed([hh_load(0, i, tt) for i in range(NA) for tt in range(2)]))
                lateq += [wd_unstage(n) for n in range(6, NSTG)]
    while side:
        side.popleft()()
    LC.stamp("Cend")
    ST.stamp()
    for g in WF.values():
        P.put(g)
    while lateq:
        lateq.popleft()()

    k.I("v_mul_u32_u24", v(4), 18432, v(1))
    k.I("v_add_u32", v(4), v(4), v(3))
    k.I("v_add_u32", v(5), BUF, v(4))
    k.I("v_lshl_add_u32", v(26), v(1), 10, v(3))
    k.I("v_and_b32", v(27), 1, v(1))
    k.I("v_lshl_add_u32", v(27), v(27), 10, v(3))
    k.I("v_add_u32", v(27), 16384, v(27))
    lateq += [hh_load(1, i, tt) for i in range(NA) for tt in range(2)]
    lateq += [wd_load(i, r) for r in range(9) for i in range(NA, 9) if (i, r) not in staged]
    lateq += [hh_load(2, i, tt) for i in range(NA) for tt in range(2)]

    side = deque(epi_items(8))

    def rel_c():
        for g in CS:
            P.put(g)
    side.append(rel_c)

    red_tok = {}
    red_done = {}

    def reduce_items(p):
        L = []
        buf = (p % 2) * BUF
        T = [("v", 16), ("v", 20)]
        extra = []

        def start():
            extra.append(P.get("v"))
            extra.append(P.get("v"))
        L.append(start)
        for n in range(5):
            def rd(n=n):
                regs = T + extra
                k.I("v_add_u32", v(24), buf + (n * 4096 if n < 4 else 0), v(26 if n < 4 else 27))
                for w2 in range(4):
                    k.I("ds_read_b128", r4(regs[w2]), v(24), mods=f"offset:{w2 * 18432}")
            L.append(rd)
            L += [None] * 3
            for (x, y) in ((0, 1), (2, 3), (0, 2)):
                for i in range(4):
                    L.append(lambda x=x, y=y, i=i: k.I("v_add_f32", v((T + extra)[x][1] + i), v((T + extra)[x][1] + i), v((T + extra)[y][1] + i)))

            def stf(n=n):
                if n < 4 and n:
                    k.I("s_add_u32", s(59), s(45 + p), n * 4096)
                red_tok[p] = k.I("buffer_store_dwordx4", r4(T[0]), v(26 if n < 4 else 27), s(8, 4),
                                 s(59) if 0 < n < 4 else s(45 + p), mods=f"offen {SC}")
            L.append(stf)

        def fin():
            P.put(extra[0])
            P.put(extra[1])
            red_done[p] = red_tok[p]
        L.append(fin)
        return L

    passes = [(0, list(range(NA)), True), (1, list(range(NA)), True), (0, list(range(NA, 9)), False),
              (1, list(range(NA, 9)), False), (2, list(range(9)), True), (3, list(range(9)), True)]
    WDLY = 4
    pend_w = deque()
    events = {}

    def at(pi, mi, fn):
        events.setdefault((pi, mi), []).append(fn)

    def barrier():
        k.wait(lg=0)
        k.I("s_barrier")

    at(0, 2, barrier)
    at(0, 18 * NA - 6, flag_store(lambda: hh_store_tok[8], 44, 2))
    nA = 18 * NA
    at(1, nA - 60, lambda: poll_issue(40, pollreg))

    def lvl2():
        poll_check(40, pollreg, 2)
        P.put(pollreg)
        lateq.extendleft(reversed([hh_load(p, i, tt) for p in range(2) for i in range(NA, 9) for tt in range(2)]))
        lateq.extend([hh_load(2, i, tt) for i in range(NA, 9) for tt in range(2)])
        lateq.extend([hh_load(3, i, tt) for i in range(9) for tt in range(2)])
    at(1, nA - 36, lvl2)

    def b_red(p):
        def f():
            while side:
                it = side.popleft()
                if it is not None:
                    it()
            barrier()
            side.extend(reduce_items(p))
        return f
    at(3, 8, b_red(0))
    at(4, 20, b_red(1))
    at(4, 90, flag_store(lambda: red_done[0], 48, 1))
    at(4, 158, flag_store(lambda: red_done[1], 49, 1))
    at(5, 8, b_red(2))
    if not fused:
        at(5, 100, flag_store(lambda: red_done[2], 50, 1))

    fin = {}

    def fin_setup():
        k.I("s_lshl_b32", s(53), s(21), 3)
        k.I("s_lshl_b32", s(54), s(16), 1)
        k.I("s_add_u32", s(53), s(53), s(54))
        k.I("s_and_b32", s(54), s(3), 1)
        k.I("s_add_u32", s(53), s(53), s(54))
        k.I("s_lshl_b32", s(23), s(53), 10 if NG == 4 else 9)
        k.I("s_add_u32", s(23), s(23), hex(WS_ST))
        fin["st"] = [P.get("v") for _ in range(NG)]
        for f in stat_loads(fin["st"], 23, 1):
            f()
        k.I("s_mul_i32", s(54), s(53), 72 * 256)
        k.I("s_mul_i32", s(55), s(17), 18 * 256)
        k.I("s_add_u32", s(54), s(54), s(55))
        k.I("s_add_u32", s(54), s(54), hex(WS_H))
        k.I("s_lshr_b32", s(56), s(3), 1)
        k.I("s_lshl_b32", s(55), s(56), 9)
        k.I("s_add_u32", s(55), s(55), s(54))
        k.I("s_add_u32", s(54), s(54), 4096)
        k.I("v_and_b32", v(8), 15, v(2))
        k.I("v_lshlrev_b32", v(9), 4, v(8))
        k.I("v_lshrrev_b32", v(10), 5, v(2))
        k.I("v_lshl_add_u32", v(9), v(10), 8, v(9))
        k.I("v_bfe_u32", v(10), v(2), 4, 1)
        k.I("v_lshl_add_u32", v(9), v(10), 3, v(9))
        fin["res"] = [P.get("v") for _ in range(3)]
        for n in range(5):
            g = fin["res"][n // 2]
            k.I("buffer_load_dwordx2", v(g[1] + 2 * (n % 2), 2), v(9), s(8, 4), s(55) if n < 4 else s(54),
                mods=f"offen offset:{n * 1024 if n < 4 else 0} {SCI}")
        k.I("v_mul_u32_u24", v(9), 1152, v(8))
        k.I("v_lshrrev_b32", v(10), 4, v(2))
        k.I("v_lshl_add_u32", v(9), v(10), 3, v(9))
        k.I("s_mul_i32", s(53), s(53), 16 * 1152)
        k.I("s_mul_i32", s(54), s(17), 288)
        k.I("s_add_u32", s(53), s(53), s(54))
        k.I("s_lshl_b32", s(54), s(56), 5)
        k.I("s_add_u32", s(54), s(54), s(53))
        fin["poll"] = P.get("v")
    at(5, 40, fin_setup)
    at(5, 100, lambda: side.extend(stat_math(fin["st"], None, 11)))
    fin["rp"] = {}

    def rp_loads(d, alloc=True):
        k.I("s_add_u32", s(57), s(16), d)
        k.I("s_and_b32", s(57), s(57), 3)
        k.I("s_mul_i32", s(57), s(57), 18432)
        k.I("s_add_u32", s(57), s(57), s(51))
        for n in range(5):
            if alloc:
                fin["rp"][(d, n)] = P.get("v")
            g = fin["rp"][(d, n)]
            if 0 < n < 4:
                k.I("s_add_u32", s(58), s(57), n * 4096)
            k.I("buffer_load_dwordx4", r4(g), v(26 if n < 4 else 27), s(8, 4), s(58) if 0 < n < 4 else s(57), mods=f"offen {SC}")

    if fused:
        def early_rp():
            poll_check(52, fin["poll"], 1, skip_reg=16)
            rp_loads(3)
            rp_loads(2)
        at(5, 60, lambda: poll_issue(52, fin["poll"]))
        at(5, 110, early_rp)
        at(5, 150, lambda: rp_loads(1))

        def fin_loads():
            k.I("s_mov_b32", s(60), 20000)
            k.label("KCD_SL")
            b = [fin["rp"][(1, n)][1] for n in range(5)]
            k.I("v_max3_u32", v(24), v(b[0]), v(b[0] + 1), v(b[0] + 2))
            regs = [b[0] + 3] + [b[n] + i for n in range(1, 5) for i in range(4)]
            while len(regs) >= 2:
                k.I("v_max3_u32", v(24), v(24), v(regs.pop()), v(regs.pop()))
            k.I("v_max_u32", v(24), v(24), v(regs.pop()))
            k.I("v_cmp_eq_u32", "vcc", -1, v(24))
            k.I("s_cbranch_vccz", "KCD_SD")
            k.I("s_sub_u32", s(60), s(60), 1)
            k.I("s_cmp_eq_u32", s(60), 0)
            k.I("s_cbranch_scc1", "KCD_SD")
            rp_loads(1, alloc=False)
            k.wait(vm=0)
            k.I("s_branch", "KCD_SL")
            k.label("KCD_SD")
    else:
        at(5, 120, lambda: poll_issue(52, fin["poll"]))

        def fin_loads():
            poll_check(52, fin["poll"], 1, skip_reg=16)
            for d in range(1, 4):
                rp_loads(d)

    for pi, (p, il, first) in enumerate(passes):
        wbase = 4 + p % 2
        accs = {}
        if "stD" in dbg:
            ST2.stamp()

        def acc_get(r):
            accs[r] = [P.get(), P.get()]
            if not first:
                for tt in range(2):
                    k.I("ds_read_b128", r4(accs[r][tt]), v(wbase), mods=f"offset:{(2 * r + tt) * 1024}")
        ahead = 1 if first else 4
        for r in range(ahead):
            acc_get(r)
        mi = 0
        for r in range(9):
            LS.stamp(f"p{pi}r{r}")
            for n_i, i in enumerate(il):
                for tt in range(2):
                    while (i, r) not in WD or (p, i, tt) not in HH:
                        lateq.popleft()()
                    ac = r4(accs[r][tt])
                    k.I(MF, ac, r4(WD[(i, r)]), r4(HH[(p, i, tt)]), 0 if (first and n_i == 0) else ac)
                    nf = 0
                    for fn in events.pop((pi, mi), []):
                        fn()
                        nf += 1
                    if pend_w and pend_w[0][0] <= 0:
                        pend_w.popleft()[1]()
                        nf += 1
                    pend_w = deque((cd - 1, fn) for cd, fn in pend_w)
                    if lateq and P.n() > 6 and nf < 2 and mi % 2 == 1:
                        lateq.popleft()()
                        nf += 1
                    while side and nf < 2:
                        it = side.popleft()
                        if it is None:
                            break
                        it()
                        nf += 1
                    if r == 8:
                        P.put(HH.pop((p, i, tt)))
                    if pi == 5 and tt == 1:
                        P.put(WD.pop((i, r)))
                    mi += 1
            for tt in range(2):
                def wr(r=r, tt=tt, g=accs[r][tt], wbase=wbase):
                    k.I("ds_write_b128", v(wbase), r4(g), mods=f"offset:{(2 * r + tt) * 1024}")
                    P.put(g)
                pend_w.append((WDLY + tt, wr))
            if r + ahead < 9:
                acc_get(r + ahead)
        if pi == 1 or pi == 2:
            pass
    assert not events, events.keys()
    ST.stamp()
    if "stD" in dbg:
        ST2.stamp()
    while pend_w:
        pend_w.popleft()[1]()
    while side:
        it = side.popleft()
        if it is not None:
            it()
    LS.stamp("mfma end")
    if not fused:
        fin_loads()
    if "stD" in dbg:
        ST2.stamp()
    barrier()
    ST.stamp()
    for n in range(5):
        regs = [P.get("v") for _ in range(4)]
        k.I("v_add_u32", v(24), BUF + (n * 4096 if n < 4 else 0), v(26 if n < 4 else 27))
        for w2 in range(4):
            k.I("ds_read_b128", r4(regs[w2]), v(24), mods=f"offset:{w2 * 18432}")
        fin[("own", n)] = regs
    if fused:
        k.wait(vm=0)
        fin_loads()
    LS.stamp("fin loads")
    for n in range(5):
        b = [g[1] for g in fin[("own", n)]]
        rp = [fin["rp"][(d, n)][1] for d in range(1, 4)]
        for i in range(4):
            k.I("v_add_f32", v(b[0] + i), v(b[0] + i), v(b[1] + i))
            k.I("v_add_f32", v(b[2] + i), v(b[2] + i), v(b[3] + i))
            k.I("v_add_f32", v(rp[0] + i), v(rp[0] + i), v(rp[1] + i))
        for i in range(4):
            k.I("v_add_f32", v(b[0] + i), v(b[0] + i), v(b[2] + i))
            k.I("v_add_f32", v(rp[0] + i), v(rp[0] + i), v(rp[2] + i))
        for i in range(4):
            k.I("v_add_f32", v(b[0] + i), v(b[0] + i), v(rp[0] + i))
        rs = fin["res"][n // 2][1] + 2 * (n % 2)
        for i in range(2):
            k.I("v_lshlrev_b32", v(b[1] + 2 * i), 16, v(rs + i))
            k.I("v_and_b32", v(b[1] + 2 * i + 1), "0xffff0000", v(rs + i))
        for i in range(4):
            k.I("v_fma_f32", v(b[0] + i), v(b[0] + i), v(11), v(b[1] + i))
        k.I("v_cvt_pk_bf16_f32", v(b[2]), v(b[0]), v(b[0] + 1))
        k.I("v_cvt_pk_bf16_f32", v(b[2] + 1), v(b[0] + 2), v(b[0] + 3))
        k.I("buffer_store_dwordx2", v(b[2], 2), v(9), s(12, 4), s(54) if n < 4 else s(53),
            mods=f"offen offset:{n * 64 if n < 4 else 256}" + (" sc1" if "osc" in dbg else "") + (" nt" if "ont" in dbg else ""))
    ST.stamp()
    ST.dump(8, 16, 2)
    if "stD" in dbg:
        ST2.stamp()
    ST2.dump(8, 16, 2)
    LS.stamp("end")
    LS.dump(8, 16, 1)
    if LC.on:
        k.I("v_mov_b32", v(20), v(0))
        k.I("v_lshl_add_u32", v(0), v(1), 6, v(2))
        LC.v = 20
        LC.dump(8, 16, 1)
```
